```python
import torch

def _softmax(x, axis=-1):
    return torch.softmax(x, dim=axis)

def _gelu(x):
    return torch.nn.functional.gelu(x, approximate='tanh')

def _silu(x):
    return torch.nn.functional.silu(x)

def _sigmoid(x):
    return torch.sigmoid(x)

def _layernorm(x, axis=-1, eps=1e-05):
    m = x.mean(dim=axis, keepdim=True)
    v = x.var(dim=axis, keepdim=True, unbiased=False)
    return (x - m) / torch.sqrt(v + eps)

def _scatter_add(tgt, idx, src, axis=0):
    return tgt.clone().index_add_(axis, idx, src)

def _segment_sum(src, seg, n):
    out = torch.zeros((n,) + src.shape[1:], dtype=src.dtype)
    return out.index_add_(0, seg, src)

def _pad(x, pw):
    flat = tuple((v for pair in reversed(pw) for v in pair))
    return torch.nn.functional.pad(x, flat)
kernel_name = 'standalone__swin_window_attn__vision'

def setup_inputs():

    _w = lambda a: (lambda t: t.to(torch.bfloat16) if t.is_floating_point() else t)(torch.as_tensor(a))
    H = W = 224 // 8 * 8
    C, win = (192, 8)
    return {'x': _w((lambda *s: torch.randn(*s, dtype=torch.bfloat16) * 0.2)(1, H, W, C)), 'wqkv': _w((lambda *s: torch.randn(*s, dtype=torch.bfloat16) * 0.2)(C, 3 * C)), 'wo': _w((lambda *s: torch.randn(*s, dtype=torch.bfloat16) * 0.05)(C, C))}

def reference(x, wqkv, wo):
    B, H, W, C = x.shape
    win = 8
    nh, nw = (H // win, W // win)
    xw = (lambda x, *d: x.permute(*d))(x.reshape(B, nh, win, nw, win, C), 0, 1, 3, 2, 4, 5)
    xw = xw.reshape(B * nh * nw, win * win, C)
    qkv = xw @ wqkv
    q, k, v = (qkv[..., :C].clone(), qkv[..., C:2 * C].clone(), qkv[..., 2 * C:].clone())
    scale = C ** (-0.5)
    p = _softmax(torch.einsum('bqc,bkc->bqk', q, k) * scale, axis=-1)
    o = torch.einsum('bqk,bkc->bqc', p, v) @ wo
    o = (lambda x, *d: x.permute(*d))(o.reshape(B, nh, nw, win, win, C), 0, 1, 3, 2, 4, 5)
    return o.reshape(B, H, W, C)
```

```python
import re

def R(kind, lo, n=1):
    return [f"{kind}{i}" for i in range(lo, lo + n)]

def rng(kind, lo, n):
    return f"{kind}[{lo}:{lo+n-1}]" if n > 1 else f"{kind}{lo}"

VALU = ("valu", "trans", "perm")
COST = {"mfma": 8, "valu": 4, "trans": 8, "perm": 4, "dsr": 4, "dsw": 4, "vld": 4, "vst": 4, "dma": 4,
        "salu": 4, "bar": 8, "nop": 4, "wait": 4}

class Ins:
    def __init__(self, text, kind, reads=(), writes=(), srcc=(), after=None, lead=0.0, tag=""):
        self.text = text; self.kind = kind
        self.reads = list(reads); self.writes = list(writes); self.srcc = list(srcc)
        self.after = after
        self.lead = lead
        self.tag = tag
        self.preds = {}
        self.succs = []
        self.pos = None
        self.states = 1
    def __repr__(self):
        return self.text

def hazard(p, c, typ, reg):
    isv = reg[0] in "va" and reg[1:].isdigit()
    if not isv:
        if reg[0] == "s" and reg[1:].isdigit() or reg in ("vcc", "m0"):
            if typ == "RAW":
                if p.kind in VALU and c.kind in ("vld", "vst", "dma"): return 5
                if p.kind in VALU and c.kind in VALU: return 2
                if reg == "m0" and c.kind == "dma": return 1
        return 0
    if typ == "RAW":
        if p.kind in VALU and c.kind == "mfma": return 2
        if p.kind == "mfma":
            if c.kind == "mfma":
                if reg in c.srcc:
                    return 0 if c.srcc == p.writes else 10
                return 12
            return 12
        d = 0
        if p.kind == "trans" and c.kind != "trans": d = 1
        if p.kind in VALU and c.kind == "perm": d = 2
        return d
    if typ == "WAW":
        if p.kind == "mfma" and c.kind != "mfma": return 12
        return 0
    if typ == "WAR":
        if p.kind == "mfma" and reg in p.srcc and c.kind in VALU: return 7
        if p.kind in ("vst", "dsw"):
            return 2
        return 0
    return 0

def build_dag(base):
    lastw = {}; readers = {}
    for i in base:
        def edge(p, typ, r):
            if p is i: return
            d = hazard(p, i, typ, r)
            if p not in i.preds:
                i.preds[p] = d; p.succs.append(i)
            else:
                i.preds[p] = max(i.preds[p], d)
        for r in i.reads:
            if r in lastw: edge(lastw[r], "RAW", r)
        for r in i.writes:
            if r in lastw: edge(lastw[r], "WAW", r)
            for p in readers.get(r, []): edge(p, "WAR", r)
        if i.after is not None:
            if i.after not in i.preds:
                i.preds[i.after] = 0; i.after.succs.append(i)
        for r in i.reads:
            readers.setdefault(r, []).append(i)
        for r in i.writes:
            lastw[r] = i; readers[r] = []

class Emitter:
    def __init__(self):
        self.out = []
        self.state = 0
        self.vm = []
        self.lg = []
    def need(self, ins):
        regs = set(ins.reads) | set(ins.writes)
        vn = ln = None
        for k, op in enumerate(self.vm):
            if op.kind in ("vld", "dma") and regs & set(op.writes): vn = len(self.vm) - 1 - k
        for k, op in enumerate(self.lg):
            if regs & set(op.writes): ln = len(self.lg) - 1 - k
        return vn, ln
    def raw(self, ins):
        ins.pos = self.state
        self.state += ins.states
        self.out.append(ins)
    def emit(self, ins, lg_extra=0):
        vn, ln = self.need(ins)
        cost = 0
        if vn is not None or ln is not None:
            parts = []
            if vn is not None:
                assert vn <= 63
                parts.append(f"vmcnt({vn})"); self.vm = self.vm[len(self.vm) - vn:] if vn else []
            if ln is not None:
                ln = max(0, ln - lg_extra)
                ln = min(ln, 15)
                parts.append(f"lgkmcnt({ln})"); self.lg = self.lg[len(self.lg) - ln:] if ln else []
            self.raw(Ins("s_waitcnt " + " ".join(parts), "wait")); cost += COST["wait"]
        self.raw(ins); cost += COST[ins.kind]
        if ins.kind in ("vld", "vst", "dma"):
            self.vm.append(ins)
            assert len(self.vm) <= 63, "vmcnt overflow"
        if ins.kind in ("dsr", "dsw"):
            self.lg.append(ins)
        return cost
    def nop(self, n):
        while n > 0:
            k = min(n, 16)
            i = Ins(f"s_nop {k-1}", "nop"); i.states = k
            self.raw(i); n -= k

def schedule(base, em, budget=24, maxfill=5, lg_extra=0, maxlg=15, log=None):
    build_dag(base)
    mf = [i for i in base if i.kind == "mfma" and i.pos is None]
    for k, m in enumerate(mf): m.dl = float(k)
    END = len(mf) + 50.0
    for i in reversed(base):
        if i.kind == "mfma": continue
        dl = END
        for s in i.succs:
            lat = 0.2 + s.preds[i] * 0.25
            dl = min(dl, s.dl - lat)
        i.dl = dl - i.lead
    fill = [i for i in base if i.kind != "mfma" and i.pos is None]
    order = {id(i): k for k, i in enumerate(base)}
    def wait_states(i):
        miss = 0
        for p, d in i.preds.items():
            if p.pos is None: return None
            have = em.state - (p.pos + p.states)
            miss = max(miss, d - have)
        return miss
    def pick():
        best = None
        for i in fill:
            w = wait_states(i)
            if w is None or w > 0: continue
            if i.kind == "dsr" and len(em.lg) >= maxlg: continue
            key = (i.dl, order[id(i)])
            if best is None or key < best[0]: best = (key, i)
        return best[1] if best else None
    stalls = 0
    for k, m in enumerate(mf):
        while True:
            w = wait_states(m)
            if w is not None and w <= 0: break
            f = pick()
            if f is not None:
                em.emit(f, lg_extra); fill.remove(f); stalls += COST[f.kind]
                if log is not None: log.append((k, "forced", f.text))
            else:
                if w is None:
                    em.nop(1); stalls += 4
                else:
                    em.nop(w); stalls += 4 * w
                if log is not None: log.append((k, "nop", ""))
        c = em.emit(m, lg_extra) - COST["mfma"]
        used = 0; n = 0
        while n < maxfill:
            f = pick()
            if f is None: break
            nxt = 0
            if k + 1 < len(mf):
                vn, ln = em.need(mf[k + 1])
                if vn is not None or ln is not None: nxt = 1
            if used + COST[f.kind] + 4 * nxt > budget or n + 1 + nxt > maxfill: break
            used += em.emit(f, lg_extra); n += 1
            fill.remove(f)
    while fill:
        f = pick()
        if f is None:
            em.nop(1); continue
        em.emit(f, lg_extra); fill.remove(f)
    return stalls

def verify(base, out):
    def trace(seq):
        lastw = {}; res = {}
        for i in seq:
            res[id(i)] = tuple(id(lastw.get(r)) for r in i.reads)
            for r in i.writes: lastw[r] = i
        return res, {r: id(w) for r, w in lastw.items()}
    a, fa = trace(base); b, fb = trace([i for i in out if i.kind not in ("wait", "nop")])
    for i in base:
        assert a[id(i)] == b[id(i)], f"dataflow changed at {i.text}"
    assert fa == fb
    lastw = {}; readers = {}
    for i in out:
        def chk(p, typ, r):
            d = hazard(p, i, typ, r)
            have = i.pos - (p.pos + p.states)
            assert have >= d, f"hazard {typ} {r}: {p.text} -> {i.text}: have {have} need {d}"
        for r in i.reads:
            if r in lastw: chk(lastw[r], "RAW", r)
        for r in i.writes:
            if r in lastw: chk(lastw[r], "WAW", r)
            for p in readers.get(r, []):
                if p is not i: chk(p, "WAR", r)
        for r in i.reads: readers.setdefault(r, []).append(i)
        for r in i.writes:
            lastw[r] = i; readers[r] = []
```

```python
import sys, struct, argparse
from sched import *

KN = "standalone__swin_window_attn__vision_kernel"
XBYTES = 19267584
SCALE = (192 ** -0.5) * 1.4426950408889634
def f32bits(x): return struct.unpack("<I", struct.pack("<f", x))[0]

HDR = open("standalone__swin_window_attn__vision.s.ref").read().split("; Override launch")[0]

def kd(name, vgpr, sgpr, accum):
    return f""".p2align 6
.amdhsa_kernel {name}
  .amdhsa_next_free_vgpr {vgpr}
  .amdhsa_next_free_sgpr {sgpr}
  .amdhsa_accum_offset {accum}
  .amdhsa_group_segment_fixed_size 0
  .amdhsa_kernarg_size 48
  .amdhsa_user_sgpr_count 2
  .amdhsa_user_sgpr_kernarg_segment_ptr 1
  .amdhsa_system_sgpr_workgroup_id_x 1
.end_amdhsa_kernel"""

def fold_kernel():
    o = []
    A = o.append
    A(".globl fold_kernel\n.p2align 8\n.type fold_kernel,@function\nfold_kernel:")
    A("  s_cmp_ge_u32 s2, 72")
    A("  s_cbranch_scc1 L_fold_end")
    A("  s_load_dwordx4 s[4:7], s[0:1], 8")
    A("  s_load_dwordx2 s[8:9], s[0:1], 40")
    A("  s_cmp_ge_u32 s2, 36")
    A("  s_cselect_b32 s20, 1, 0")
    A("  s_mul_i32 s21, s20, 36")
    A("  s_sub_u32 s21, s2, s21")
    A("  s_mul_i32 s22, s21, 43")
    A("  s_lshr_b32 s22, s22, 8")
    A("  s_mul_i32 s23, s22, 6")
    A("  s_sub_u32 s23, s21, s23")
    A("  v_and_b32 v1, 0x13, v0")
    A("  v_and_b32 v2, 4, v0")
    A("  v_lshl_or_b32 v1, v2, 1, v1")
    A("  v_and_b32 v2, 8, v0")
    A("  v_lshrrev_b32 v2, 1, v2")
    A("  v_or_b32 v1, v1, v2")
    A("  v_lshrrev_b32 v2, 5, v0")
    A("  s_lshl_b32 s24, s23, 5")
    A("  s_lshl_b32 s25, s22, 5")
    A("  v_add_u32 v3, s24, v1")
    A("  v_mul_u32_u24 v3, 1152, v3")
    A("  v_lshl_add_u32 v3, v2, 4, v3")
    A("  s_mul_i32 s26, s20, 768")
    A("  v_add_u32 v3, s26, v3")
    A("  v_add_u32 v4, s25, v1")
    A("  s_waitcnt lgkmcnt(0)")
    A("  s_mov_b32 s12, s4\n  s_mov_b32 s13, s5\n  s_mov_b32 s14, 221184\n  s_mov_b32 s15, 0x00020000")
    A("  s_mov_b32 s16, s6\n  s_mov_b32 s17, s7\n  s_mov_b32 s18, 73728\n  s_mov_b32 s19, 0x00020000")
    A("  s_mov_b32 s10, 147456\n  s_mov_b32 s11, 0x00020000")
    for s in range(12):
        A(f"  buffer_load_dwordx4 v[{16+4*s}:{19+4*s}], v3, s[12:15], 0 offen offset:{32*s}")
    A("  s_cmp_eq_u32 s20, 1")
    A("  s_cbranch_scc1 L_fold_n")
    A("  v_mul_u32_u24 v5, 1152, v4")
    A("  v_lshl_add_u32 v5, v2, 4, v5")
    for s in range(12):
        A(f"  buffer_load_dwordx4 v[{64+4*s}:{67+4*s}], v5, s[12:15], 0 offen offset:{384+32*s}")
    A(f"  s_mov_b32 s27, {f32bits(SCALE):#x}")
    A("  s_waitcnt vmcnt(0)")
    A("  s_branch L_fold_mm")
    A("L_fold_n:")
    A("  v_mul_u32_u24 v5, 3072, v2")
    A("  v_lshl_add_u32 v5, v4, 1, v5")
    for half in range(2):
        for s in range(6 * half, 6 * half + 6):
            A(f"  s_mov_b32 s28, {s*6144}")
            for j in range(8):
                A(f"  buffer_load_ushort v{128+(s%6)*8+j}, v5, s[16:19], s28 offen offset:{384*j}")
        A("  s_waitcnt vmcnt(0)")
        for s in range(6 * half, 6 * half + 6):
            for d in range(4):
                b = 128 + (s % 6) * 8 + 2 * d
                A(f"  v_lshl_or_b32 v{64+4*s+d}, v{b+1}, 16, v{b}")
    A("  s_mov_b32 s27, 1.0")
    A("  s_nop 1")
    A("L_fold_mm:")
    for s in range(12):
        c = "0" if s == 0 else "v[112:127]"
        A(f"  v_mfma_f32_32x32x16_bf16 v[112:127], v[{16+4*s}:{19+4*s}], v[{64+4*s}:{67+4*s}], {c}")
    A("  s_mul_i32 s28, s20, 73728")
    A("  s_mul_i32 s29, s22, 12288")
    A("  s_add_u32 s28, s28, s29")
    A("  s_lshl_b32 s29, s23, 11")
    A("  s_add_u32 s28, s28, s29")
    A("  v_lshlrev_b32 v6, 4, v0")
    A("  s_nop 7")
    for r in range(16):
        A(f"  v_mul_f32 v{112+r}, s27, v{112+r}")
    for d in range(8):
        A(f"  v_cvt_pk_bf16_f32 v{8+d}, v{112+2*d}, v{113+2*d}")
    A("  buffer_store_dwordx4 v[8:11], v6, s[8:11], s28 offen")
    A("  buffer_store_dwordx4 v[12:15], v6, s[8:11], s28 offen offset:1024")
    A("L_fold_end:")
    A("  s_endpgm")
    return "\n".join(o)

X = lambda tt, s: (tt * 12 + s) * 4
WR0 = 96
ACC = lambda b, k: 16 + (b * 2 + k) * 16
ST = lambda kt, qt: 80 + (kt * 2 + qt) * 16
CB = lambda i: 144 + 16 * i
PB = lambda qt, kt, a: 208 + ((qt * 2 + kt) * 2 + a) * 4
OB = lambda b: 240 + 8 * b
VX = [1, 2]
VL = [3, 4, 5]
VD = 6

def mfma(d, ak, a, bk, b, first, tag=""):
    c = "0" if first else rng("v", d, 16)
    rd = R(ak, a, 4) + R(bk, b, 4) + ([] if first else R("v", d, 16))
    return Ins(f"v_mfma_f32_32x32x16_bf16 {rng('v', d, 16)}, {rng(ak, a, 4)}, {rng(bk, b, 4)}, {c}",
               "mfma", rd, R("v", d, 16), srcc=([] if first else R("v", d, 16)), tag=tag)

def valu(op, d, *src, kind="valu", lead=0.0):
    rd = [s for s in src if isinstance(s, str) and s[0] in "vs" and s[1:].isdigit()]
    return Ins(f"{op} {d}, " + ", ".join(str(s) for s in src), kind, rd, [d], lead=lead)

def cvt(d, s0, lead=0.0):
    return valu("v_cvt_pk_bf16_f32", f"v{d}", f"v{s0}", f"v{s0+1}", lead=lead)

class Body:
    def __init__(self, opt):
        self.opt = opt
        self.base = []
        self.nfrag = 0
    def add(self, i):
        self.base.append(i); return i
    def wfrag(self, mat, t, s):
        slot = self.nfrag % self.opt.ring; self.nfrag += 1
        reg = WR0 + 4 * slot
        off = mat * 73728 + (t * 12 + s) * 1024
        self.add(Ins(f"ds_read_b128 {rng('a', reg, 4)}, v{VL[off >> 16]} offset:{off & 0xffff}", "dsr",
                     [f"v{VL[off >> 16]}", f"L:{mat}:{t}"], R("a", reg, 4), lead=self.opt.dslead))
        return reg
    def cvt16(self, dst, src, lead=0.0):
        for d in range(8): self.add(cvt(dst + d, src + 2 * d, lead))
    def softmax(self, qt):
        vals = [ST(kt, qt) + r for kt in range(2) for r in range(16)]
        t0 = 7 + 4 * qt
        m0, m1, l0, l1 = (f"v{t0+i}" for i in range(4))
        for ch, m in ((vals[:16], m0), (vals[16:], m1)):
            self.add(valu("v_max3_f32", m, f"v{ch[0]}", f"v{ch[1]}", f"v{ch[2]}"))
            for k in range(3, 15, 2):
                self.add(valu("v_max3_f32", m, m, f"v{ch[k]}", f"v{ch[k+1]}"))
        self.add(valu("v_max3_f32", m0, m0, f"v{vals[15]}", f"v{vals[31]}"))
        self.add(valu("v_max_f32", m0, m0, m1))
        self.add(valu("v_mov_b32", m1, m0))
        self.add(Ins(f"v_permlane32_swap_b32 {m0}, {m1}", "perm", [m0, m1], [m0, m1]))
        self.add(valu("v_max_f32", m0, m0, m1))
        for k, v in enumerate(vals):
            self.add(valu("v_sub_f32", f"v{v}", f"v{v}", m0))
            self.add(valu("v_exp_f32", f"v{v}", f"v{v}", kind="trans"))
            l = l0 if k % 2 == 0 else l1
            if k >= 2:
                if k < 4:
                    self.add(valu("v_add_f32", l, f"v{vals[k-2]}", f"v{v}"))
                else:
                    self.add(valu("v_add_f32", l, l, f"v{v}"))
        self.add(valu("v_add_f32", l0, l0, l1))
        self.add(valu("v_mov_b32", l1, l0))
        self.add(Ins(f"v_permlane32_swap_b32 {l0}, {l1}", "perm", [l0, l1], [l0, l1]))
        self.add(valu("v_add_f32", l0, l0, l1))
        self.add(valu("v_rcp_f32", l0, l0, kind="trans"))
        for kt in range(2):
            for a in range(2):
                for d in range(4):
                    s = ST(kt, qt) + 8 * a + 2 * d
                    self.add(valu("v_mul_f32", f"v{s}", f"v{s}", l0))
                    self.add(valu("v_mul_f32", f"v{s+1}", f"v{s+1}", l0))
                    self.add(cvt(PB(qt, kt, a) + d, s))
    def Sblk(self, t, qt, cb):
        for a in range(2):
            for kt in range(2):
                self.add(mfma(ST(kt, qt), "a", X(kt, 2 * t + a), "v", cb + 4 * a, t == 0 and a == 0, tag=f"S{t}{qt}"))
    def Oblk(self, t, qt):
        oo = ST(t % 2, qt)
        n = 0
        for kt in range(2):
            for a in range(2):
                self.add(mfma(oo, "v", CB(t % 4) + 8 * kt + 4 * a, "v", PB(qt, kt, a), n == 0, tag=f"O{t}{qt}")); n += 1
        ob = OB(self.nob % 2); self.nob += 1
        fl = self.opt.stflags
        for a in range(2):
            for d in range(4): self.add(cvt(ob + 4 * a + d, oo + 8 * a + 2 * d, lead=self.opt.stlead))
            self.add(Ins(f"buffer_store_dwordx4 {rng('v', ob + 4*a, 4)}, v{VX[qt]}, s[12:15], 0 offen offset:{64*t+32*a}{fl}",
                         "vst", R("v", ob + 4 * a, 4) + [f"v{VX[qt]}"], [], lead=self.opt.stlead))
    def bar(self, tiles, after):
        rd = [f"D:{m}:{t}" for m, t in tiles]
        wr = [f"L:{m}:{t}" for m, t in tiles]
        return self.add(Ins("s_barrier", "bar", rd, wr, after=after))

    def build(self):
        opt = self.opt
        self.nob = 0
        SI = opt.sins
        bars = {0: [(0, 0), (0, 1)], 1: [(0, 2), (0, 3)], 3: [(0, 4), (0, 5)], 10: [(1, t) for t in range(6)]}
        pend = None
        blk = 0
        lastm = None
        for qt in range(2):
            for t in range(6):
                acc = ACC((blk // 2) % 2, blk % 2)
                if blk in bars: self.bar(bars[blk], lastm)
                for s in range(12):
                    if s == SI and pend is not None:
                        self.flushS(pend); pend = None
                    w = self.wfrag(0, t, s)
                    lastm = self.add(mfma(acc, "a", w, "a", X(qt, s), s == 0, tag=f"T{t}{qt}"))
                pend = (t, qt, acc, CB((blk // 2) % 4) + 8 * (blk % 2))
                blk += 1
        osched = {1: [(0, 0)], 2: [(1, 0)], 3: [(2, 0), (0, 1), (1, 1)], 4: [(3, 0), (2, 1), (3, 1)], 5: []}
        for t in range(6):
            for s in range(12):
                if s == SI // 2 + 1 and pend is not None:
                    self.flushS(pend); pend = None
                if s == 5 and t >= 1:
                    for kt in range(2): self.cvt16(CB((t - 1) % 4) + 8 * kt, ACC((t - 1) % 2, kt))
                if s in (5, 8, 11) and t >= 1:
                    lst = osched[t]; k = (5, 8, 11).index(s)
                    if k < len(lst): self.Oblk(*lst[k])
                w = self.wfrag(1, t, s)
                for kt in range(2):
                    self.add(mfma(ACC(t % 2, kt), "a", X(kt, s), "a", w, s == 0, tag=f"Y{t}"))
        self.Oblk(4, 0); self.Oblk(4, 1)
        for kt in range(2): self.cvt16(CB(5 % 4) + 8 * kt, ACC(5 % 2, kt))
        self.Oblk(5, 0); self.Oblk(5, 1)
    def flushS(self, pend):
        t, qt, acc, cb = pend
        self.cvt16(cb, acc)
        self.Sblk(t, qt, cb)
        if t == 5: self.softmax(qt)

def main_kernel(opt):
    o = []
    A = o.append
    A(f".globl {KN}\n.p2align 8\n.type {KN},@function\n{KN}:")
    A("  s_cmp_ge_u32 s2, 256")
    A("  s_cbranch_scc1 L_end")
    A("  s_load_dwordx2 s[4:5], s[0:1], 0")
    A("  s_load_dwordx2 s[6:7], s[0:1], 24")
    A("  s_load_dwordx2 s[16:17], s[0:1], 40")
    A("  v_lshrrev_b32 v7, 6, v0")
    A("  v_and_b32 v8, 63, v0")
    A("  v_readfirstlane_b32 s20, v7")
    A(f"  v_lshlrev_b32 v{VD}, 4, v8")
    A(f"  v_mov_b32 v{VL[0]}, v{VD}")
    A(f"  v_add_u32 v{VL[1]}, 0x10000, v{VD}")
    A(f"  v_add_u32 v{VL[2]}, 0x20000, v{VD}")
    A("  s_mul_i32 s21, s2, 3")
    A("  s_add_u32 s21, s21, s20")
    A("  s_add_u32 s22, s2, 768")
    A("  s_cmp_eq_u32 s20, 3")
    A("  s_cselect_b32 s21, s22, s21")
    A("  s_mul_hi_u32 s23, s21, 153391690")
    A("  s_mul_i32 s24, s23, 28")
    A("  s_sub_u32 s24, s21, s24")
    A("  s_mul_i32 s23, s23, 688128")
    A("  s_mul_i32 s24, s24, 3072")
    A("  s_add_u32 s23, s23, s24")
    A("  v_bfe_u32 v9, v8, 3, 2")
    A("  v_mul_u32_u24 v9, 86016, v9")
    A("  v_and_b32 v10, 7, v8")
    A("  v_mul_u32_u24 v10, 384, v10")
    A("  v_lshrrev_b32 v11, 5, v8")
    A("  v_lshl_add_u32 v9, v11, 4, v9")
    A("  v_add3_u32 v1, v9, v10, s23")
    A("  v_add_u32 v2, 344064, v1")
    A("  s_mul_i32 s25, s20, 3072")
    A("  s_waitcnt lgkmcnt(0)")
    A(f"  s_mov_b32 s8, s4\n  s_mov_b32 s9, s5\n  s_mov_b32 s10, {XBYTES}\n  s_mov_b32 s11, 0x00020000")
    A(f"  s_mov_b32 s12, s6\n  s_mov_b32 s13, s7\n  s_mov_b32 s14, {XBYTES}\n  s_mov_b32 s15, 0x00020000")
    A("  s_mov_b32 s18, 147456\n  s_mov_b32 s19, 0x00020000")
    A("  s_cmp_ge_u32 s21, 784")
    A("  s_cbranch_scc1 L_helper")

    def dma(em, mat, t):
        off = mat * 73728 + t * 12288
        em.emit(Ins(f"s_add_u32 m0, s25, {off}", "salu", [], ["m0"]))
        em.nop(1)
        for k in range(3):
            em.emit(Ins(f"buffer_load_dwordx4 v{VD}, s[16:19], m0 offen offset:{1024*k} lds", "dma", ["m0"], [f"D:{mat}:{t}"]))
    em = Emitter()
    pre = []
    def dma2(mat, t):
        off = mat * 73728 + t * 12288
        em.raw(Ins(f"s_add_u32 m0, s25, {off}", "salu"))
        em.nop(1)
        for k in range(3):
            i = Ins(f"buffer_load_dwordx4 v{VD}, s[16:19], m0 offen offset:{1024*k} lds", "dma", [],
                    [f"D:{mat}:{t}"] if k == 2 else [f"Dx:{mat}:{t}:{k}"])
            em.emit(i); pre.append(i)
    def xload(tt):
        for s in range(12):
            i = Ins(f"buffer_load_dwordx4 {rng('a', X(tt, s), 4)}, v{VX[tt]}, s[8:11], 0 offen offset:{32*s}{opt.ldflags}", "vld",
                    [], R("a", X(tt, s), 4))
            em.emit(i); pre.append(i)
    dma2(0, 0); xload(0); dma2(0, 1); xload(1)
    for t in range(2, 6): dma2(0, t)
    for t in range(6): dma2(1, t)
    b = Body(opt); b.build()
    log = []
    stalls = schedule(pre + b.base, em, budget=opt.budget, maxfill=opt.maxfill, lg_extra=opt.lgextra, log=log)
    verify(pre + b.base, [i for i in em.out if i.kind != "salu"])
    nm = sum(1 for i in em.out if i.kind == "mfma")
    sys.stderr.write(f"instrs {len(em.out)} mfma {nm} forced-cycles {stalls}\n")
    if opt.log:
        for l in log: sys.stderr.write(str(l) + "\n")
    for i in em.out:
        A("  " + i.text + (f"   ; {i.tag}" if i.tag else ""))
    A("  s_endpgm")
    A("L_helper:")
    seq = [(0, t) for t in range(6)] + [(1, t) for t in range(6)]
    for mat, t in seq:
        off = mat * 73728 + t * 12288
        A(f"  s_add_u32 m0, s25, {off}")
        A("  s_nop 0")
        for k in range(3):
            A(f"  buffer_load_dwordx4 v{VD}, s[16:19], m0 offen offset:{1024*k} lds")
    for n in (30, 24, 18, 0):
        A(f"  s_waitcnt vmcnt({n})")
        A("  s_barrier")
    A("L_end:")
    A("  s_endpgm")
    return "\n".join(o)

def main():
    ap = argparse.ArgumentParser()
    ap.add_argument("--ring", type=int, default=12)
    ap.add_argument("--dslead", type=float, default=6.0)
    ap.add_argument("--stlead", type=float, default=40.0)
    ap.add_argument("--sins", type=int, default=6)
    ap.add_argument("--budget", type=int, default=24)
    ap.add_argument("--maxfill", type=int, default=5)
    ap.add_argument("--lgextra", type=int, default=1)
    ap.add_argument("--stflags", default="")
    ap.add_argument("--ldflags", default="")
    ap.add_argument("--log", action="store_true")
    opt = ap.parse_args()
    if opt.stflags: opt.stflags = " " + opt.stflags.replace(",", " ")
    if opt.ldflags: opt.ldflags = " " + opt.ldflags.replace(",", " ")
    print(HDR.rstrip())
    print("; @launch kernel=fold_kernel grid=(72,1,1) block=(64,1,1) lds=0")
    print(f"; @launch kernel={KN} grid=(256,1,1) block=(256,1,1) lds=147456")
    print('.amdgcn_target "amdgcn-amd-amdhsa--gfx950"\n.text')
    print(main_kernel(opt))
    print(fold_kernel())
    print('.section .rodata,"a"')
    print(kd(KN, 256 + 96 + 4 * opt.ring, 48, 256))
    print(kd("fold_kernel", 176, 48, 176))

main()
```

```python
import re

def R(kind, lo, n=1):
    return [f"{kind}{i}" for i in range(lo, lo + n)]

def rng(kind, lo, n):
    return f"{kind}[{lo}:{lo+n-1}]" if n > 1 else f"{kind}{lo}"

VALU = ("valu", "trans", "perm")
COST = {"mfma": 8, "valu": 4, "trans": 8, "perm": 4, "dsr": 4, "dsw": 4, "vld": 4, "vst": 4, "dma": 4,
        "salu": 4, "bar": 8, "nop": 4, "wait": 4}

class Ins:
    def __init__(self, text, kind, reads=(), writes=(), srcc=(), after=None, lead=0.0, tag=""):
        self.text = text; self.kind = kind
        self.reads = list(reads); self.writes = list(writes); self.srcc = list(srcc)
        self.after = after
        self.lead = lead
        self.tag = tag
        self.preds = {}
        self.succs = []
        self.pos = None
        self.states = 1
    def __repr__(self):
        return self.text

def hazard(p, c, typ, reg):
    isv = reg[0] in "va" and reg[1:].isdigit()
    if not isv:
        if reg[0] == "s" and reg[1:].isdigit() or reg in ("vcc", "m0"):
            if typ == "RAW":
                if p.kind in VALU and c.kind in ("vld", "vst", "dma"): return 5
                if p.kind in VALU and c.kind in VALU: return 2
                if reg == "m0" and c.kind == "dma": return 1
        return 0
    if typ == "RAW":
        if p.kind in VALU and c.kind == "mfma": return 2
        if p.kind == "mfma":
            if c.kind == "mfma":
                if reg in c.srcc:
                    return 0 if c.srcc == p.writes else 10
                return 12
            return 12
        d = 0
        if p.kind == "trans" and c.kind != "trans": d = 1
        if p.kind in VALU and c.kind == "perm": d = 2
        return d
    if typ == "WAW":
        if p.kind == "mfma" and c.kind != "mfma": return 12
        return 0
    if typ == "WAR":
        if p.kind == "mfma" and reg in p.srcc and c.kind in VALU: return 7
        if p.kind in ("vst", "dsw"):
            return 2
        return 0
    return 0

def build_dag(base):
    lastw = {}; readers = {}
    for i in base:
        def edge(p, typ, r):
            if p is i: return
            d = hazard(p, i, typ, r)
            if p not in i.preds:
                i.preds[p] = d; p.succs.append(i)
            else:
                i.preds[p] = max(i.preds[p], d)
        for r in i.reads:
            if r in lastw: edge(lastw[r], "RAW", r)
        for r in i.writes:
            if r in lastw: edge(lastw[r], "WAW", r)
            for p in readers.get(r, []): edge(p, "WAR", r)
        if i.after is not None:
            if i.after not in i.preds:
                i.preds[i.after] = 0; i.after.succs.append(i)
        for r in i.reads:
            readers.setdefault(r, []).append(i)
        for r in i.writes:
            lastw[r] = i; readers[r] = []

class Emitter:
    def __init__(self):
        self.out = []
        self.state = 0
        self.vm = []
        self.lg = []
    def need(self, ins):
        regs = set(ins.reads) | set(ins.writes)
        vn = ln = None
        for k, op in enumerate(self.vm):
            if op.kind in ("vld", "dma") and regs & set(op.writes): vn = len(self.vm) - 1 - k
        for k, op in enumerate(self.lg):
            if regs & set(op.writes): ln = len(self.lg) - 1 - k
        return vn, ln
    def raw(self, ins):
        ins.pos = self.state
        self.state += ins.states
        self.out.append(ins)
    def emit(self, ins, lg_extra=0):
        vn, ln = self.need(ins)
        cost = 0
        if vn is not None or ln is not None:
            parts = []
            if vn is not None:
                assert vn <= 63
                parts.append(f"vmcnt({vn})"); self.vm = self.vm[len(self.vm) - vn:] if vn else []
            if ln is not None:
                ln = max(0, ln - lg_extra)
                ln = min(ln, 15)
                parts.append(f"lgkmcnt({ln})"); self.lg = self.lg[len(self.lg) - ln:] if ln else []
            self.raw(Ins("s_waitcnt " + " ".join(parts), "wait")); cost += COST["wait"]
        self.raw(ins); cost += COST[ins.kind]
        if ins.kind in ("vld", "vst", "dma"):
            self.vm.append(ins)
            assert len(self.vm) <= 63, "vmcnt overflow"
        if ins.kind in ("dsr", "dsw"):
            self.lg.append(ins)
        return cost
    def nop(self, n):
        while n > 0:
            k = min(n, 16)
            i = Ins(f"s_nop {k-1}", "nop"); i.states = k
            self.raw(i); n -= k

def schedule(base, em, budget=24, maxfill=5, lg_extra=0, maxlg=15, log=None, prefill=0):
    build_dag(base)
    mf = [i for i in base if i.kind == "mfma" and i.pos is None]
    for k, m in enumerate(mf): m.dl = float(k)
    END = len(mf) + 50.0
    for i in reversed(base):
        if i.kind == "mfma": continue
        dl = END
        for s in i.succs:
            lat = 0.2 + s.preds[i] * 0.25
            dl = min(dl, s.dl - lat)
        i.dl = dl - i.lead
    fill = [i for i in base if i.kind != "mfma" and i.pos is None]
    order = {id(i): k for k, i in enumerate(base)}
    def wait_states(i):
        miss = 0
        for p, d in i.preds.items():
            if p.pos is None: return None
            have = em.state - (p.pos + p.states)
            miss = max(miss, d - have)
        return miss
    def cands(only=None):
        res = []
        for i in fill:
            if only is not None and id(i) not in only: continue
            w = wait_states(i)
            if w is None or w > 0: continue
            if i.kind == "dsr" and len(em.lg) >= maxlg: continue
            res.append(((i.dl, order[id(i)]), i))
        res.sort(key=lambda x: x[0])
        return [i for _, i in res]
    def pick(only=None):
        c = cands(only)
        return c[0] if c else None
    def missing(m):
        seen = set(); st = [m]
        while st:
            x = st.pop()
            for p in x.preds:
                if p.pos is None and id(p) not in seen:
                    seen.add(id(p)); st.append(p)
        return seen
    stalls = 0
    for k, m in enumerate(mf):
        while True:
            w = wait_states(m)
            if w is not None and w <= 0: break
            f = pick(missing(m)) if w is None else None
            if f is None:
                c = [i for i in cands() if i.kind not in ("dma", "bar")]
                f = c[0] if c else None
            if f is not None:
                em.emit(f, lg_extra); fill.remove(f); stalls += COST[f.kind]
                if log is not None: log.append((k, "forced", f.text))
            else:
                if w is None:
                    em.nop(1); stalls += 4
                else:
                    em.nop(w); stalls += 4 * w
                if log is not None: log.append((k, "nop", ""))
        if k == 0 and prefill:
            for _ in range(prefill):
                c = [i for i in cands() if i.kind == "dsr"]
                if not c: break
                em.emit(c[0], lg_extra); fill.remove(c[0])
        c = em.emit(m, lg_extra if k > 2 else 0) - COST["mfma"]
        used = 0; n = 0
        while n < maxfill:
            nxt = 0
            if k + 1 < len(mf):
                vn, ln = em.need(mf[k + 1])
                if vn is not None or ln is not None: nxt = 1
            if n + 1 + nxt > maxfill: break
            f = None
            for cnd in cands():
                if used + COST[cnd.kind] + 4 * nxt <= budget:
                    f = cnd; break
            if f is None: break
            used += em.emit(f, lg_extra); n += 1
            fill.remove(f)
    while fill:
        f = pick()
        if f is None:
            em.nop(1); continue
        em.emit(f, lg_extra); fill.remove(f)
    return stalls

def verify(base, out):
    def trace(seq):
        lastw = {}; res = {}
        for i in seq:
            res[id(i)] = tuple(id(lastw.get(r)) for r in i.reads)
            for r in i.writes: lastw[r] = i
        return res, {r: id(w) for r, w in lastw.items()}
    a, fa = trace(base); b, fb = trace([i for i in out if i.kind not in ("wait", "nop")])
    for i in base:
        assert a[id(i)] == b[id(i)], f"dataflow changed at {i.text}"
    assert fa == fb
    lastw = {}; readers = {}
    for i in out:
        def chk(p, typ, r):
            d = hazard(p, i, typ, r)
            have = i.pos - (p.pos + p.states)
            assert have >= d, f"hazard {typ} {r}: {p.text} -> {i.text}: have {have} need {d}"
        for r in i.reads:
            if r in lastw: chk(lastw[r], "RAW", r)
        for r in i.writes:
            if r in lastw: chk(lastw[r], "WAW", r)
            for p in readers.get(r, []):
                if p is not i: chk(p, "WAR", r)
        for r in i.reads: readers.setdefault(r, []).append(i)
        for r in i.writes:
            lastw[r] = i; readers[r] = []
```

```python
import sys, struct, argparse
import sched
from sched import *

KN = "standalone__swin_window_attn__vision_kernel"
XBYTES = 19267584
SCALE = (192 ** -0.5) * 1.4426950408889634
def f32bits(x): return struct.unpack("<I", struct.pack("<f", x))[0]
HDR = open("standalone__swin_window_attn__vision.s.ref").read().split("; Override launch")[0]

def woff(mat, t):
    return 90112 + (5 - t) * 12288 if mat == 0 else t * 12288

X = lambda tt, s: (tt * 12 + s) * 4
WR0 = 96
ACC = lambda b, k: 16 + (b * 2 + k) * 16
ST = lambda kt, qt: 80 + (kt * 2 + qt) * 16
CB = lambda i: 144 + 16 * i
PB = lambda qt, kt, a: 208 + ((qt * 2 + kt) * 2 + a) * 4
OB = lambda b: 240 + 8 * b
VO = 1
VP = 2
VL = [3, 4, 5]
VD = 6
VPD = 15
SO = [44, 45, 46, 47]

def mfma(d, ak, a, bk, b, first, tag=""):
    c = "0" if first else rng("v", d, 16)
    rd = R(ak, a, 4) + R(bk, b, 4) + ([] if first else R("v", d, 16))
    return Ins(f"v_mfma_f32_32x32x16_bf16 {rng('v', d, 16)}, {rng(ak, a, 4)}, {rng(bk, b, 4)}, {c}",
               "mfma", rd, R("v", d, 16), srcc=([] if first else R("v", d, 16)), tag=tag)

def valu(op, d, *src, kind="valu", lead=0.0):
    rd = [s for s in src if isinstance(s, str) and s[0] in "vs" and s[1:].isdigit()]
    return Ins(f"{op} {d}, " + ", ".join(str(s) for s in src), kind, rd, [d], lead=lead)

def cvt(d, s0, lead=0.0):
    return valu("v_cvt_pk_bf16_f32", f"v{d}", f"v{s0}", f"v{s0+1}", lead=lead)

class Body:
    def __init__(self, opt):
        self.opt = opt
        self.base = []
        self.nfrag = 0
    def add(self, i):
        self.base.append(i); return i
    def wfrag(self, mat, t, s):
        slot = self.nfrag % self.opt.ring; self.nfrag += 1
        reg = WR0 + 4 * slot
        off = woff(mat, t) + s * 1024
        self.add(Ins(f"ds_read_b128 {rng('a', reg, 4)}, v{VL[off >> 16]} offset:{off & 0xffff}", "dsr",
                     [f"v{VL[off >> 16]}", f"L:{mat}:{t}"], R("a", reg, 4), lead=self.opt.dslead))
        return reg
    def cvt16(self, dst, src, lead=0.0):
        for d in range(8): self.add(cvt(dst + d, src + 2 * d, lead))
    def softmax(self, qt):
        vals = [ST(kt, qt) + r for kt in range(2) for r in range(16)]
        t0 = 7 + 4 * qt
        m0, m1, l0, l1 = (f"v{t0+i}" for i in range(4))
        for ch, m in ((vals[:16], m0), (vals[16:], m1)):
            self.add(valu("v_max3_f32", m, f"v{ch[0]}", f"v{ch[1]}", f"v{ch[2]}"))
            for k in range(3, 15, 2):
                self.add(valu("v_max3_f32", m, m, f"v{ch[k]}", f"v{ch[k+1]}"))
        self.add(valu("v_max3_f32", m0, m0, f"v{vals[15]}", f"v{vals[31]}"))
        self.add(valu("v_max_f32", m0, m0, m1))
        self.add(valu("v_mov_b32", m1, m0))
        self.add(Ins(f"v_permlane32_swap_b32 {m0}, {m1}", "perm", [m0, m1], [m0, m1]))
        self.add(valu("v_max_f32", m0, m0, m1))
        for k, v in enumerate(vals):
            self.add(valu("v_sub_f32", f"v{v}", f"v{v}", m0))
            self.add(valu("v_exp_f32", f"v{v}", f"v{v}", kind="trans"))
            l = l0 if k % 2 == 0 else l1
            if k >= 2:
                if k < 4:
                    self.add(valu("v_add_f32", l, f"v{vals[k-2]}", f"v{v}"))
                else:
                    self.add(valu("v_add_f32", l, l, f"v{v}"))
        self.add(valu("v_add_f32", l0, l0, l1))
        self.add(valu("v_mov_b32", l1, l0))
        self.add(Ins(f"v_permlane32_swap_b32 {l0}, {l1}", "perm", [l0, l1], [l0, l1]))
        self.add(valu("v_add_f32", l0, l0, l1))
        self.add(valu("v_rcp_f32", l0, l0, kind="trans"))
        for kt in range(2):
            for a in range(2):
                for d in range(4):
                    s = ST(kt, qt) + 8 * a + 2 * d
                    self.add(valu("v_mul_f32", f"v{s}", f"v{s}", l0))
                    self.add(valu("v_mul_f32", f"v{s+1}", f"v{s+1}", l0))
                    self.add(cvt(PB(qt, kt, a) + d, s))
    def Sblk(self, t, qt, cb):
        for a in range(2):
            for kt in range(2):
                self.add(mfma(ST(kt, qt), "a", X(kt, 2 * t + a), "v", cb + 4 * a, t == 0 and a == 0, tag=f"S{t}{qt}"))
    def Oblk(self, t, qt):
        oo = ST(t % 2, qt)
        n = 0
        for kt in range(2):
            for a in range(2):
                self.add(mfma(oo, "v", CB(t % 4) + 8 * kt + 4 * a, "v", PB(qt, kt, a), n == 0, tag=f"O{t}{qt}")); n += 1
        ob = OB(self.nob % 2); self.nob += 1
        fl = self.opt.stflags; L = self.opt.stlead
        for d in range(8): self.add(cvt(ob + d, oo + 2 * d, lead=L))
        for d in range(4):
            a, b = f"v{ob+d}", f"v{ob+4+d}"
            self.add(Ins(f"v_permlane16_swap_b32 {a}, {b}", "perm", [a, b], [a, b], lead=L))
        for hf in range(2):
            self.add(Ins(f"buffer_store_dwordx4 {rng('v', ob + 4*hf, 4)}, v{VO}, s[12:15], s{SO[2*qt+hf]} offen offset:{64*t}{fl}",
                         "vst", R("v", ob + 4 * hf, 4) + [f"v{VO}"], [], lead=L))
    def bar(self, tiles, after, extra_reads=(), extra_writes=()):
        rd = [f"D:{m}:{t}:{k}" for m, t in tiles for k in range(3)] + list(extra_reads)
        wr = [f"L:{m}:{t}" for m, t in tiles] + list(extra_writes)
        return self.add(Ins("s_barrier", "bar", rd, wr, after=after))
    def dma(self, mat, t, after, need):
        i = self.add(Ins(f"s_add_u32 m0, s25, {woff(mat, t)}", "salu", list(need), ["m0"], after=after, lead=self.opt.dmalead))
        for k in range(3):
            self.add(Ins(f"buffer_load_dwordx4 v{VD}, s[16:19], m0 offen offset:{1024*k} sc1 lds", "dma", ["m0"],
                         [f"D:{mat}:{t}:{k}"], lead=self.opt.dmalead))
    def pollN(self, after_load, after_check):
        self.add(Ins(f"buffer_load_dword v{VPD}, v{VP}, s[36:39], 0 offen offset:4 sc1", "vld", [], [f"v{VPD}"], after=after_load, lead=100))
        i = Ins(f"v_cmp_ne_u32 vcc, 0, v{VPD}\n  s_cbranch_vccz L_spinN\nL_backN:",
                "valu", [f"v{VPD}"], ["NF"], after=after_check, lead=100)
        self.add(i)

    def build(self):
        opt = self.opt
        self.nob = 0
        SI = opt.sins
        allx = [r for tt in range(2) for s in range(12) for r in R("a", X(tt, s), 4)]
        pend = None
        blk = 0
        lastm = None
        firstm = {}
        for qt in range(2):
            for t in range(6):
                acc = ACC((blk // 2) % 2, blk % 2)
                if blk == 0:
                    self.bar([(0, 0), (0, 1)], None, extra_reads=allx, extra_writes=["XF"])
                if blk == 1:
                    self.bar([(0, 2), (0, 3)], lastm)
                    self.dma(0, 5, firstm[0], ["XF"])
                if blk == 2:
                    self.pollN(firstm[1], lastm)
                    for tn in range(6): self.dma(1, tn, lastm, ["XF", "NF"])
                if blk == 3: self.bar([(0, 4), (0, 5)], lastm)
                if blk == 10: self.bar([(1, tn) for tn in range(6)], lastm)
                for s in range(12):
                    if s == SI and pend is not None:
                        self.flushS(pend); pend = None
                    w = self.wfrag(0, t, s)
                    lastm = self.add(mfma(acc, "a", w, "a", X(qt, s), s == 0, tag=f"T{t}{qt}"))
                    if s == 3: firstm[blk] = lastm
                pend = (t, qt, acc, CB((blk // 2) % 4) + 8 * (blk % 2))
                blk += 1
        osched = {1: [(0, 0)], 2: [(1, 0)], 3: [(2, 0), (0, 1), (1, 1)], 4: [(3, 0), (2, 1), (3, 1)], 5: []}
        for t in range(6):
            for s in range(12):
                if s == SI // 2 + 1 and pend is not None:
                    self.flushS(pend); pend = None
                if s == 5 and t >= 1:
                    for kt in range(2): self.cvt16(CB((t - 1) % 4) + 8 * kt, ACC((t - 1) % 2, kt))
                if s in (5, 8, 11) and t >= 1:
                    lst = osched[t]; k = (5, 8, 11).index(s)
                    if k < len(lst): self.Oblk(*lst[k])
                w = self.wfrag(1, t, s)
                for kt in range(2):
                    self.add(mfma(ACC(t % 2, kt), "a", X(kt, s), "a", w, s == 0, tag=f"Y{t}"))
        self.Oblk(4, 0); self.Oblk(4, 1)
        for kt in range(2): self.cvt16(CB(5 % 4) + 8 * kt, ACC(5 % 2, kt), lead=self.opt.stlead + 5)
        self.Oblk(5, 0); self.Oblk(5, 1)
    def flushS(self, pend):
        t, qt, acc, cb = pend
        self.cvt16(cb, acc)
        self.Sblk(t, qt, cb)
        if t == 5: self.softmax(qt)

def stamp(A, opt, k):
    if opt.stamps:
        A(f"  s_memrealtime s[{56+2*k}:{57+2*k}]")
        A(f"  s_memtime s[{76+2*k}:{77+2*k}]")
        A(f"  s_waitcnt lgkmcnt(0)")

def stamp_out(A, opt):
    if not opt.stamps: return
    for k in range(8): A(f"  v_mov_b32 v{16+k}, s{56+2*k}")
    for k in range(8): A(f"  v_mov_b32 v{24+k}, s{76+2*k}")
    A("  s_lshl_b32 s26, s2, 2\n  s_add_u32 s26, s26, s20\n  s_lshl_b32 s26, s26, 5\n  s_add_u32 s26, s26, 0x100000")
    A("  s_mov_b32 s18, 0x10000000")
    A("  v_mov_b32 v7, 0")
    A("  buffer_store_dwordx4 v[16:19], v7, s[16:19], s26 offen")
    A("  buffer_store_dwordx4 v[20:23], v7, s[16:19], s26 offen offset:16")
    A("  s_add_u32 s26, s26, 0x10000")
    A("  buffer_store_dwordx4 v[24:27], v7, s[16:19], s26 offen")
    A("  buffer_store_dwordx4 v[28:31], v7, s[16:19], s26 offen offset:16")

def poll_loop(A, label, off, sleep=0):
    A(f"{label}:")
    A(f"  buffer_load_dword v{VPD}, v{VP}, s[36:39], 0 offen offset:{off} sc1")
    A("  s_add_u32 s92, s92, 1")
    A("  s_cmp_gt_u32 s92, 50000")
    A(f"  s_cbranch_scc1 {label}_x")
    A("  s_waitcnt vmcnt(0)")
    A(f"  v_cmp_ne_u32 vcc, 0, v{VPD}")
    if sleep:
        A(f"  s_cbranch_vccnz {label}_x")
        A(f"  s_sleep {sleep}")
        A(f"  s_branch {label}")
    else:
        A(f"  s_cbranch_vccz {label}")
    A(f"{label}_x:")
    A("  s_waitcnt vmcnt(0)")

def fold_code(A, opt):
    A("  s_cmp_ge_u32 s2, 36")
    A("  s_cselect_b32 s50, 1, 0")
    A("  s_mul_i32 s51, s50, 36")
    A("  s_sub_u32 s51, s2, s51")
    A("  s_mul_i32 s52, s51, 43")
    A("  s_lshr_b32 s52, s52, 8")
    A("  s_mul_i32 s53, s52, 6")
    A("  s_sub_u32 s53, s51, s53")
    A("  v_and_b32 v9, 0x13, v8")
    A("  v_and_b32 v10, 4, v8")
    A("  v_lshl_or_b32 v9, v10, 1, v9")
    A("  v_and_b32 v10, 8, v8")
    A("  v_lshrrev_b32 v10, 1, v10")
    A("  v_or_b32 v9, v9, v10")
    A("  v_lshrrev_b32 v10, 5, v8")
    A("  s_lshl_b32 s54, s53, 5")
    A("  s_lshl_b32 s55, s52, 5")
    A("  v_add_u32 v11, s54, v9")
    A("  v_mul_u32_u24 v11, 1152, v11")
    A("  v_lshl_add_u32 v11, v10, 4, v11")
    A("  s_mul_i32 s26, s50, 768")
    A("  v_add_u32 v11, s26, v11")
    A("  v_add_u32 v12, s55, v9")
    for s in range(12):
        A(f"  buffer_load_dwordx4 v[{16+4*s}:{19+4*s}], v11, s[28:31], 0 offen offset:{32*s}")
    A("  s_cmp_eq_u32 s50, 1")
    A("  s_cbranch_scc1 L_fold_n")
    A("  v_mul_u32_u24 v13, 1152, v12")
    A("  v_lshl_add_u32 v13, v10, 4, v13")
    for s in range(12):
        A(f"  buffer_load_dwordx4 v[{64+4*s}:{67+4*s}], v13, s[28:31], 0 offen offset:{384+32*s}")
    if opt.headbar: A("  s_barrier")
    A(f"  s_mov_b32 s27, {f32bits(SCALE):#x}")
    A("  s_mul_i32 s26, s52, 12288")
    A(f"  s_sub_u32 s26, {woff(0,0)}, s26")
    A("  s_waitcnt vmcnt(0)")
    A("  s_branch L_fold_mm")
    A("L_fold_n:")
    A("  v_mul_u32_u24 v13, 3072, v10")
    A("  v_lshl_add_u32 v13, v12, 1, v13")
    for half in range(2):
        for s in range(6 * half, 6 * half + 6):
            A(f"  s_mov_b32 s26, {s*6144}")
            for j in range(8):
                A(f"  buffer_load_ushort v{128+(s%6)*8+j}, v13, s[32:35], s26 offen offset:{384*j}")
        A("  s_waitcnt vmcnt(0)")
        for s in range(6 * half, 6 * half + 6):
            for d in range(4):
                b = 128 + (s % 6) * 8 + 2 * d
                A(f"  v_lshl_or_b32 v{64+4*s+d}, v{b+1}, 16, v{b}")
    A("  s_mov_b32 s27, 1.0")
    A("  s_mul_i32 s26, s52, 12288")
    A("L_fold_mm:")
    stamp(A, opt, 1)
    for s in range(12):
        c = "0" if s == 0 else "v[112:127]"
        A(f"  v_mfma_f32_32x32x16_bf16 v[112:127], v[{16+4*s}:{19+4*s}], v[{64+4*s}:{67+4*s}], {c}")
    A("  s_lshl_b32 s54, s53, 11")
    A("  s_add_u32 s26, s26, s54")
    A("  s_lshl_b32 s54, s50, 2")
    A("  v_mov_b32 v13, 0")
    A("  v_mov_b32 v14, 1")
    A("  s_nop 7")
    for r in range(16):
        A(f"  v_mul_f32 v{112+r}, s27, v{112+r}")
    for d in range(8):
        A(f"  v_cvt_pk_bf16_f32 v{16+d}, v{112+2*d}, v{113+2*d}")
    A(f"  buffer_store_dwordx4 v[16:19], v{VD}, s[16:19], s26 offen sc1")
    A(f"  buffer_store_dwordx4 v[20:23], v{VD}, s[16:19], s26 offen offset:1024 sc1")
    A("  s_waitcnt vmcnt(0)")
    stamp(A, opt, 2)
    A("  s_mov_b64 exec, 1")
    A("  buffer_atomic_add v14, v13, s[36:39], s54 offen offset:128 sc0 sc1")
    A("  s_waitcnt vmcnt(0)")
    A("  v_cmp_eq_u32 vcc, 35, v14")
    A("  s_cbranch_vccz L_fold_done")
    A("  buffer_store_dword v14, v13, s[36:39], s54 offen sc1")
    A("L_fold_done:")
    A("  s_mov_b64 exec, -1")

def main_kernel(opt):
    o = []
    A = o.append
    A(f".globl {KN}\n.p2align 8\n.type {KN},@function\n{KN}:")
    stamp(A, opt, 0)
    A("  s_cmp_ge_u32 s2, 256")
    A("  s_cbranch_scc1 L_end")
    A("  s_load_dwordx4 s[4:7], s[0:1], 0")
    A("  s_load_dwordx4 s[40:43], s[0:1], 16")
    A("  s_load_dwordx4 s[52:55], s[0:1], 32")
    A("  v_lshrrev_b32 v7, 6, v0")
    A("  v_and_b32 v8, 63, v0")
    A("  v_readfirstlane_b32 s20, v7")
    A(f"  v_lshlrev_b32 v{VD}, 4, v8")
    A(f"  v_mov_b32 v{VP}, 0")
    A(f"  v_mov_b32 v{VL[0]}, v{VD}")
    A(f"  v_add_u32 v{VL[1]}, 0x10000, v{VD}")
    A(f"  v_add_u32 v{VL[2]}, 0x20000, v{VD}")
    A("  s_mov_b32 s92, 0")
    A("  s_mov_b32 s48, -1")
    A("  s_mov_b32 s49, 15")
    A("  s_mul_i32 s21, s2, 3")
    A("  s_add_u32 s21, s21, s20")
    A("  s_add_u32 s22, s2, 696")
    A("  s_cmp_lt_u32 s2, 72")
    A("  s_cselect_b32 s22, 1000, s22")
    A("  s_cmp_eq_u32 s20, 3")
    A("  s_cselect_b32 s21, s22, s21")
    A("  s_mul_i32 s25, s20, 3072")
    A("  s_waitcnt lgkmcnt(0)")
    A(f"  s_mov_b32 s8, s4\n  s_mov_b32 s9, s5\n  s_mov_b32 s10, {XBYTES}\n  s_mov_b32 s11, 0x00020000")
    A(f"  s_mov_b32 s12, s42\n  s_mov_b32 s13, s43\n  s_mov_b32 s14, {XBYTES}\n  s_mov_b32 s15, 0x00020000")
    A("  s_mov_b32 s16, s54\n  s_mov_b32 s17, s55\n  s_mov_b32 s18, 163840\n  s_mov_b32 s19, 0x00020000")
    A("  s_mov_b32 s28, s6\n  s_mov_b32 s29, s7\n  s_mov_b32 s30, 221184\n  s_mov_b32 s31, 0x00020000")
    A("  s_mov_b32 s32, s40\n  s_mov_b32 s33, s41\n  s_mov_b32 s34, 73728\n  s_mov_b32 s35, 0x00020000")
    A("  s_mov_b32 s36, s52\n  s_mov_b32 s37, s53\n  s_mov_b32 s38, 256\n  s_mov_b32 s39, 0x00020000")
    A("  s_cmp_ge_u32 s21, 784")
    A("  s_cbranch_scc1 L_helper")
    A("  s_mul_hi_u32 s23, s21, 153391690")
    A("  s_mul_i32 s24, s23, 28")
    A("  s_sub_u32 s24, s21, s24")
    A("  s_mul_i32 s23, s23, 688128")
    A("  s_mul_i32 s24, s24, 3072")
    A("  s_add_u32 s23, s23, s24")
    A("  s_mul_i32 s24, s20, 24576")
    for k in range(3):
        A(f"  v_add_u32 v9, {64*k}, v8")
        A("  v_mul_u32_u24 v9, 0xaab, v9")
        A("  v_lshrrev_b32 v9, 17, v9")
        A("  v_xor_b32 v9, v9, v8")
        A(f"  v_lshlrev_b32 v{16+2*k}, 4, v9")
        A(f"  v_xor_b32 v{17+2*k}, 64, v{16+2*k}")
    n = 0
    if opt.headbar:
        A("  s_cmp_ge_u32 s2, 36")
        A("  s_cbranch_scc1 L_nohb")
        A("  s_barrier")
        A("L_nohb:")
    A("  s_mov_b32 s26, s23")
    for r in range(8):
        A(f"  s_add_u32 m0, s24, {3072*r}")
        if r: A("  s_add_u32 s26, s26, 86016")
        else: A("  s_nop 0")
        for k in range(3):
            if n >= opt.xwin: A(f"  s_waitcnt vmcnt({opt.xwin-1})")
            A(f"  buffer_load_dwordx4 v{16+2*k+(r%2)}, s[8:11], s26 offen offset:{1024*k} nt lds")
            n += 1
        if r == 0:
            A("  v_and_b32 v9, 31, v8")
            A("  v_mul_u32_u24 v10, 384, v9")
            A("  v_add_u32 v10, s24, v10")
            A("  v_bfe_u32 v11, v8, 1, 3")
            A("  v_lshrrev_b32 v12, 5, v8")
            A("  v_xor_b32 v11, v11, v12")
            for m in range(4):
                A(f"  v_xor_b32 v13, {2*m}, v11")
                A(f"  v_lshl_add_u32 v{24+m}, v13, 4, v10")
            A("  v_bfe_u32 v9, v8, 3, 1")
            A("  v_mul_u32_u24 v9, 86016, v9")
            A("  v_and_b32 v10, 7, v8")
            A("  v_mul_u32_u24 v10, 384, v10")
            A("  v_bfe_u32 v11, v8, 4, 1")
            A("  v_lshlrev_b32 v11, 5, v11")
            A("  v_lshl_add_u32 v11, v12, 4, v11")
            A(f"  v_add3_u32 v{VO}, v9, v10, v11")
            for q in range(4):
                A(f"  s_add_u32 s{SO[q]}, s23, {172032*q}")
    stamp(A, opt, 1)
    em = Emitter()
    pre = []
    def xread(tt):
        for s in range(12):
            i = Ins(f"ds_read_b128 {rng('a', X(tt, s), 4)}, v{24+s%4} offset:{(s//4)*128 + tt*12288}", "dsr", [], R("a", X(tt, s), 4))
            em.emit(i); pre.append(i)
    A("  s_waitcnt vmcnt(12)")
    xread(0)
    em.raw(Ins("s_waitcnt vmcnt(0) lgkmcnt(0)", "wait")); em.lg = []
    xread(1)
    em.raw(Ins(f"s_cmp_eq_u32 s20, 3\n  s_cbranch_scc1 L_spinM\nL_backM:\n  s_barrier", "wait"))
    if opt.stamps:
        em.raw(Ins("s_memrealtime s[60:61]\n  s_memtime s[80:81]\n  s_waitcnt lgkmcnt(0)", "wait")); em.lg = []
    def dma2(mat, t):
        em.raw(Ins(f"s_add_u32 m0, s25, {woff(mat, t)}", "salu"))
        em.nop(1)
        for k in range(3):
            i = Ins(f"buffer_load_dwordx4 v{VD}, s[16:19], m0 offen offset:{1024*k} sc1 lds", "dma", [],
                    [f"D:{mat}:{t}:{k}"])
            em.emit(i); pre.append(i)
    for t in range(5): dma2(0, t)
    b = Body(opt); b.build()
    log = []
    sched.COST["dma"] = opt.dmacost
    npre = len(em.out)
    stalls = schedule(pre + b.base, em, budget=opt.budget, maxfill=opt.maxfill, lg_extra=opt.lgextra, log=log, prefill=7)
    verify(pre + b.base, [i for k, i in enumerate(em.out) if not (i.kind == "salu" and k < npre)])
    nm = sum(1 for i in em.out if i.kind == "mfma")
    sys.stderr.write(f"instrs {len(em.out)} mfma {nm} forced-cycles {stalls}\n")
    if opt.log:
        for l in log: sys.stderr.write(str(l) + "\n")
    nb = 0
    for i in em.out:
        A("  " + i.text + (f"   ; {i.tag}" if i.tag else ""))
        if opt.stamps and i.kind == "bar":
            if nb in (0, 2, 3):
                A("  s_waitcnt lgkmcnt(0)")
                stamp(A, opt, {0: 3, 2: 4, 3: 5}[nb])
            nb += 1
    if opt.stamps:
        stamp(A, opt, 6)
        A("  s_waitcnt vmcnt(0)")
        stamp(A, opt, 7)
        stamp_out(A, opt)
    A("  s_endpgm")
    poll_loop(A, "L_spinM", 0, opt.sleep)
    A("  s_branch L_backM")
    poll_loop(A, "L_spinN", 4, opt.sleep)
    A("  s_branch L_backN")
    A("L_helper:")
    A("  s_cmp_ge_u32 s2, 72")
    A("  s_cbranch_scc1 L_helper2")
    fold_code(A, opt)
    A("L_helper2:")
    poll_loop(A, "L_hpollM", 0, opt.sleep)
    stamp(A, opt, 3)
    A("  s_barrier")
    def hdma(mat, t):
        A(f"  s_add_u32 m0, s25, {woff(mat, t)}")
        A("  s_nop 0")
        for k in range(3):
            A(f"  buffer_load_dwordx4 v{VD}, s[16:19], m0 offen offset:{1024*k} sc1 lds")
    for t in range(5): hdma(0, t)
    A("  s_waitcnt vmcnt(9)")
    stamp(A, opt, 4)
    A("  s_barrier")
    hdma(0, 5)
    A("  s_waitcnt vmcnt(6)")
    A("  s_barrier")
    poll_loop(A, "L_hpollN", 4, opt.sleep)
    stamp(A, opt, 5)
    for t in range(6): hdma(1, t)
    A("  s_barrier")
    A("  s_waitcnt vmcnt(0)")
    A("  s_barrier")
    stamp(A, opt, 6)
    stamp(A, opt, 7)
    stamp_out(A, opt)
    A("L_end:")
    A("  s_endpgm")
    return "\n".join(o)

def main():
    ap = argparse.ArgumentParser()
    ap.add_argument("--ring", type=int, default=12)
    ap.add_argument("--dslead", type=float, default=6.0)
    ap.add_argument("--stlead", type=float, default=40.0)
    ap.add_argument("--dmalead", type=float, default=100.0)
    ap.add_argument("--dmacost", type=int, default=16)
    ap.add_argument("--sins", type=int, default=6)
    ap.add_argument("--budget", type=int, default=24)
    ap.add_argument("--maxfill", type=int, default=5)
    ap.add_argument("--lgextra", type=int, default=1)
    ap.add_argument("--xwin", type=int, default=10)
    ap.add_argument("--stflags", default="sc1")
    ap.add_argument("--log", action="store_true")
    ap.add_argument("--sleep", type=int, default=0)
    ap.add_argument("--headbar", type=int, default=1)
    ap.add_argument("--stamps", action="store_true")
    opt = ap.parse_args()
    if opt.stflags: opt.stflags = " " + opt.stflags.replace(",", " ")
    print(HDR.rstrip())
    print(f"; @launch grid=(256,1,1) block=(256,1,1) lds=163840")
    print('.amdgcn_target "amdgcn-amd-amdhsa--gfx950"\n.text')
    print(main_kernel(opt))
    print('.section .rodata,"a"')
    print(f""".p2align 6
.amdhsa_kernel {KN}
  .amdhsa_next_free_vgpr {256 + 96 + 4 * opt.ring}
  .amdhsa_next_free_sgpr 96
  .amdhsa_accum_offset 256
  .amdhsa_group_segment_fixed_size 0
  .amdhsa_kernarg_size 48
  .amdhsa_user_sgpr_count 2
  .amdhsa_user_sgpr_kernarg_segment_ptr 1
  .amdhsa_system_sgpr_workgroup_id_x 1
.end_amdhsa_kernel""")

main()
```

```python
import re

def R(kind, lo, n=1):
    return [f"{kind}{i}" for i in range(lo, lo + n)]

def rng(kind, lo, n):
    return f"{kind}[{lo}:{lo+n-1}]" if n > 1 else f"{kind}{lo}"

VALU = ("valu", "trans", "perm")
COST = {"mfma": 8, "valu": 4, "trans": 8, "perm": 4, "dsr": 4, "dsw": 4, "vld": 4, "vst": 4, "dma": 4,
        "salu": 4, "bar": 8, "nop": 4, "wait": 4}

class Ins:
    def __init__(self, text, kind, reads=(), writes=(), srcc=(), after=None, lead=0.0, tag=""):
        self.text = text; self.kind = kind
        self.reads = list(reads); self.writes = list(writes); self.srcc = list(srcc)
        self.after = after
        self.lead = lead
        self.tag = tag
        self.preds = {}
        self.succs = []
        self.pos = None
        self.states = 1
    def __repr__(self):
        return self.text

def hazard(p, c, typ, reg):
    isv = reg[0] in "va" and reg[1:].isdigit()
    if not isv:
        if reg[0] == "s" and reg[1:].isdigit() or reg in ("vcc", "m0"):
            if typ == "RAW":
                if p.kind in VALU and c.kind in ("vld", "vst", "dma"): return 5
                if p.kind in VALU and c.kind in VALU: return 2
                if reg == "m0" and c.kind == "dma": return 1
        return 0
    if typ == "RAW":
        if p.kind in VALU and c.kind == "mfma": return 2
        if p.kind == "mfma":
            if c.kind == "mfma":
                if reg in c.srcc:
                    return 0 if c.srcc == p.writes else 10
                return 12
            return 12
        d = 0
        if p.kind == "trans" and c.kind != "trans": d = 1
        if p.kind in VALU and c.kind == "perm": d = 2
        return d
    if typ == "WAW":
        if p.kind == "mfma" and c.kind != "mfma": return 12
        return 0
    if typ == "WAR":
        if p.kind == "mfma" and reg in p.srcc and c.kind in VALU: return 7
        if p.kind in ("vst", "dsw"):
            return 2
        return 0
    return 0

def build_dag(base):
    lastw = {}; readers = {}
    for i in base:
        def edge(p, typ, r):
            if p is i: return
            d = hazard(p, i, typ, r)
            if p not in i.preds:
                i.preds[p] = d; p.succs.append(i)
            else:
                i.preds[p] = max(i.preds[p], d)
        for r in i.reads:
            if r in lastw: edge(lastw[r], "RAW", r)
        for r in i.writes:
            if r in lastw: edge(lastw[r], "WAW", r)
            for p in readers.get(r, []): edge(p, "WAR", r)
        if i.after is not None:
            if i.after not in i.preds:
                i.preds[i.after] = 0; i.after.succs.append(i)
        for r in i.reads:
            readers.setdefault(r, []).append(i)
        for r in i.writes:
            lastw[r] = i; readers[r] = []

class Emitter:
    def __init__(self):
        self.out = []
        self.state = 0
        self.vm = []
        self.lg = []
    def need(self, ins):
        regs = set(ins.reads) | set(ins.writes)
        vn = ln = None
        for k, op in enumerate(self.vm):
            if op.kind in ("vld", "dma") and regs & set(op.writes): vn = len(self.vm) - 1 - k
        for k, op in enumerate(self.lg):
            if regs & set(op.writes): ln = len(self.lg) - 1 - k
        return vn, ln
    def raw(self, ins):
        ins.pos = self.state
        self.state += ins.states
        self.out.append(ins)
    def emit(self, ins, lg_extra=0):
        vn, ln = self.need(ins)
        cost = 0
        if vn is not None or ln is not None:
            parts = []
            if vn is not None:
                assert vn <= 63
                parts.append(f"vmcnt({vn})"); self.vm = self.vm[len(self.vm) - vn:] if vn else []
            if ln is not None:
                ln = max(0, ln - lg_extra)
                ln = min(ln, 15)
                parts.append(f"lgkmcnt({ln})"); self.lg = self.lg[len(self.lg) - ln:] if ln else []
            self.raw(Ins("s_waitcnt " + " ".join(parts), "wait")); cost += COST["wait"]
        self.raw(ins); cost += COST[ins.kind]
        if ins.kind in ("vld", "vst", "dma"):
            self.vm.append(ins)
            assert len(self.vm) <= 63, "vmcnt overflow"
        if ins.kind in ("dsr", "dsw"):
            self.lg.append(ins)
        return cost
    def nop(self, n):
        while n > 0:
            k = min(n, 16)
            i = Ins(f"s_nop {k-1}", "nop"); i.states = k
            self.raw(i); n -= k

def schedule(base, em, budget=24, maxfill=5, lg_extra=0, maxlg=15, log=None, prefill=0, cooldown={}):
    build_dag(base)
    mf = [i for i in base if i.kind == "mfma" and i.pos is None]
    for k, m in enumerate(mf): m.dl = float(k)
    END = len(mf) + 50.0
    for i in reversed(base):
        if i.kind == "mfma": continue
        dl = END
        for s in i.succs:
            lat = 0.2 + s.preds[i] * 0.25
            dl = min(dl, s.dl - lat)
        i.dl = dl - i.lead
    fill = [i for i in base if i.kind != "mfma" and i.pos is None]
    order = {id(i): k for k, i in enumerate(base)}
    def wait_states(i):
        miss = 0
        for p, d in i.preds.items():
            if p.pos is None: return None
            have = em.state - (p.pos + p.states)
            miss = max(miss, d - have)
        return miss
    cur = [0]; lastk = {}
    def cands(only=None):
        res = []
        for i in fill:
            if only is not None and id(i) not in only: continue
            w = wait_states(i)
            if w is None or w > 0: continue
            if i.kind == "dsr" and len(em.lg) >= maxlg: continue
            if only is None and i.kind in cooldown and cur[0] - lastk.get(i.kind, -99) < cooldown[i.kind]: continue
            res.append(((i.dl, order[id(i)]), i))
        res.sort(key=lambda x: x[0])
        return [i for _, i in res]
    def pick(only=None):
        c = cands(only)
        return c[0] if c else None
    def missing(m):
        seen = set(); st = [m]
        while st:
            x = st.pop()
            for p in x.preds:
                if p.pos is None and id(p) not in seen:
                    seen.add(id(p)); st.append(p)
        return seen
    stalls = 0
    for k, m in enumerate(mf):
        cur[0] = k
        while True:
            w = wait_states(m)
            if w is not None and w <= 0: break
            f = pick(missing(m)) if w is None else None
            if f is None:
                c = [i for i in cands() if i.kind not in ("dma", "bar")]
                f = c[0] if c else None
            if f is not None:
                em.emit(f, lg_extra); fill.remove(f); stalls += COST[f.kind]
                if log is not None: log.append((k, "forced", f.text))
            else:
                if w is None:
                    em.nop(1); stalls += 4
                else:
                    em.nop(w); stalls += 4 * w
                if log is not None: log.append((k, "nop", ""))
        if k == 0 and prefill:
            for _ in range(prefill):
                c = [i for i in cands() if i.kind == "dsr"]
                if not c: break
                em.emit(c[0], lg_extra); fill.remove(c[0])
        c = em.emit(m, lg_extra if k > 2 else 0) - COST["mfma"]
        used = 0; n = 0
        while n < maxfill:
            nxt = 0
            if k + 1 < len(mf):
                vn, ln = em.need(mf[k + 1])
                if vn is not None or ln is not None: nxt = 1
            if n + 1 + nxt > maxfill: break
            f = None
            for cnd in cands():
                if used + COST[cnd.kind] + 4 * nxt <= budget:
                    f = cnd; break
            if f is None: break
            used += em.emit(f, lg_extra); n += 1
            lastk[f.kind] = k
            fill.remove(f)
    cur[0] = 10**6
    cooldown = {}
    while fill:
        f = pick()
        if f is None:
            em.nop(1); continue
        em.emit(f, lg_extra); fill.remove(f)
    return stalls

def verify(base, out):
    def trace(seq):
        lastw = {}; res = {}
        for i in seq:
            res[id(i)] = tuple(id(lastw.get(r)) for r in i.reads)
            for r in i.writes: lastw[r] = i
        return res, {r: id(w) for r, w in lastw.items()}
    a, fa = trace(base); b, fb = trace([i for i in out if i.kind not in ("wait", "nop")])
    for i in base:
        assert a[id(i)] == b[id(i)], f"dataflow changed at {i.text}"
    assert fa == fb
    lastw = {}; readers = {}
    for i in out:
        def chk(p, typ, r):
            d = hazard(p, i, typ, r)
            have = i.pos - (p.pos + p.states)
            assert have >= d, f"hazard {typ} {r}: {p.text} -> {i.text}: have {have} need {d}"
        for r in i.reads:
            if r in lastw: chk(lastw[r], "RAW", r)
        for r in i.writes:
            if r in lastw: chk(lastw[r], "WAW", r)
            for p in readers.get(r, []):
                if p is not i: chk(p, "WAR", r)
        for r in i.reads: readers.setdefault(r, []).append(i)
        for r in i.writes:
            lastw[r] = i; readers[r] = []
```

```python
import sys, struct, argparse
import sched
from sched import *

KN = "standalone__swin_window_attn__vision_kernel"
XBYTES = 19267584
SCALE = (192 ** -0.5) * 1.4426950408889634
def f32bits(x): return struct.unpack("<I", struct.pack("<f", x))[0]
HDR = open("standalone__swin_window_attn__vision.s.ref").read().split("; Override launch")[0]

def woff(mat, t):
    return 90112 + (5 - t) * 12288 if mat == 0 else t * 12288

X = lambda tt, s: (tt * 12 + s) * 4
WR0 = 96
ACC = lambda b, k: 16 + (b * 2 + k) * 16
ST = lambda kt, qt: 80 + (kt * 2 + qt) * 16
CB = lambda i: 144 + 16 * i
PB = lambda qt, kt, a: 208 + ((qt * 2 + kt) * 2 + a) * 4
OB = lambda b: 240 + 8 * b
VO = 1
VP = 2
VL = [3, 4, 5]
VD = 6
VPD = 15
SO = [44, 45, 46, 47]

def mfma(d, ak, a, bk, b, first, tag=""):
    c = "0" if first else rng("v", d, 16)
    rd = R(ak, a, 4) + R(bk, b, 4) + ([] if first else R("v", d, 16))
    return Ins(f"v_mfma_f32_32x32x16_bf16 {rng('v', d, 16)}, {rng(ak, a, 4)}, {rng(bk, b, 4)}, {c}",
               "mfma", rd, R("v", d, 16), srcc=([] if first else R("v", d, 16)), tag=tag)

def valu(op, d, *src, kind="valu", lead=0.0):
    rd = [s for s in src if isinstance(s, str) and s[0] in "vs" and s[1:].isdigit()]
    return Ins(f"{op} {d}, " + ", ".join(str(s) for s in src), kind, rd, [d], lead=lead)

def cvt(d, s0, lead=0.0):
    return valu("v_cvt_pk_bf16_f32", f"v{d}", f"v{s0}", f"v{s0+1}", lead=lead)

class Body:
    def __init__(self, opt):
        self.opt = opt
        self.base = []
        self.nfrag = 0
    def add(self, i):
        self.base.append(i); return i
    def wfrag(self, mat, t, s):
        slot = self.nfrag % self.opt.ring; self.nfrag += 1
        reg = WR0 + 4 * slot
        off = woff(mat, t) + s * 1024
        self.add(Ins(f"ds_read_b128 {rng('a', reg, 4)}, v{VL[off >> 16]} offset:{off & 0xffff}", "dsr",
                     [f"v{VL[off >> 16]}", f"L:{mat}:{t}"], R("a", reg, 4), lead=self.opt.dslead))
        return reg
    def cvt16(self, dst, src, lead=0.0):
        for d in range(8): self.add(cvt(dst + d, src + 2 * d, lead))
    def softmax(self, qt):
        vals = [ST(kt, qt) + r for kt in range(2) for r in range(16)]
        t0 = 7 + 4 * qt
        m0, m1, l0, l1 = (f"v{t0+i}" for i in range(4))
        for ch, m in ((vals[:16], m0), (vals[16:], m1)):
            self.add(valu("v_max3_f32", m, f"v{ch[0]}", f"v{ch[1]}", f"v{ch[2]}"))
            for k in range(3, 15, 2):
                self.add(valu("v_max3_f32", m, m, f"v{ch[k]}", f"v{ch[k+1]}"))
        self.add(valu("v_max3_f32", m0, m0, f"v{vals[15]}", f"v{vals[31]}"))
        self.add(valu("v_max_f32", m0, m0, m1))
        self.add(valu("v_mov_b32", m1, m0))
        self.add(Ins(f"v_permlane32_swap_b32 {m0}, {m1}", "perm", [m0, m1], [m0, m1]))
        self.add(valu("v_max_f32", m0, m0, m1))
        for k, v in enumerate(vals):
            self.add(valu("v_sub_f32", f"v{v}", f"v{v}", m0))
            self.add(valu("v_exp_f32", f"v{v}", f"v{v}", kind="trans"))
            l = l0 if k % 2 == 0 else l1
            if k >= 2:
                if k < 4:
                    self.add(valu("v_add_f32", l, f"v{vals[k-2]}", f"v{v}"))
                else:
                    self.add(valu("v_add_f32", l, l, f"v{v}"))
        self.add(valu("v_add_f32", l0, l0, l1))
        self.add(valu("v_mov_b32", l1, l0))
        self.add(Ins(f"v_permlane32_swap_b32 {l0}, {l1}", "perm", [l0, l1], [l0, l1]))
        self.add(valu("v_add_f32", l0, l0, l1))
        self.add(valu("v_rcp_f32", l0, l0, kind="trans"))
        for kt in range(2):
            for a in range(2):
                for d in range(4):
                    s = ST(kt, qt) + 8 * a + 2 * d
                    self.add(valu("v_mul_f32", f"v{s}", f"v{s}", l0))
                    self.add(valu("v_mul_f32", f"v{s+1}", f"v{s+1}", l0))
                    self.add(cvt(PB(qt, kt, a) + d, s))
    def Sblk(self, t, qt, cb):
        for a in range(2):
            for kt in range(2):
                self.add(mfma(ST(kt, qt), "a", X(kt, 2 * t + a), "v", cb + 4 * a, t == 0 and a == 0, tag=f"S{t}{qt}"))
    def Oblk(self, t, qt):
        oo = ST(t % 2, qt)
        n = 0
        for kt in range(2):
            for a in range(2):
                self.add(mfma(oo, "v", CB(t % 4) + 8 * kt + 4 * a, "v", PB(qt, kt, a), n == 0, tag=f"O{t}{qt}")); n += 1
        ob = OB(self.nob % 2); self.nob += 1
        fl = self.opt.stflags; L = self.opt.stlead
        for d in range(8): self.add(cvt(ob + d, oo + 2 * d, lead=L))
        for d in range(4):
            a, b = f"v{ob+d}", f"v{ob+4+d}"
            self.add(Ins(f"v_permlane16_swap_b32 {a}, {b}", "perm", [a, b], [a, b], lead=L))
        for hf in range(2):
            self.add(Ins(f"buffer_store_dwordx4 {rng('v', ob + 4*hf, 4)}, v{VO}, s[12:15], s{SO[2*qt+hf]} offen offset:{64*t}{fl}",
                         "vst", R("v", ob + 4 * hf, 4) + [f"v{VO}"], [], lead=L))
    def bar(self, tiles, after, extra_reads=(), extra_writes=()):
        rd = [f"D:{m}:{t}:{k}" for m, t in tiles for k in range(3)] + list(extra_reads)
        wr = [f"L:{m}:{t}" for m, t in tiles] + list(extra_writes)
        return self.add(Ins("s_barrier", "bar", rd, wr, after=after))
    def dma(self, mat, t, after, need):
        i = self.add(Ins(f"s_add_u32 m0, s25, {woff(mat, t)}", "salu", list(need), ["m0"], after=after, lead=self.opt.dmalead))
        for k in range(3):
            self.add(Ins(f"buffer_load_dwordx4 v{VD}, s[16:19], m0 offen offset:{1024*k} sc1 lds", "dma", ["m0"],
                         [f"D:{mat}:{t}:{k}"], lead=self.opt.dmalead))
    def pollN(self, after_load, after_check):
        self.add(Ins(f"buffer_load_dword v{VPD}, v{VP}, s[36:39], 0 offen offset:4 sc1", "vld", [], [f"v{VPD}"], after=after_load, lead=100))
        i = Ins(f"v_cmp_ne_u32 vcc, 0, v{VPD}\n  s_cbranch_vccz L_spinN\nL_backN:",
                "valu", [f"v{VPD}"], ["NF"], after=after_check, lead=100)
        self.add(i)

    def build(self):
        opt = self.opt
        self.nob = 0
        SI = opt.sins
        allx = [r for tt in range(2) for s in range(12) for r in R("a", X(tt, s), 4)]
        pend = None
        blk = 0
        lastm = None
        firstm = {}
        for qt in range(2):
            for t in range(6):
                acc = ACC((blk // 2) % 2, blk % 2)
                if blk == 0:
                    self.bar([(0, 0), (0, 1)], None, extra_reads=allx, extra_writes=["XF"])
                if blk == 1:
                    self.bar([(0, 2), (0, 3)], lastm)
                    self.dma(0, 5, firstm[0], ["XF"])
                if blk == 2:
                    self.pollN(firstm[1], lastm)
                    for tn in range(6): self.dma(1, tn, lastm, ["XF", "NF"])
                if blk == 3: self.bar([(0, 4), (0, 5)], lastm)
                if blk == 10: self.bar([(1, tn) for tn in range(6)], lastm)
                for s in range(12):
                    if s == SI and pend is not None:
                        self.flushS(pend); pend = None
                    w = self.wfrag(0, t, s)
                    lastm = self.add(mfma(acc, "a", w, "a", X(qt, s), s == 0, tag=f"T{t}{qt}"))
                    if s == 3: firstm[blk] = lastm
                pend = (t, qt, acc, CB((blk // 2) % 4) + 8 * (blk % 2))
                blk += 1
        osched = {1: [(0, 0)], 2: [(1, 0)], 3: [(2, 0), (0, 1), (1, 1)], 4: [(3, 0), (2, 1), (3, 1)], 5: []}
        for t in range(6):
            for s in range(12):
                if s == SI // 2 + 1 and pend is not None:
                    self.flushS(pend); pend = None
                if s == 5 and t >= 1:
                    for kt in range(2): self.cvt16(CB((t - 1) % 4) + 8 * kt, ACC((t - 1) % 2, kt))
                if s in (5, 8, 11) and t >= 1:
                    lst = osched[t]; k = (5, 8, 11).index(s)
                    if k < len(lst): self.Oblk(*lst[k])
                w = self.wfrag(1, t, s)
                for kt in range(2):
                    self.add(mfma(ACC(t % 2, kt), "a", X(kt, s), "a", w, s == 0, tag=f"Y{t}"))
        self.Oblk(4, 0); self.Oblk(4, 1)
        for kt in range(2): self.cvt16(CB(5 % 4) + 8 * kt, ACC(5 % 2, kt), lead=self.opt.stlead + 5)
        self.Oblk(5, 0); self.Oblk(5, 1)
    def flushS(self, pend):
        t, qt, acc, cb = pend
        self.cvt16(cb, acc)
        self.Sblk(t, qt, cb)
        if t == 5: self.softmax(qt)

_role = ["c"]
def stamp(A, opt, k):
    if opt.stamps and k == opt.probe and _role[0] == "c":
        A(f"  s_memrealtime s[56:57]")
        A(f"  s_waitcnt lgkmcnt(0)")

def stamp_out(A, opt):
    if not opt.stamps or _role[0] != "c": return
    _role[0] = "h"
    A("L_hold:")
    A("  s_memrealtime s[58:59]")
    A("  s_waitcnt lgkmcnt(0)")
    A("  s_sub_u32 s60, s58, s56")
    A("  s_cmp_lt_u32 s60, 3000")
    A("  s_cbranch_scc1 L_hold")

def poll_loop(A, label, off, sleep=0):
    A(f"{label}:")
    A(f"  buffer_load_dword v{VPD}, v{VP}, s[36:39], 0 offen offset:{off} sc1")
    A("  s_add_u32 s92, s92, 1")
    A("  s_cmp_gt_u32 s92, 50000")
    A(f"  s_cbranch_scc1 {label}_x")
    A("  s_waitcnt vmcnt(0)")
    A(f"  v_cmp_ne_u32 vcc, 0, v{VPD}")
    if sleep:
        A(f"  s_cbranch_vccnz {label}_x")
        A(f"  s_sleep {sleep}")
        A(f"  s_branch {label}")
    else:
        A(f"  s_cbranch_vccz {label}")
    A(f"{label}_x:")
    A("  s_waitcnt vmcnt(0)")

def fold_code(A, opt):
    A("  s_cmp_ge_u32 s2, 36")
    A("  s_cselect_b32 s50, 1, 0")
    A("  s_mul_i32 s51, s50, 36")
    A("  s_sub_u32 s51, s2, s51")
    A("  s_mul_i32 s52, s51, 43")
    A("  s_lshr_b32 s52, s52, 8")
    A("  s_mul_i32 s53, s52, 6")
    A("  s_sub_u32 s53, s51, s53")
    A("  v_and_b32 v9, 0x13, v8")
    A("  v_and_b32 v10, 4, v8")
    A("  v_lshl_or_b32 v9, v10, 1, v9")
    A("  v_and_b32 v10, 8, v8")
    A("  v_lshrrev_b32 v10, 1, v10")
    A("  v_or_b32 v9, v9, v10")
    A("  v_lshrrev_b32 v10, 5, v8")
    A("  s_lshl_b32 s54, s53, 5")
    A("  s_lshl_b32 s55, s52, 5")
    A("  v_add_u32 v11, s54, v9")
    A("  v_mul_u32_u24 v11, 1152, v11")
    A("  v_lshl_add_u32 v11, v10, 4, v11")
    A("  s_mul_i32 s26, s50, 768")
    A("  v_add_u32 v11, s26, v11")
    A("  v_add_u32 v12, s55, v9")
    for s in range(12):
        A(f"  buffer_load_dwordx4 v[{16+4*s}:{19+4*s}], v11, s[28:31], 0 offen offset:{32*s}{opt.wf}")
    A("  s_cmp_eq_u32 s50, 1")
    A("  s_cbranch_scc1 L_fold_n")
    A("  v_mul_u32_u24 v13, 1152, v12")
    A("  v_lshl_add_u32 v13, v10, 4, v13")
    for s in range(12):
        A(f"  buffer_load_dwordx4 v[{64+4*s}:{67+4*s}], v13, s[28:31], 0 offen offset:{384+32*s}{opt.wf}")
    stamp(A, opt, 7)
    if opt.headbar: A("  s_barrier")
    A(f"  s_mov_b32 s27, {f32bits(SCALE):#x}")
    A("  s_mul_i32 s26, s52, 12288")
    A(f"  s_sub_u32 s26, {woff(0,0)}, s26")
    A("  s_waitcnt vmcnt(0)")
    A("  s_branch L_fold_mm")
    A("L_fold_n:")
    A("  v_mul_u32_u24 v13, 3072, v10")
    A("  v_lshl_add_u32 v13, v12, 1, v13")
    for half in range(2):
        for s in range(6 * half, 6 * half + 6):
            A(f"  s_mov_b32 s26, {s*6144}")
            for j in range(8):
                A(f"  buffer_load_ushort v{128+(s%6)*8+j}, v13, s[32:35], s26 offen offset:{384*j}")
        A("  s_waitcnt vmcnt(0)")
        for s in range(6 * half, 6 * half + 6):
            for d in range(4):
                b = 128 + (s % 6) * 8 + 2 * d
                A(f"  v_lshl_or_b32 v{64+4*s+d}, v{b+1}, 16, v{b}")
    A("  s_mov_b32 s27, 1.0")
    A("  s_mul_i32 s26, s52, 12288")
    A("L_fold_mm:")
    stamp(A, opt, 1)
    for s in range(12):
        c = "0" if s == 0 else "v[112:127]"
        A(f"  v_mfma_f32_32x32x16_bf16 v[112:127], v[{16+4*s}:{19+4*s}], v[{64+4*s}:{67+4*s}], {c}")
    A("  s_lshl_b32 s54, s53, 11")
    A("  s_add_u32 s26, s26, s54")
    A("  s_lshl_b32 s54, s50, 2")
    A("  v_mov_b32 v13, 0")
    A("  v_mov_b32 v14, 1")
    A("  s_nop 7")
    for r in range(16):
        A(f"  v_mul_f32 v{112+r}, s27, v{112+r}")
    for d in range(8):
        A(f"  v_cvt_pk_bf16_f32 v{16+d}, v{112+2*d}, v{113+2*d}")
    A(f"  buffer_store_dwordx4 v[16:19], v{VD}, s[16:19], s26 offen sc1")
    A(f"  buffer_store_dwordx4 v[20:23], v{VD}, s[16:19], s26 offen offset:1024 sc1")
    A("  s_waitcnt vmcnt(0)")
    stamp(A, opt, 2)
    A("  s_mov_b64 exec, 1")
    A("  buffer_atomic_add v14, v13, s[36:39], s54 offen offset:128 sc0 sc1")
    A("  s_waitcnt vmcnt(0)")
    stamp(A, opt, 6)
    A("  v_cmp_eq_u32 vcc, 35, v14")
    A("  s_cbranch_vccz L_fold_done")
    A("  buffer_store_dword v14, v13, s[36:39], s54 offen sc1")
    A("L_fold_done:")
    A("  s_mov_b64 exec, -1")

def main_kernel(opt):
    o = []
    A = o.append
    A(f".globl {KN}\n.p2align 8\n.type {KN},@function\n{KN}:")
    stamp(A, opt, 0)
    A("  s_cmp_ge_u32 s2, 256")
    A("  s_cbranch_scc1 L_end")
    A("  s_load_dwordx4 s[4:7], s[0:1], 0")
    A("  s_load_dwordx4 s[40:43], s[0:1], 16")
    A("  s_load_dwordx4 s[52:55], s[0:1], 32")
    A("  v_lshrrev_b32 v7, 6, v0")
    A("  v_and_b32 v8, 63, v0")
    A("  v_readfirstlane_b32 s20, v7")
    A(f"  v_lshlrev_b32 v{VD}, 4, v8")
    A(f"  v_mov_b32 v{VP}, 0")
    A(f"  v_mov_b32 v{VL[0]}, v{VD}")
    A(f"  v_add_u32 v{VL[1]}, 0x10000, v{VD}")
    A(f"  v_add_u32 v{VL[2]}, 0x20000, v{VD}")
    A("  s_mov_b32 s92, 0")
    A("  s_mov_b32 s48, -1")
    A("  s_mov_b32 s49, 15")
    A("  s_mul_i32 s21, s2, 3")
    A("  s_add_u32 s21, s21, s20")
    A("  s_add_u32 s22, s2, 696")
    A("  s_cmp_lt_u32 s2, 72")
    A("  s_cselect_b32 s22, 1000, s22")
    A("  s_cmp_eq_u32 s20, 3")
    A("  s_cselect_b32 s21, s22, s21")
    A("  s_mul_i32 s25, s20, 3072")
    A("  s_waitcnt lgkmcnt(0)")
    A(f"  s_mov_b32 s8, s4\n  s_mov_b32 s9, s5\n  s_mov_b32 s10, {XBYTES}\n  s_mov_b32 s11, 0x00020000")
    A(f"  s_mov_b32 s12, s42\n  s_mov_b32 s13, s43\n  s_mov_b32 s14, {XBYTES}\n  s_mov_b32 s15, 0x00020000")
    A("  s_mov_b32 s16, s54\n  s_mov_b32 s17, s55\n  s_mov_b32 s18, 163840\n  s_mov_b32 s19, 0x00020000")
    A("  s_mov_b32 s28, s6\n  s_mov_b32 s29, s7\n  s_mov_b32 s30, 221184\n  s_mov_b32 s31, 0x00020000")
    A("  s_mov_b32 s32, s40\n  s_mov_b32 s33, s41\n  s_mov_b32 s34, 73728\n  s_mov_b32 s35, 0x00020000")
    A("  s_mov_b32 s36, s52\n  s_mov_b32 s37, s53\n  s_mov_b32 s38, 256\n  s_mov_b32 s39, 0x00020000")
    A("  s_cmp_ge_u32 s21, 784")
    A("  s_cbranch_scc1 L_helper")
    A("  s_mul_hi_u32 s23, s21, 153391690")
    A("  s_mul_i32 s24, s23, 28")
    A("  s_sub_u32 s24, s21, s24")
    A("  s_mul_i32 s23, s23, 688128")
    A("  s_mul_i32 s24, s24, 3072")
    A("  s_add_u32 s23, s23, s24")
    A("  s_mul_i32 s24, s20, 24576")
    for k in range(3):
        A(f"  v_add_u32 v9, {64*k}, v8")
        A("  v_mul_u32_u24 v9, 0xaab, v9")
        A("  v_lshrrev_b32 v9, 17, v9")
        A("  v_xor_b32 v9, v9, v8")
        A(f"  v_lshlrev_b32 v{16+2*k}, 4, v9")
        A(f"  v_xor_b32 v{17+2*k}, 64, v{16+2*k}")
    n = 0
    if opt.headbar:
        A("  s_cmp_ge_u32 s2, 36")
        A("  s_cbranch_scc1 L_nohb")
        A("  s_barrier")
        A("L_nohb:")
    A("  s_mov_b32 s26, s23")
    for r in range(8):
        A(f"  s_add_u32 m0, s24, {3072*r}")
        if r: A("  s_add_u32 s26, s26, 86016")
        else: A("  s_nop 0")
        for k in range(3):
            if n >= opt.xwin: A(f"  s_waitcnt vmcnt({opt.xwin-1})")
            if not opt.nox: A(f"  buffer_load_dwordx4 v{16+2*k+(r%2)}, s[8:11], s26 offen offset:{1024*k} nt lds")
            n += 1
        if r == 0:
            A("  v_and_b32 v9, 31, v8")
            A("  v_mul_u32_u24 v10, 384, v9")
            A("  v_add_u32 v10, s24, v10")
            A("  v_bfe_u32 v11, v8, 1, 3")
            A("  v_lshrrev_b32 v12, 5, v8")
            A("  v_xor_b32 v11, v11, v12")
            for m in range(4):
                A(f"  v_xor_b32 v13, {2*m}, v11")
                A(f"  v_lshl_add_u32 v{24+m}, v13, 4, v10")
            A("  v_bfe_u32 v9, v8, 3, 1")
            A("  v_mul_u32_u24 v9, 86016, v9")
            A("  v_and_b32 v10, 7, v8")
            A("  v_mul_u32_u24 v10, 384, v10")
            A("  v_bfe_u32 v11, v8, 4, 1")
            A("  v_lshlrev_b32 v11, 5, v11")
            A("  v_lshl_add_u32 v11, v12, 4, v11")
            A(f"  v_add3_u32 v{VO}, v9, v10, v11")
            for q in range(4):
                A(f"  s_add_u32 s{SO[q]}, s23, {172032*q}")
    stamp(A, opt, 1)
    em = Emitter()
    pre = []
    def xread(tt):
        for s in range(12):
            i = Ins(f"ds_read_b128 {rng('a', X(tt, s), 4)}, v{24+s%4} offset:{(s//4)*128 + tt*12288}", "dsr", [], R("a", X(tt, s), 4))
            em.emit(i); pre.append(i)
    A("  s_waitcnt vmcnt(12)")
    xread(0)
    em.raw(Ins("s_waitcnt vmcnt(0) lgkmcnt(0)", "wait")); em.lg = []
    if opt.stamps and opt.probe == 8:
        em.raw(Ins("s_memrealtime s[56:57]\n  s_waitcnt lgkmcnt(0)", "wait"))
    xread(1)
    em.raw(Ins(f"s_cmp_eq_u32 s20, 3\n  s_cbranch_scc1 L_spinM\nL_backM:\n  s_barrier", "wait"))
    if opt.stamps and opt.probe == 2:
        em.raw(Ins("s_memrealtime s[56:57]\n  s_waitcnt lgkmcnt(0)", "wait")); em.lg = []
    def dma2(mat, t):
        em.raw(Ins(f"s_add_u32 m0, s25, {woff(mat, t)}", "salu"))
        em.nop(1)
        for k in range(3):
            i = Ins(f"buffer_load_dwordx4 v{VD}, s[16:19], m0 offen offset:{1024*k} sc1 lds", "dma", [],
                    [f"D:{mat}:{t}:{k}"])
            em.emit(i); pre.append(i)
    for t in range(5): dma2(0, t)
    b = Body(opt); b.build()
    log = []
    sched.COST["dma"] = opt.dmacost
    npre = len(em.out)
    stalls = schedule(pre + b.base, em, budget=opt.budget, maxfill=opt.maxfill, lg_extra=opt.lgextra, log=log, prefill=7)
    verify(pre + b.base, [i for k, i in enumerate(em.out) if not (i.kind == "salu" and k < npre)])
    nm = sum(1 for i in em.out if i.kind == "mfma")
    sys.stderr.write(f"instrs {len(em.out)} mfma {nm} forced-cycles {stalls}\n")
    if opt.log:
        for l in log: sys.stderr.write(str(l) + "\n")
    nb = 0
    for i in em.out:
        A("  " + i.text + (f"   ; {i.tag}" if i.tag else ""))
        if opt.stamps and i.kind == "bar":
            if nb in (0, 2, 3):
                stamp(A, opt, {0: 3, 2: 4, 3: 5}[nb])
            nb += 1
    if opt.stamps:
        stamp(A, opt, 6)
        A("  s_waitcnt vmcnt(0)")
        stamp(A, opt, 7)
        stamp_out(A, opt)
    A("  s_endpgm")
    poll_loop(A, "L_spinM", 0, opt.sleep)
    A("  s_branch L_backM")
    poll_loop(A, "L_spinN", 4, opt.sleep)
    A("  s_branch L_backN")
    A("L_helper:")
    A("  s_cmp_ge_u32 s2, 72")
    A("  s_cbranch_scc1 L_helper2")
    fold_code(A, opt)
    A("L_helper2:")
    poll_loop(A, "L_hpollM", 0, opt.sleep)
    stamp(A, opt, 3)
    A("  s_barrier")
    def hdma(mat, t):
        A(f"  s_add_u32 m0, s25, {woff(mat, t)}")
        A("  s_nop 0")
        for k in range(3):
            A(f"  buffer_load_dwordx4 v{VD}, s[16:19], m0 offen offset:{1024*k} sc1 lds")
    for t in range(5): hdma(0, t)
    A("  s_waitcnt vmcnt(9)")
    stamp(A, opt, 4)
    A("  s_barrier")
    hdma(0, 5)
    A("  s_waitcnt vmcnt(6)")
    A("  s_barrier")
    poll_loop(A, "L_hpollN", 4, opt.sleep)
    stamp(A, opt, 5)
    for t in range(6): hdma(1, t)
    A("  s_barrier")
    A("  s_waitcnt vmcnt(0)")
    A("  s_barrier")
    stamp_out(A, opt)
    A("L_end:")
    A("  s_endpgm")
    return "\n".join(o)

def main():
    ap = argparse.ArgumentParser()
    ap.add_argument("--ring", type=int, default=12)
    ap.add_argument("--dslead", type=float, default=6.0)
    ap.add_argument("--stlead", type=float, default=40.0)
    ap.add_argument("--dmalead", type=float, default=100.0)
    ap.add_argument("--dmacost", type=int, default=16)
    ap.add_argument("--sins", type=int, default=6)
    ap.add_argument("--budget", type=int, default=24)
    ap.add_argument("--maxfill", type=int, default=5)
    ap.add_argument("--lgextra", type=int, default=1)
    ap.add_argument("--xwin", type=int, default=10)
    ap.add_argument("--stflags", default="sc1")
    ap.add_argument("--log", action="store_true")
    ap.add_argument("--probe", type=int, default=0)
    ap.add_argument("--nox", action="store_true")
    ap.add_argument("--wf", default="")
    ap.add_argument("--sleep", type=int, default=0)
    ap.add_argument("--headbar", type=int, default=1)
    ap.add_argument("--stamps", action="store_true")
    opt = ap.parse_args()
    if opt.wf: opt.wf = " " + opt.wf.replace(",", " ")
    if opt.stflags: opt.stflags = " " + opt.stflags.replace(",", " ")
    print(HDR.rstrip())
    print(f"; @launch grid=(256,1,1) block=(256,1,1) lds=163840")
    print('.amdgcn_target "amdgcn-amd-amdhsa--gfx950"\n.text')
    print(main_kernel(opt))
    print('.section .rodata,"a"')
    print(f""".p2align 6
.amdhsa_kernel {KN}
  .amdhsa_next_free_vgpr {256 + 96 + 4 * opt.ring}
  .amdhsa_next_free_sgpr 96
  .amdhsa_accum_offset 256
  .amdhsa_group_segment_fixed_size 0
  .amdhsa_kernarg_size 48
  .amdhsa_user_sgpr_count 2
  .amdhsa_user_sgpr_kernarg_segment_ptr 1
  .amdhsa_system_sgpr_workgroup_id_x 1
.end_amdhsa_kernel""")

main()
```

```python
import sys, struct, argparse
import sched
from sched import *

KN = "standalone__swin_window_attn__vision_kernel"
XBYTES = 19267584
SCALE = (192 ** -0.5) * 1.4426950408889634
def f32bits(x): return struct.unpack("<I", struct.pack("<f", x))[0]
HDR = open("standalone__swin_window_attn__vision.s.ref").read().split("; Override launch")[0]
WS_STAMP = 0x1000000
WS_FLAG = 0x40000
WS_EPOCH = 0x50000

def woff(mat, t):
    return 90112 + (5 - t) * 12288 if mat == 0 else t * 12288

X = lambda tt, s: (tt * 12 + s) * 4
WR0 = 96
ACC = lambda b, k: 16 + (b * 2 + k) * 16
ST = lambda kt, qt: 80 + (kt * 2 + qt) * 16
CB = lambda i: 144 + 16 * i
PB = lambda qt, kt, a: 208 + ((qt * 2 + kt) * 2 + a) * 4
OB = lambda b: 240 + 8 * b
VO = 1
VL = [3, 4, 5]
VPD = 15
SO = [44, 45, 46, 47]
OSRD = ["s[12:15]", "s[72:75]"]

def mfma(d, ak, a, bk, b, first, tag=""):
    c = "0" if first else rng("v", d, 16)
    rd = R(ak, a, 4) + R(bk, b, 4) + ([] if first else R("v", d, 16))
    return Ins(f"v_mfma_f32_32x32x16_bf16 {rng('v', d, 16)}, {rng(ak, a, 4)}, {rng(bk, b, 4)}, {c}",
               "mfma", rd, R("v", d, 16), srcc=([] if first else R("v", d, 16)), tag=tag)

def valu(op, d, *src, kind="valu", lead=0.0):
    rd = [s for s in src if isinstance(s, str) and s[0] in "vs" and s[1:].isdigit()]
    return Ins(f"{op} {d}, " + ", ".join(str(s) for s in src), kind, rd, [d], lead=lead)

def cvt(d, s0, lead=0.0):
    return valu("v_cvt_pk_bf16_f32", f"v{d}", f"v{s0}", f"v{s0+1}", lead=lead)

class Body:
    def __init__(self, opt):
        self.opt = opt
        self.base = []
        self.nfrag = 0
        self.nob = 0
        self.mf = []
    def add(self, i):
        self.base.append(i); return i
    def wfrag(self, mat, t, s):
        slot = self.nfrag % self.opt.ring; self.nfrag += 1
        reg = WR0 + 4 * slot
        off = woff(mat, t) + s * 1024
        self.add(Ins(f"ds_read_b128 {rng('a', reg, 4)}, v{VL[off >> 16]} offset:{off & 0xffff}", "dsr",
                     [f"v{VL[off >> 16]}", f"L:{mat}:{t}"], R("a", reg, 4), lead=self.opt.dslead))
        return reg
    def cvt16(self, dst, src, lead=0.0):
        for d in range(8): self.add(cvt(dst + d, src + 2 * d, lead))
    def softmax(self, qt):
        vals = [ST(kt, qt) + r for kt in range(2) for r in range(16)]
        t0 = 7 + 4 * qt
        m0, m1, l0, l1 = (f"v{t0+i}" for i in range(4))
        for ch, m in ((vals[:16], m0), (vals[16:], m1)):
            self.add(valu("v_max3_f32", m, f"v{ch[0]}", f"v{ch[1]}", f"v{ch[2]}"))
            for k in range(3, 15, 2):
                self.add(valu("v_max3_f32", m, m, f"v{ch[k]}", f"v{ch[k+1]}"))
        self.add(valu("v_max3_f32", m0, m0, f"v{vals[15]}", f"v{vals[31]}"))
        self.add(valu("v_max_f32", m0, m0, m1))
        self.add(valu("v_mov_b32", m1, m0))
        self.add(Ins(f"v_permlane32_swap_b32 {m0}, {m1}", "perm", [m0, m1], [m0, m1]))
        self.add(valu("v_max_f32", m0, m0, m1))
        for k, v in enumerate(vals):
            self.add(valu("v_sub_f32", f"v{v}", f"v{v}", m0))
            self.add(valu("v_exp_f32", f"v{v}", f"v{v}", kind="trans"))
            l = l0 if k % 2 == 0 else l1
            if k >= 2:
                if k < 4:
                    self.add(valu("v_add_f32", l, f"v{vals[k-2]}", f"v{v}"))
                else:
                    self.add(valu("v_add_f32", l, l, f"v{v}"))
        self.add(valu("v_add_f32", l0, l0, l1))
        self.add(valu("v_mov_b32", l1, l0))
        self.add(Ins(f"v_permlane32_swap_b32 {l0}, {l1}", "perm", [l0, l1], [l0, l1]))
        self.add(valu("v_add_f32", l0, l0, l1))
        self.add(valu("v_rcp_f32", l0, l0, kind="trans"))
        for kt in range(2):
            for a in range(2):
                for d in range(4):
                    s = ST(kt, qt) + 8 * a + 2 * d
                    self.add(valu("v_mul_f32", f"v{s}", f"v{s}", l0))
                    self.add(valu("v_mul_f32", f"v{s+1}", f"v{s+1}", l0))
                    self.add(cvt(PB(qt, kt, a) + d, s))
    def Sblk(self, t, qt, cb):
        for a in range(2):
            for kt in range(2):
                self.add(mfma(ST(kt, qt), "a", X(kt, 2 * t + a), "v", cb + 4 * a, t == 0 and a == 0, tag=f"S{t}{qt}"))
    def Omf(self, t, qt, kt):
        oo = ST(t % 2, qt)
        for a in range(2):
            self.add(mfma(oo, "v", CB(t % 4) + 8 * kt + 4 * a, "v", PB(qt, kt, a), kt == 0 and a == 0, tag=f"O{t}{qt}"))
    def Oout(self, t, qt):
        oo = ST(t % 2, qt)
        ob = OB(self.nob % 2); self.nob += 1
        fl = self.opt.stflags; L = self.opt.stlead
        for d in range(8): self.add(cvt(ob + d, oo + 2 * d, lead=L))
        for d in range(4):
            a, b = f"v{ob+d}", f"v{ob+4+d}"
            self.add(Ins(f"v_permlane16_swap_b32 {a}, {b}", "perm", [a, b], [a, b], lead=L))
        for hf in range(2):
            if self.opt.nostore: continue
            self.add(Ins(f"buffer_store_dwordx4 {rng('v', ob + 4*hf, 4)}, v{VO}, {OSRD[qt]}, s{SO[2*qt+hf]} offen offset:{64*t}{fl}",
                         "vst", R("v", ob + 4 * hf, 4) + [f"v{VO}"], [], lead=L))
    def Oblk(self, t, qt):
        self.Omf(t, qt, 0); self.Omf(t, qt, 1); self.Oout(t, qt)
    def bar(self, tiles, after, text="s_barrier"):
        return self.add(Ins(text, "bar", [], [f"L:{m}:{t}" for m, t in tiles], after=after))
    def flushS(self, pend):
        t, qt, acc, cb = pend
        self.cvt16(cb, acc)
        self.Sblk(t, qt, cb)
        if t == 5: self.softmax(qt)

    def build(self, nq):
        opt = self.opt
        SI = opt.sins
        pend = None
        blk = 0
        lastm = None
        allN = [(1, tn) for tn in range(6)]
        for qt in range(nq):
            for t in range(6):
                acc = ACC((blk // 2) % 2, blk % 2)
                if blk == 1: self.bar([(0, 1)], self.mf[opt.b1at])
                if blk == 2: self.bar([(0, 2), (0, 3)], self.mf[opt.b2at])
                if blk == 3: self.bar([(0, 4), (0, 5)], lastm)
                if blk == opt.b4blk: self.bar(allN, lastm, "s_waitcnt vmcnt(0)\n  s_barrier")
                for s in range(12):
                    if s == SI and pend is not None:
                        self.flushS(pend); pend = None
                    w = self.wfrag(0, t, s)
                    lastm = self.add(mfma(acc, "a", w, "a", X(qt, s), s == 0, tag=f"T{t}{qt}"))
                    self.mf.append(lastm)
                    if blk == 6 and s == 0: self.join = lastm
                pend = (t, qt, acc, CB((blk // 2) % 4) + 8 * (blk % 2))
                blk += 1
        if nq == 2:
            pos = {(1,4): [(0,0)], (2,4): [(1,0)], (2,8): [(0,1)], (3,0): [(1,1)], (3,4): [(2,0)], (3,9): [(2,1)],
                   (4,4): [(3,0)], (4,9): [(3,1)], (5,4): [(4,0)], (6,0): [(4,1)]}
        else:
            pos = {(2,8): [(0,0)], (3,0): [(1,0)], (3,6): [(2,0)], (4,4): [(3,0)], (6,0): [(4,0)]}
        yb = (blk // 2) % 2
        if nq == 1: yb = 1
        for t in range(6):
            steps = [(s, None) for s in range(12)] if t < 5 else [(s, 0) for s in range(12)] + [(s, 1) for s in range(12)]
            for n, (s, only) in enumerate(steps):
                p = n if t < 5 else n // 2 if n % 2 == 0 else -1
                if p == SI // 2 + 1 and pend is not None:
                    self.flushS(pend); pend = None
                if p == 4 and t >= 1:
                    for kt in range(2): self.cvt16(CB((t - 1) % 4) + 8 * kt, ACC((t - 1 + yb) % 2, kt))
                for ob in pos.get((t, p), []): self.Oblk(*ob)
                w = self.wfrag(1, t, s)
                for kt in range(2):
                    if only is None or only == kt:
                        self.add(mfma(ACC((t + yb) % 2, kt), "a", X(kt, s), "a", w, s == 0, tag=f"Y{t}"))
        L = self.opt.stlead + 5
        self.cvt16(CB(5 % 4), ACC((5 + yb) % 2, 0), lead=L)
        for ob in pos.get((6, 0), []): self.Oblk(*ob)
        for qt in range(nq): self.Omf(5, qt, 0)
        self.cvt16(CB(5 % 4) + 8, ACC((5 + yb) % 2, 1), lead=L)
        for qt in range(nq):
            self.Omf(5, qt, 1)
        for qt in range(nq):
            self.Oout(5, qt)

def stamp(A, opt, k):
    if opt.stamps:
        A(f"  s_memrealtime s[{56+2*k}:{57+2*k}]")
        A(f"  s_memtime s[{76+2*k}:{77+2*k}]")
        A(f"  s_waitcnt lgkmcnt(0)")

def stamp_out(A, opt):
    if not opt.stamps: return
    for k in range(8): A(f"  v_mov_b32 v{16+k}, s{56+2*k}")
    for k in range(8): A(f"  v_mov_b32 v{24+k}, s{76+2*k}")
    A(f"  s_lshl_b32 s26, s2, 2\n  s_add_u32 s26, s26, s20\n  s_lshl_b32 s26, s26, 5\n  s_add_u32 s26, s26, {WS_STAMP}")
    A("  s_mov_b32 s18, 0x10000000")
    A("  v_mov_b32 v7, 0")
    A("  buffer_store_dwordx4 v[16:19], v7, s[16:19], s26 offen")
    A("  buffer_store_dwordx4 v[20:23], v7, s[16:19], s26 offen offset:16")
    A("  s_add_u32 s26, s26, 0x10000")
    A("  buffer_store_dwordx4 v[24:27], v7, s[16:19], s26 offen")
    A("  buffer_store_dwordx4 v[28:31], v7, s[16:19], s26 offen offset:16")

def bound(A, label):
    A("  s_add_u32 s92, s92, 1")
    A("  s_cmp_gt_u32 s92, 50000")
    A(f"  s_cbranch_scc1 {label}_x")

def spin_nonce(A, label):
    A(f"{label}:")
    A("  buffer_load_dwordx2 v[14:15], off, s[36:39], 0 sc1")
    bound(A, label)
    A("  s_waitcnt vmcnt(0)")
    A("  v_cmp_eq_u32 vcc, 0, v14")
    A(f"  s_cbranch_vccnz {label}")
    A(f"{label}_x:")

def spin_flags(A, label, off, masklo, maskhi, sleep):
    A(f"{label}:")
    if sleep: A(f"  s_sleep {sleep}")
    A(f"  buffer_load_dwordx2 v[12:13], v2, s[16:19], s93 offen offset:0 sc1" if off == 0 else
      f"  buffer_load_dwordx2 v[12:13], v2, s[16:19], s94 offen offset:0 sc1")
    bound(A, label)
    A("  s_waitcnt vmcnt(0)")
    A("  v_cmp_ne_u64 vcc, v[12:13], v[14:15]")
    if maskhi == 0:
        A("  s_nop 1")
        A(f"  s_and_b32 s26, vcc_lo, {masklo:#x}")
        A(f"  s_cbranch_scc1 {label}")
    else:
        A(f"  s_cbranch_vccnz {label}")
    A(f"{label}_x:")

def fold(A, opt):
    A("  s_cmp_ge_u32 s2, 36")
    A("  s_cselect_b32 s50, 1, 0")
    A("  s_cselect_b32 s51, 36, 0")
    A("  s_sub_u32 s51, s2, s51")
    A("  s_mul_i32 s52, s51, 43")
    A("  s_lshr_b32 s52, s52, 8")
    A("  s_mul_i32 s53, s52, 6")
    A("  s_sub_u32 s53, s51, s53")
    A("  v_and_b32 v9, 0x13, v8")
    A("  v_and_b32 v10, 4, v8")
    A("  v_lshl_or_b32 v9, v10, 1, v9")
    A("  v_and_b32 v10, 8, v8")
    A("  v_lshrrev_b32 v10, 1, v10")
    A("  v_or_b32 v9, v9, v10")
    A("  v_lshrrev_b32 v10, 5, v8")
    A("  v_mul_u32_u24 v11, 1152, v9")
    A("  v_lshl_add_u32 v11, v10, 4, v11")
    A("  s_mul_i32 s54, s53, 36864")
    A("  s_mul_i32 s55, s50, 768")
    A("  s_add_u32 s54, s54, s55")
    A("  s_mul_i32 s55, s52, 36864")
    A("  s_waitcnt lgkmcnt(0)")
    A("  s_mov_b64 s[28:29], s[6:7]\n  s_mov_b64 s[32:33], s[40:41]")
    A("  s_cmp_eq_u32 s50, 1")
    A("  s_cbranch_scc1 L_fold_n")
    for s in range(12):
        A(f"  buffer_load_dwordx4 v[{16+4*s}:{19+4*s}], v11, s[28:31], s54 offen offset:{32*s}")
        A(f"  buffer_load_dwordx4 v[{64+4*s}:{67+4*s}], v11, s[28:31], s55 offen offset:{384+32*s}")
    stamp(A, opt, 7)
    A("  s_barrier")
    A(f"  s_mov_b32 s27, {f32bits(SCALE):#x}")
    A("  s_mul_i32 s26, s52, 12288")
    A(f"  s_sub_u32 s26, {woff(0,0)}, s26")
    for s in range(12):
        c = "0" if s == 0 else "v[112:127]"
        A(f"  s_waitcnt vmcnt({22-2*s})")
        A(f"  v_mfma_f32_32x32x16_bf16 v[112:127], v[{16+4*s}:{19+4*s}], v[{64+4*s}:{67+4*s}], {c}")
    A("  s_branch L_fold_fin")
    A("L_fold_n:")
    A("  v_lshrrev_b32 v12, 2, v8")
    A("  v_mul_u32_u24 v12, 384, v12")
    A("  v_and_b32 v13, 3, v8")
    A("  v_lshl_add_u32 v12, v13, 4, v12")
    A("  s_lshl_b32 s55, s52, 6")
    for s in range(12):
        A(f"  s_mov_b32 m0, {73728 + 1024*s}")
        A(f"  s_add_u32 s26, s55, {6144*s}")
        A(f"  buffer_load_dwordx4 v12, s[32:35], s26 offen lds")
    for s in range(12):
        A(f"  buffer_load_dwordx4 v[{16+4*s}:{19+4*s}], v11, s[28:31], s54 offen offset:{32*s}")
    stamp(A, opt, 7)
    A("  s_barrier")
    A("  v_bfe_u32 v12, v8, 2, 2")
    A("  v_lshl_add_u32 v12, v10, 3, v12")
    A("  v_lshlrev_b32 v12, 6, v12")
    A("  v_bfe_u32 v13, v8, 4, 1")
    A("  v_lshl_add_u32 v12, v13, 5, v12")
    A("  v_and_b32 v13, 1, v8")
    A("  v_lshl_add_u32 v12, v13, 4, v12")
    A("  v_bfe_u32 v13, v8, 1, 1")
    A("  v_lshl_add_u32 v12, v13, 3, v12")
    A("  v_add_u32 v12, 73728, v12")
    A("  s_mov_b32 s27, 1.0")
    A("  s_mul_i32 s26, s52, 12288")
    A("  s_waitcnt vmcnt(12)")
    for s in range(12):
        for jj in range(2):
            A(f"  ds_read_b64_tr_b16 v[{64+4*s+2*jj}:{65+4*s+2*jj}], v12 offset:{1024*s + 256*jj}")
        if s == 6: A("  s_waitcnt lgkmcnt(0)")
    A("  s_waitcnt vmcnt(0) lgkmcnt(0)")
    for s in range(12):
        c = "0" if s == 0 else "v[112:127]"
        A(f"  v_mfma_f32_32x32x16_bf16 v[112:127], v[{16+4*s}:{19+4*s}], v[{64+4*s}:{67+4*s}], {c}")
    A("L_fold_fin:")
    stamp(A, opt, 1)
    A("  s_lshl_b32 s54, s53, 11")
    A("  s_add_u32 s26, s26, s54")
    A("  s_lshl_b32 s54, s2, 7")
    A(f"  s_add_u32 s54, s54, {WS_FLAG}")
    A("  s_nop 8")
    for r in range(16):
        A(f"  v_mul_f32 v{112+r}, s27, v{112+r}")
    for d in range(8):
        A(f"  v_cvt_pk_bf16_f32 v{16+d}, v{112+2*d}, v{113+2*d}")
    A(f"  buffer_store_dwordx4 v[16:19], v{VL[0]}, s[16:19], s26 offen sc1")
    A(f"  buffer_store_dwordx4 v[20:23], v{VL[0]}, s[16:19], s26 offen offset:1024 sc1")
    spin_nonce(A, "L_fnonce")
    A("  s_waitcnt vmcnt(0)")
    stamp(A, opt, 2)
    A("  s_mov_b64 exec, 1")
    A("  buffer_store_dwordx2 v[14:15], off, s[16:19], s54 sc1")
    A("  s_mov_b64 exec, -1")
    A("  s_barrier")
    stamp(A, opt, 6)

def emit_body(A, opt, nq, em, pre, stmap):
    b = Body(opt); b.build(nq)
    log = []
    sched.COST["vst"] = opt.vstcost
    stalls = schedule(pre + b.base, em, budget=opt.budget, maxfill=opt.maxfill, lg_extra=opt.lgextra, log=log,
                      prefill=7, cooldown={'vst': opt.stcool})
    verify(pre + b.base, em.out)
    nm = sum(1 for i in em.out if i.kind == "mfma")
    sys.stderr.write(f"body{nq}: instrs {len(em.out)} mfma {nm} forced-cycles {stalls}\n")
    if opt.log:
        for l in log: sys.stderr.write(str(l) + "\n")
    ji = em.out.index(b.join)
    if em.out[ji - 1].kind == "wait": ji -= 1
    live = []
    for k, i in enumerate(em.out[:ji]):
        if i.kind != "dsr": continue
        w = set(i.writes)
        later_w = any(j.kind == "dsr" and set(j.writes) & w for j in em.out[k + 1:ji])
        used_before = any(j.kind == "mfma" and set(j.reads) & w for j in em.out[k + 1:ji])
        if not later_w and not used_before: live.append(i.text)
    opt.join_reads = live
    nb = 0
    for k, i in enumerate(em.out):
        if k == ji: A("L_join:")
        A("  " + i.text + (f"   ; {i.tag}" if i.tag else ""))
        if opt.stamps and i.kind == "bar":
            if nb in stmap:
                A("  s_waitcnt lgkmcnt(0)")
                stamp(A, opt, stmap[nb])
            nb += 1
    if opt.stamps:
        stamp(A, opt, 6)
        A("  s_waitcnt vmcnt(0)")
        stamp(A, opt, 7)
        stamp_out(A, opt)
    A("  s_endpgm")

def main_kernel(opt):
    o = []
    A = o.append
    A(f".globl {KN}\n.p2align 8\n.type {KN},@function\n{KN}:")
    stamp(A, opt, 0)
    A("  s_load_dwordx4 s[4:7], s[0:1], 0")
    A("  s_load_dwordx4 s[40:43], s[0:1], 16")
    A("  s_load_dwordx4 s[52:55], s[0:1], 32")
    A("  s_cmp_ge_u32 s2, 256")
    A("  s_cbranch_scc1 L_end")
    A("  v_lshrrev_b32 v7, 6, v0")
    A("  v_and_b32 v8, 63, v0")
    A("  v_readfirstlane_b32 s20, v7")
    A(f"  v_lshlrev_b32 v{VL[0]}, 4, v8")
    A(f"  v_mov_b32 v{VO}, 0")
    A("  s_mov_b32 s92, 0")
    A(f"  s_mov_b32 s10, {XBYTES}\n  s_mov_b32 s11, 0x00020000")
    A(f"  s_mov_b32 s14, {XBYTES}\n  s_mov_b32 s15, 0x00020000")
    A("  s_mov_b32 s18, 0x60000\n  s_mov_b32 s19, 0x00020000")
    A(f"  s_mov_b32 s74, {XBYTES}\n  s_mov_b32 s75, 0x00020000")
    A("  s_mov_b32 s30, 221184\n  s_mov_b32 s31, 0x00020000")
    A("  s_mov_b32 s34, 73728\n  s_mov_b32 s35, 0x00020000")
    A("  s_mov_b32 s38, 256\n  s_mov_b32 s39, 0x00020000")
    A("  s_mul_i32 s21, s2, 3")
    A("  s_add_u32 s21, s21, s20")
    A("  s_add_u32 s22, s2, 1312")
    A("  s_and_b32 s25, s22, 1")
    A("  s_lshr_b32 s22, s22, 1")
    A("  s_cmp_eq_u32 s20, 3")
    A("  s_cselect_b32 s21, s22, s21")
    A("  s_cselect_b32 s25, s25, 0")
    A("  s_cselect_b32 s14, 0, s14")
    A("  s_cselect_b32 s22, s2, 255")
    A("  s_waitcnt lgkmcnt(0)")
    A("  s_mov_b64 s[16:17], s[54:55]\n  s_mov_b64 s[36:37], s[52:53]\n  s_mov_b64 s[12:13], s[42:43]\n  s_mov_b64 s[72:73], s[42:43]")
    A("  s_cmp_ge_u32 s22, 224")
    A("  s_cbranch_scc1 L_window")
    A("  s_cmp_ge_u32 s2, 72")
    A("  s_cbranch_scc1 L_pref")
    fold(A, opt)
    A("  s_branch L_loader")
    A("L_pref:")
    if opt.pref:
        A("  s_getpc_b64 s[48:49]")
        A("L_pc:")
        A(f"  s_sub_u32 s48, s48, L_pc-{KN}")
        A("  s_subb_u32 s49, s49, 0")
        A("  v_lshlrev_b32 v9, 7, v8")
        A("  v_add_u32 v10, 0x2000, v9")
        A("  v_add_u32 v11, 0x4000, v9")
        A("  v_add_u32 v12, 0x6000, v9")
        A(f"  v_min_u32 v12, L_last-{KN}, v12")
        A(f"  v_min_u32 v11, L_last-{KN}, v11")
        A(f"  v_min_u32 v10, L_last-{KN}, v10")
        A("  global_load_dword v16, v9, s[48:49]")
        A("  global_load_dword v17, v10, s[48:49]")
        A("  global_load_dword v18, v11, s[48:49]")
        A("  global_load_dword v19, v12, s[48:49]")
    A("L_loader:")
    A("  v_min_u32 v2, 35, v8")
    A("  v_lshlrev_b32 v2, 7, v2")
    A(f"  s_mov_b32 s93, {WS_FLAG}")
    A(f"  s_mov_b32 s94, {WS_FLAG + 36*128}")
    spin_nonce(A, "L_lnonce")
    spin_flags(A, "L_pollA", 0, 0xfff, 0, opt.sleep)
    stamp(A, opt, 3)
    def hdma(mat, t):
        for c in range(3):
            A(f"  s_mov_b32 m0, {woff(mat, t) + 4096*c}")
            A("  s_nop 0")
            for k in range(4):
                A(f"  buffer_load_dwordx4 v{VL[0]}, s[16:19], m0 offen offset:{1024*k} sc1 lds")
    hdma(0, 0); hdma(0, 1)
    A("  s_cbranch_vccz L_pollB_x")
    spin_flags(A, "L_pollB", 0, 0xffffffff, 15, opt.sleep)
    hdma(0, 2)
    A("  s_waitcnt vmcnt(24)")
    stamp(A, opt, 4)
    A("  s_barrier")
    hdma(0, 3)
    A("  s_waitcnt vmcnt(24)")
    A("  s_barrier")
    hdma(0, 4)
    A("  s_waitcnt vmcnt(12)")
    A("  s_barrier")
    hdma(0, 5)
    spin_flags(A, "L_pollN", 1, 0xffffffff, 15, opt.sleep)
    A("  s_waitcnt vmcnt(0)")
    for t in range(2): hdma(1, t)
    A("  s_barrier")
    for t in range(2, 6):
        if t == 5: A("  s_waitcnt vmcnt(48)")
        hdma(1, t)
    stamp(A, opt, 5)
    A("  s_cmp_ge_u32 s2, 224")
    A("  s_cbranch_scc1 L_late")
    A("  s_waitcnt vmcnt(0)")
    A("  s_barrier")
    stamp_out(A, opt)
    A("L_end:")
    A("  s_endpgm")
    A("L_window:")
    A("  s_mov_b64 s[8:9], s[4:5]")
    A("  s_mul_hi_u32 s23, s21, 153391690")
    A("  s_mul_i32 s24, s23, 28")
    A("  s_sub_u32 s24, s21, s24")
    A("  s_mul_i32 s23, s23, 688128")
    A("  s_mul_i32 s24, s24, 3072")
    A("  s_add_u32 s23, s23, s24")
    A("  s_mul_i32 s25, s25, 344064")
    A(f"  s_add_u32 s{SO[0]}, s23, s25")
    A(f"  s_add_u32 s{SO[2]}, s23, 344064")
    A(f"  s_sub_u32 s{SO[2]}, s{SO[2]}, s25")
    A("  s_mul_i32 s24, s20, 24576")
    for k in range(3):
        A(f"  v_add_u32 v9, {64*k}, v8")
        A("  v_mul_u32_u24 v9, 0xaab, v9")
        A("  v_lshrrev_b32 v9, 17, v9")
        A("  v_xor_b32 v9, v9, v8")
        A(f"  v_lshlrev_b32 v{16+2*k}, 4, v9")
        A(f"  v_xor_b32 v{17+2*k}, 64, v{16+2*k}")
    A("  s_cmp_ge_u32 s2, 72")
    A("  s_cbranch_scc1 L_nobh")
    A("  s_cmp_lg_u32 s21, 0")
    A("  s_cbranch_scc1 L_bh")
    A(f"  s_mov_b32 s26, {WS_EPOCH}")
    if opt.clock:
        A("  s_memrealtime s[48:49]")
        A("  s_barrier")
        A("  s_waitcnt lgkmcnt(0)")
        A("  v_mov_b32 v14, s48")
        A("  v_mov_b32 v15, s49")
    else:
        A("  buffer_load_dwordx2 v[14:15], off, s[16:19], s26 sc1")
        A("  s_barrier")
        A("  s_waitcnt vmcnt(0)")
        A("  v_add_co_u32 v14, vcc, 2, v14")
        A("  s_nop 1")
        A("  v_addc_co_u32 v15, vcc, 0, v15, vcc")
    A("  v_or_b32 v14, 1, v14")
    A("  s_mov_b64 exec, 1")
    A("  buffer_store_dwordx2 v[14:15], off, s[36:39], 0 sc1")
    if not opt.clock: A("  buffer_store_dwordx2 v[14:15], off, s[16:19], s26 sc1")
    A("  s_mov_b64 exec, -1")
    A("  s_waitcnt vmcnt(0)")
    A("  s_branch L_nobh")
    A("L_bh:")
    A("  s_barrier")
    A("L_nobh:")
    n = 0
    for r in range(8):
        A(f"  s_add_u32 m0, s24, {3072*r}")
        if r % 4: A("  s_add_u32 s26, s26, 86016")
        else: A(f"  s_mov_b32 s26, s{SO[r // 2]}")
        for k in range(3):
            if n == opt.xearly:
                A("  s_cmp_ge_u32 s2, 72")
                A("  s_cbranch_scc1 L_nobp")
                A("  s_barrier")
                A("L_nobp:")
            if n >= opt.xwin: A(f"  s_waitcnt vmcnt({opt.xwin-1})")
            A(f"  buffer_load_dwordx4 v{16+2*k+(r%2)}, s[8:11], s26 offen offset:{1024*k}{opt.xf} lds")
            n += 1
        if r == 1:
            A(f"  v_add_u32 v{VL[1]}, 0x10000, v{VL[0]}")
            A(f"  v_add_u32 v{VL[2]}, 0x20000, v{VL[0]}")
            A("  v_and_b32 v9, 31, v8")
            A("  v_mul_u32_u24 v10, 384, v9")
            A("  v_add_u32 v10, s24, v10")
            A("  v_bfe_u32 v11, v8, 1, 3")
            A("  v_lshrrev_b32 v12, 5, v8")
            A("  v_xor_b32 v11, v11, v12")
            for m in range(4):
                A(f"  v_xor_b32 v13, {2*m}, v11")
                A(f"  v_lshl_add_u32 v{24+m}, v13, 4, v10")
            A("  v_bfe_u32 v9, v8, 3, 1")
            A("  v_mul_u32_u24 v9, 86016, v9")
            A("  v_and_b32 v10, 7, v8")
            A("  v_mul_u32_u24 v10, 384, v10")
            A("  v_bfe_u32 v11, v8, 4, 1")
            A("  v_lshlrev_b32 v11, 5, v11")
            A("  v_lshl_add_u32 v11, v12, 4, v11")
            A(f"  v_add3_u32 v{VO}, v9, v10, v11")
            A(f"  s_add_u32 s{SO[1]}, s{SO[0]}, 172032")
            A(f"  s_add_u32 s{SO[3]}, s{SO[2]}, 172032")
    stamp(A, opt, 1)
    for tt in range(2):
        A(f"  s_waitcnt vmcnt({12 - 12*tt}) lgkmcnt(0)")
        for s in range(12):
            A(f"  ds_read_b128 {rng('a', X(tt, s), 4)}, v{24+s%4} offset:{(s//4)*128 + tt*12288}")
    A("  s_waitcnt lgkmcnt(0)")
    stamp(A, opt, 2)
    A("  s_cmp_eq_u32 s20, 3")
    A("  s_cbranch_scc1 L_loader")
    A("  s_barrier")
    stamp(A, opt, 3)
    A("L_bodyA:")
    emit_body(A, opt, 2, Emitter(), [], {2: 4, 3: 5})
    A("L_late:")
    for t in opt.join_reads: A("  " + t)
    A("  s_waitcnt lgkmcnt(0)")
    A("  s_branch L_join")
    A("L_last:")
    A("  s_endpgm")
    return "\n".join(o)

def main():
    ap = argparse.ArgumentParser()
    ap.add_argument("--ring", type=int, default=12)
    ap.add_argument("--dslead", type=float, default=6.0)
    ap.add_argument("--stlead", type=float, default=40.0)
    ap.add_argument("--vstcost", type=int, default=4)
    ap.add_argument("--stcool", type=int, default=3)
    ap.add_argument("--sins", type=int, default=6)
    ap.add_argument("--b4blk", type=int, default=9)
    ap.add_argument("--b1at", type=int, default=5)
    ap.add_argument("--b2at", type=int, default=13)
    ap.add_argument("--clock", type=int, default=0)
    ap.add_argument("--budget", type=int, default=24)
    ap.add_argument("--maxfill", type=int, default=5)
    ap.add_argument("--lgextra", type=int, default=1)
    ap.add_argument("--xwin", type=int, default=10)
    ap.add_argument("--xearly", type=int, default=9)
    ap.add_argument("--sleep", type=int, default=0)
    ap.add_argument("--pref", type=int, default=1)
    ap.add_argument("--stflags", default="sc1")
    ap.add_argument("--xf", default="nt")
    ap.add_argument("--log", action="store_true")
    ap.add_argument("--nostore", action="store_true")
    ap.add_argument("--stamps", action="store_true")
    opt = ap.parse_args()
    if opt.stflags: opt.stflags = " " + opt.stflags.replace(",", " ")
    if opt.xf: opt.xf = " " + opt.xf.replace(",", " ")
    print(HDR.rstrip())
    print(f"; @launch grid=(256,1,1) block=(256,1,1) lds=163840")
    print('.amdgcn_target "amdgcn-amd-amdhsa--gfx950"\n.text')
    print(main_kernel(opt))
    print('.section .rodata,"a"')
    print(f""".p2align 6
.amdhsa_kernel {KN}
  .amdhsa_next_free_vgpr {256 + 96 + 4 * opt.ring}
  .amdhsa_next_free_sgpr 96
  .amdhsa_accum_offset 256
  .amdhsa_group_segment_fixed_size 0
  .amdhsa_kernarg_size 48
  .amdhsa_user_sgpr_count 2
  .amdhsa_user_sgpr_kernarg_segment_ptr 1
  .amdhsa_system_sgpr_workgroup_id_x 1
.end_amdhsa_kernel""")

main()
```

```python
import sys, struct, argparse
import sched
from sched import *

KN = "standalone__swin_window_attn__vision_kernel"
XBYTES = 19267584
SCALE = (192 ** -0.5) * 1.4426950408889634
def f32bits(x): return struct.unpack("<I", struct.pack("<f", x))[0]
HDR = open("standalone__swin_window_attn__vision.s.ref").read().split("; Override launch")[0]
WS_STAMP = 0x1000000
WS_FLAG = 0x40000
WS_EPOCH = 0x50000

def woff(mat, t):
    return 90112 + (5 - t) * 12288 if mat == 0 else t * 12288

X = lambda tt, s: (tt * 12 + s) * 4
WR0 = 96
ACC = lambda b, k: 16 + (b * 2 + k) * 16
ST = lambda kt, qt: 80 + (kt * 2 + qt) * 16
CB = lambda i: 144 + 16 * i
PB = lambda qt, kt, a: 208 + ((qt * 2 + kt) * 2 + a) * 4
OB = lambda b: 240 + 8 * b
VO = 1
VL = [3, 4, 5]
VPD = 15
SO = [44, 45, 46, 47]
OSRD = ["s[12:15]", "s[72:75]"]

def mfma(d, ak, a, bk, b, first, tag=""):
    c = "0" if first else rng("v", d, 16)
    rd = R(ak, a, 4) + R(bk, b, 4) + ([] if first else R("v", d, 16))
    return Ins(f"v_mfma_f32_32x32x16_bf16 {rng('v', d, 16)}, {rng(ak, a, 4)}, {rng(bk, b, 4)}, {c}",
               "mfma", rd, R("v", d, 16), srcc=([] if first else R("v", d, 16)), tag=tag)

def valu(op, d, *src, kind="valu", lead=0.0):
    rd = [s for s in src if isinstance(s, str) and s[0] in "vs" and s[1:].isdigit()]
    return Ins(f"{op} {d}, " + ", ".join(str(s) for s in src), kind, rd, [d], lead=lead)

def cvt(d, s0, lead=0.0):
    return valu("v_cvt_pk_bf16_f32", f"v{d}", f"v{s0}", f"v{s0+1}", lead=lead)

class Body:
    def __init__(self, opt):
        self.opt = opt
        self.base = []
        self.nfrag = 0
        self.nob = 0
        self.mf = []
    def add(self, i):
        self.base.append(i); return i
    def wfrag(self, mat, t, s):
        slot = self.nfrag % self.opt.ring; self.nfrag += 1
        reg = WR0 + 4 * slot
        off = woff(mat, t) + s * 1024
        self.add(Ins(f"ds_read_b128 {rng('a', reg, 4)}, v{VL[off >> 16]} offset:{off & 0xffff}", "dsr",
                     [f"v{VL[off >> 16]}", f"L:{mat}:{t}"], R("a", reg, 4), lead=self.opt.dslead))
        return reg
    def cvt16(self, dst, src, lead=0.0):
        for d in range(8): self.add(cvt(dst + d, src + 2 * d, lead))
    def softmax(self, qt):
        vals = [ST(kt, qt) + r for kt in range(2) for r in range(16)]
        t0 = 7 + 4 * qt
        m0, m1, l0, l1 = (f"v{t0+i}" for i in range(4))
        for ch, m in ((vals[:16], m0), (vals[16:], m1)):
            self.add(valu("v_max3_f32", m, f"v{ch[0]}", f"v{ch[1]}", f"v{ch[2]}"))
            for k in range(3, 15, 2):
                self.add(valu("v_max3_f32", m, m, f"v{ch[k]}", f"v{ch[k+1]}"))
        self.add(valu("v_max3_f32", m0, m0, f"v{vals[15]}", f"v{vals[31]}"))
        self.add(valu("v_max_f32", m0, m0, m1))
        self.add(valu("v_mov_b32", m1, m0))
        self.add(Ins(f"v_permlane32_swap_b32 {m0}, {m1}", "perm", [m0, m1], [m0, m1]))
        self.add(valu("v_max_f32", m0, m0, m1))
        for k, v in enumerate(vals):
            self.add(valu("v_sub_f32", f"v{v}", f"v{v}", m0))
            self.add(valu("v_exp_f32", f"v{v}", f"v{v}", kind="trans"))
            l = l0 if k % 2 == 0 else l1
            if k >= 2:
                if k < 4:
                    self.add(valu("v_add_f32", l, f"v{vals[k-2]}", f"v{v}"))
                else:
                    self.add(valu("v_add_f32", l, l, f"v{v}"))
        self.add(valu("v_add_f32", l0, l0, l1))
        self.add(valu("v_mov_b32", l1, l0))
        self.add(Ins(f"v_permlane32_swap_b32 {l0}, {l1}", "perm", [l0, l1], [l0, l1]))
        self.add(valu("v_add_f32", l0, l0, l1))
        self.add(valu("v_rcp_f32", l0, l0, kind="trans"))
        for kt in range(2):
            for a in range(2):
                for d in range(4):
                    s = ST(kt, qt) + 8 * a + 2 * d
                    self.add(valu("v_mul_f32", f"v{s}", f"v{s}", l0))
                    self.add(valu("v_mul_f32", f"v{s+1}", f"v{s+1}", l0))
                    self.add(cvt(PB(qt, kt, a) + d, s))
    def Sblk(self, t, qt, cb):
        for a in range(2):
            for kt in range(2):
                self.add(mfma(ST(kt, qt), "a", X(kt, 2 * t + a), "v", cb + 4 * a, t == 0 and a == 0, tag=f"S{t}{qt}"))
    def Omf(self, t, qt, kt):
        oo = ST(t % 2, qt)
        for a in range(2):
            self.add(mfma(oo, "v", CB(t % 4) + 8 * kt + 4 * a, "v", PB(qt, kt, a), kt == 0 and a == 0, tag=f"O{t}{qt}"))
    def Oout(self, t, qt):
        oo = ST(t % 2, qt)
        ob = OB(self.nob % 2); self.nob += 1
        fl = self.opt.stflags; L = self.opt.stlead
        for d in range(8): self.add(cvt(ob + d, oo + 2 * d, lead=L))
        for d in range(4):
            a, b = f"v{ob+d}", f"v{ob+4+d}"
            self.add(Ins(f"v_permlane16_swap_b32 {a}, {b}", "perm", [a, b], [a, b], lead=L))
        for hf in range(2):
            if self.opt.nostore: continue
            self.add(Ins(f"buffer_store_dwordx4 {rng('v', ob + 4*hf, 4)}, v{VO}, {OSRD[qt]}, s{SO[2*qt+hf]} offen offset:{64*t}{fl}",
                         "vst", R("v", ob + 4 * hf, 4) + [f"v{VO}"], [], lead=L))
    def Oblk(self, t, qt):
        self.Omf(t, qt, 0); self.Omf(t, qt, 1); self.Oout(t, qt)
    def bar(self, tiles, after, text="s_barrier"):
        return self.add(Ins(text, "bar", [], [f"L:{m}:{t}" for m, t in tiles], after=after))
    def flushS(self, pend):
        t, qt, acc, cb = pend
        self.cvt16(cb, acc)
        self.Sblk(t, qt, cb)
        if t == 5: self.softmax(qt)

    def build(self, nq):
        opt = self.opt
        SI = opt.sins
        pend = None
        blk = 0
        lastm = None
        allN = [(1, tn) for tn in range(6)]
        for qt in range(nq):
            for t in range(6):
                acc = ACC((blk // 2) % 2, blk % 2)
                if blk == 1: self.bar([(0, 1)], self.mf[opt.b1at])
                if blk == 2: self.bar([(0, 2)], self.mf[opt.b2at])
                if blk == 3: self.bar([(0, 3), (0, 4), (0, 5)], self.mf[opt.b3at])
                if blk == opt.b4blk: self.bar(allN, lastm, "s_waitcnt vmcnt(0)\n  s_barrier")
                for s in range(12):
                    if s == SI and pend is not None:
                        self.flushS(pend); pend = None
                    w = self.wfrag(0, t, s)
                    lastm = self.add(mfma(acc, "a", w, "a", X(qt, s), s == 0, tag=f"T{t}{qt}"))
                    self.mf.append(lastm)
                    if blk == 6 and s == 0: self.join = lastm
                pend = (t, qt, acc, CB((blk // 2) % 4) + 8 * (blk % 2))
                blk += 1
        if nq == 2:
            pos = {(1,4): [(0,0)], (2,4): [(1,0)], (2,8): [(0,1)], (3,0): [(1,1)], (3,4): [(2,0)], (3,9): [(2,1)],
                   (4,4): [(3,0)], (4,9): [(3,1)], (5,4): [(4,0)], (6,0): [(4,1)]}
        else:
            pos = {(2,8): [(0,0)], (3,0): [(1,0)], (3,6): [(2,0)], (4,4): [(3,0)], (6,0): [(4,0)]}
        yb = (blk // 2) % 2
        if nq == 1: yb = 1
        for t in range(6):
            steps = [(s, None) for s in range(12)] if t < 5 else [(s, 0) for s in range(12)] + [(s, 1) for s in range(12)]
            for n, (s, only) in enumerate(steps):
                p = n if t < 5 else n // 2 if n % 2 == 0 else -1
                if p == SI // 2 + 1 and pend is not None:
                    self.flushS(pend); pend = None
                if p == 4 and t >= 1:
                    for kt in range(2): self.cvt16(CB((t - 1) % 4) + 8 * kt, ACC((t - 1 + yb) % 2, kt))
                for ob in pos.get((t, p), []): self.Oblk(*ob)
                w = self.wfrag(1, t, s)
                for kt in range(2):
                    if only is None or only == kt:
                        self.add(mfma(ACC((t + yb) % 2, kt), "a", X(kt, s), "a", w, s == 0, tag=f"Y{t}"))
        L = self.opt.stlead + 5
        self.cvt16(CB(5 % 4), ACC((5 + yb) % 2, 0), lead=L)
        for ob in pos.get((6, 0), []): self.Oblk(*ob)
        for qt in range(nq): self.Omf(5, qt, 0)
        self.cvt16(CB(5 % 4) + 8, ACC((5 + yb) % 2, 1), lead=L)
        for qt in range(nq):
            self.Omf(5, qt, 1)
        for qt in range(nq):
            self.Oout(5, qt)

def stamp(A, opt, k):
    if opt.stamps:
        A(f"  s_memrealtime s[{56+2*k}:{57+2*k}]")
        A(f"  s_memtime s[{76+2*k}:{77+2*k}]")
        A(f"  s_waitcnt lgkmcnt(0)")

def stamp_out(A, opt):
    if not opt.stamps: return
    for k in range(8): A(f"  v_mov_b32 v{16+k}, s{56+2*k}")
    for k in range(8): A(f"  v_mov_b32 v{24+k}, s{76+2*k}")
    A(f"  s_lshl_b32 s26, s2, 2\n  s_add_u32 s26, s26, s20\n  s_lshl_b32 s26, s26, 5\n  s_add_u32 s26, s26, {WS_STAMP}")
    A("  s_mov_b32 s18, 0x10000000")
    A("  v_mov_b32 v7, 0")
    A("  buffer_store_dwordx4 v[16:19], v7, s[16:19], s26 offen")
    A("  buffer_store_dwordx4 v[20:23], v7, s[16:19], s26 offen offset:16")
    A("  s_add_u32 s26, s26, 0x10000")
    A("  buffer_store_dwordx4 v[24:27], v7, s[16:19], s26 offen")
    A("  buffer_store_dwordx4 v[28:31], v7, s[16:19], s26 offen offset:16")

def bound(A, label):
    A("  s_add_u32 s92, s92, 1")
    A("  s_cmp_gt_u32 s92, 50000")
    A(f"  s_cbranch_scc1 {label}_x")

def check_issue(A):
    A("  buffer_load_dwordx2 v[14:15], off, s[36:39], 0 sc1")
    A("  buffer_load_dwordx2 v[12:13], v2, s[16:19], s93 offen sc1")

def spin_first(A, opt):
    A("  s_branch L_pollA_0")
    A("L_pollA:")
    A(f"  s_sleep {opt.sleep}")
    check_issue(A)
    bound(A, "L_pollA")
    A("L_pollA_0:")
    A("  s_waitcnt vmcnt(0)")
    A("  v_cmp_ne_u64 vcc, v[12:13], v[14:15]")
    A("  v_cmp_eq_u32 s[26:27], 0, v14")
    A("  s_nop 1")
    A("  s_or_b64 vcc, vcc, s[26:27]")
    A("  s_and_b32 s26, vcc_lo, 0x3f")
    A("  s_cbranch_scc1 L_pollA")
    A("L_pollA_x:")

def spin_flags(A, label, sreg, sleep):
    A(f"  s_branch {label}_0")
    A(f"{label}:")
    A(f"  s_sleep {sleep}")
    A(f"{label}_0:")
    A(f"  buffer_load_dwordx2 v[12:13], v2, s[16:19], {sreg} offen sc1")
    bound(A, label)
    A("  s_waitcnt vmcnt(0)")
    A("  v_cmp_ne_u64 vcc, v[12:13], v[14:15]")
    A(f"  s_cbranch_vccnz {label}")
    A(f"{label}_x:")

def stage_offsets(A, rowx):
    for k in range(3):
        A(f"  v_add_u32 v9, {64*k}, v8")
        A("  v_mul_u32_u24 v9, 0xaab, v9")
        if rowx:
            A("  v_lshrrev_b32 v10, 16, v9")
            A(f"  v_mul_u32_u24 v10, {rowx}, v10")
        A("  v_lshrrev_b32 v9, 17, v9")
        A("  v_xor_b32 v9, v9, v8")
        if rowx:
            A("  v_xor_b32 v11, 4, v9")
            A(f"  v_lshl_add_u32 v{16+2*k}, v9, 4, v10")
            A(f"  v_lshl_add_u32 v{17+2*k}, v11, 4, v10")
        else:
            A(f"  v_lshlrev_b32 v{16+2*k}, 4, v9")
            A(f"  v_xor_b32 v{17+2*k}, 64, v{16+2*k}")

def frag_addrs(A, jreg, base):
    A(f"  v_mul_u32_u24 v10, 384, {jreg}")
    A(f"  v_add_u32 v10, {base}, v10")
    A(f"  v_bfe_u32 v11, {jreg}, 1, 3")
    A("  v_lshrrev_b32 v12, 5, v8")
    A("  v_xor_b32 v11, v11, v12")
    for m in range(4):
        A(f"  v_xor_b32 v13, {2*m}, v11")
        A(f"  v_lshl_add_u32 v{24+m}, v13, 4, v10")

def fold(A, opt, mat):
    SC = 73728
    srd_consts(A, opt)
    if mat: A("  s_sub_u32 s51, s2, 36")
    g = "s51" if mat else "s2"
    A(f"  s_mul_i32 s48, {g}, 43")
    A("  s_lshr_b32 s48, s48, 8")
    A("  s_mul_i32 s49, s48, 6")
    A(f"  s_sub_u32 s49, {g}, s49")
    A("  s_mul_i32 s22, s49, 36864")
    if mat:
        A("  s_add_u32 s22, s22, 768")
        A("  s_lshl_b32 s23, s48, 6")
        A("  v_lshrrev_b32 v14, 2, v8")
        A("  v_mul_u32_u24 v14, 384, v14")
        A("  v_and_b32 v13, 3, v8")
        A("  v_lshl_add_u32 v14, v13, 4, v14")
    else:
        A("  s_mul_i32 s23, s48, 36864")
        A("  s_add_u32 s23, s23, 384")
    stage_offsets(A, 768)
    srd_bases(A)
    A(f"  s_mov_b32 s95, {WS_EPOCH}")
    A("  buffer_load_dwordx2 v[6:7], off, s[16:19], s95 sc1")
    def panel(sreg, lds):
        for r in range(4):
            A(f"  s_mov_b32 m0, {lds + 3072*r}")
            if r: A(f"  s_add_u32 {sreg}, {sreg}, 9216")
            else: A("  s_nop 0")
            for k in range(3):
                A(f"  buffer_load_dwordx4 v{16+2*k+(r%2)}, s[28:31], {sreg} offen offset:{1024*k}{opt.wf} lds")
    panel("s22", SC)
    if mat:
        for s in range(12):
            A(f"  s_mov_b32 m0, {SC + 12288 + 1024*s}")
            if s: A(f"  s_add_u32 s23, s23, 6144")
            else: A("  s_nop 0")
            A(f"  buffer_load_dwordx4 v14, s[32:35], s23 offen lds")
    else:
        panel("s23", SC + 12288)
    stamp(A, opt, 7)
    if opt.bh: A("  s_barrier")
    helper_misc(A, opt)
    A("  v_and_b32 v9, 0x13, v8")
    A("  v_and_b32 v10, 4, v8")
    A("  v_lshl_or_b32 v9, v10, 1, v9")
    A("  v_and_b32 v10, 8, v8")
    A("  v_lshrrev_b32 v10, 1, v10")
    A("  v_or_b32 v9, v9, v10")
    frag_addrs(A, "v9", SC)
    A("  s_mul_i32 s26, s48, 12288")
    if mat:
        A("  v_bfe_u32 v14, v8, 2, 2")
        A("  v_lshl_add_u32 v14, v12, 3, v14")
        A("  v_lshlrev_b32 v14, 6, v14")
        A("  v_bfe_u32 v13, v8, 4, 1")
        A("  v_lshl_add_u32 v14, v13, 5, v14")
        A("  v_and_b32 v13, 1, v8")
        A("  v_lshl_add_u32 v14, v13, 4, v14")
        A("  v_bfe_u32 v13, v8, 1, 1")
        A("  v_lshl_add_u32 v14, v13, 3, v14")
        A(f"  v_add_u32 v14, {SC + 12288}, v14")
    else:
        A(f"  s_sub_u32 s26, {woff(0,0)}, s26")
        A(f"  s_mov_b32 s27, {f32bits(SCALE):#x}")
    A("  s_lshl_b32 s54, s49, 11")
    A("  s_add_u32 s26, s26, s54")
    A(f"  s_lshl_b32 s54, s2, {opt.fsh}")
    A(f"  s_add_u32 s54, s54, {WS_FLAG}")
    A("  s_waitcnt vmcnt(12)")
    for s in range(12):
        A(f"  ds_read_b128 v[{32+4*s}:{35+4*s}], v{24+s%4} offset:{(s//4)*128}")
    A("  v_add_co_u32 v6, vcc, 2, v6")
    A("  s_nop 1")
    A("  v_addc_co_u32 v7, vcc, 0, v7, vcc")
    A("  v_or_b32 v6, 1, v6")
    A("  s_waitcnt vmcnt(0) lgkmcnt(0)")
    def mm(s):
        c = "0" if s == 0 else "v[128:143]"
        A(f"  v_mfma_f32_32x32x16_bf16 v[128:143], v[{32+4*s}:{35+4*s}], v[{80+4*s}:{83+4*s}], {c}")
    if mat:
        def tr(s):
            for jj in range(2):
                A(f"  ds_read_b64_tr_b16 v[{80+4*s+2*jj}:{81+4*s+2*jj}], v14 offset:{1024*s + 256*jj}")
        for s in range(6): tr(s)
        for s in range(12):
            if s < 6: tr(s + 6)
            A(f"  s_waitcnt lgkmcnt({12 if s < 6 else 2*(11-s)})")
            mm(s)
    else:
        for s in range(12):
            A(f"  ds_read_b128 v[{80+4*s}:{83+4*s}], v{24+s%4} offset:{(s//4)*128 + 12288}")
        for s in range(12):
            A(f"  s_waitcnt lgkmcnt({11-s})")
            mm(s)
    stamp(A, opt, 1)
    A("  s_nop 11")
    for d in range(8):
        if not mat:
            A(f"  v_mul_f32 v{128+2*d}, s27, v{128+2*d}")
            A(f"  v_mul_f32 v{129+2*d}, s27, v{129+2*d}")
        A(f"  v_cvt_pk_bf16_f32 v{32+d}, v{128+2*d}, v{129+2*d}")
        if d == 3: A(f"  buffer_store_dwordx4 v[32:35], v{VL[0]}, s[16:19], s26 offen sc1")
    A(f"  buffer_store_dwordx4 v[36:39], v{VL[0]}, s[16:19], s26 offen offset:1024 sc1")
    A("  s_mov_b64 exec, 1")
    if not mat:
        A("  s_cmp_lg_u32 s2, 0")
        A("  s_cbranch_scc1 L_fold_pub")
        A("  buffer_store_dwordx2 v[6:7], off, s[36:39], 0 sc1")
        A("  s_waitcnt vmcnt(1)")
        A("  s_branch L_fold_pub2")
        A("L_fold_pub:")
    A("  s_waitcnt vmcnt(0)")
    if not mat: A("L_fold_pub2:")
    stamp(A, opt, 2)
    A("  buffer_store_dwordx2 v[6:7], off, s[16:19], s54 sc1")
    A("  s_mov_b64 exec, -1")
    stamp(A, opt, 6)
    A("  s_branch L_loader")

def helper_misc(A, opt):
    A("  s_mov_b32 s14, 0")
    A(f"  v_mov_b32 v{VO}, 0")
    A("  v_min_u32 v2, 35, v8")
    A(f"  v_lshlrev_b32 v2, {opt.fsh}, v2")

def srd_consts(A, opt):
    A(f"  s_mov_b32 s10, {XBYTES}\n  s_mov_b32 s11, 0x00020000")
    A(f"  s_mov_b32 s15, 0x00020000")
    A("  s_mov_b32 s18, 0x60000\n  s_mov_b32 s19, 0x00020000")
    A("  s_mov_b32 s30, 221184\n  s_mov_b32 s31, 0x00020000")
    A("  s_mov_b32 s34, 73728\n  s_mov_b32 s35, 0x00020000")
    A("  s_mov_b32 s38, 256\n  s_mov_b32 s39, 0x00020000")
    A(f"  s_mov_b32 s74, {XBYTES}\n  s_mov_b32 s75, 0x00020000")
    A(f"  s_mov_b32 s93, {WS_FLAG}")
    A(f"  s_mov_b32 s94, {WS_FLAG + (36 << opt.fsh)}")
    A("  s_mov_b32 s92, 0")

def srd_bases(A):
    A("  s_waitcnt lgkmcnt(0)")
    A("  s_mov_b64 s[8:9], s[4:5]\n  s_mov_b64 s[28:29], s[6:7]\n  s_mov_b64 s[16:17], s[54:55]")
    A("  s_mov_b64 s[32:33], s[40:41]\n  s_mov_b64 s[36:37], s[52:53]")
    A("  s_mov_b64 s[12:13], s[42:43]\n  s_mov_b64 s[72:73], s[42:43]")

def emit_body(A, opt, nq, em, pre, stmap):
    b = Body(opt); b.build(nq)
    log = []
    sched.COST["vst"] = opt.vstcost
    stalls = schedule(pre + b.base, em, budget=opt.budget, maxfill=opt.maxfill, lg_extra=opt.lgextra, log=log,
                      prefill=7, cooldown={'vst': opt.stcool})
    verify(pre + b.base, em.out)
    nm = sum(1 for i in em.out if i.kind == "mfma")
    sys.stderr.write(f"body{nq}: instrs {len(em.out)} mfma {nm} forced-cycles {stalls}\n")
    if opt.log:
        for l in log: sys.stderr.write(str(l) + "\n")
    ji = em.out.index(b.join)
    if em.out[ji - 1].kind == "wait": ji -= 1
    live = []
    for k, i in enumerate(em.out[:ji]):
        if i.kind != "dsr": continue
        w = set(i.writes)
        later_w = any(j.kind == "dsr" and set(j.writes) & w for j in em.out[k + 1:ji])
        used_before = any(j.kind == "mfma" and set(j.reads) & w for j in em.out[k + 1:ji])
        if not later_w and not used_before: live.append(i.text)
    opt.join_reads = live
    nb = 0
    for k, i in enumerate(em.out):
        if k == ji: A("L_join:")
        A("  " + i.text + (f"   ; {i.tag}" if i.tag else ""))
        if opt.stamps and i.kind == "bar":
            if nb in stmap:
                A("  s_waitcnt lgkmcnt(0)")
                stamp(A, opt, stmap[nb])
            nb += 1
    if opt.stamps:
        stamp(A, opt, 6)
        A("  s_waitcnt vmcnt(0)")
        stamp(A, opt, 7)
        stamp_out(A, opt)
    A("  s_endpgm")

def main_kernel(opt):
    o = []
    A = o.append
    A(f".globl {KN}\n.p2align 8\n.type {KN},@function\n{KN}:")
    stamp(A, opt, 0)
    A("  s_load_dwordx4 s[4:7], s[0:1], 0")
    A("  s_load_dwordx4 s[40:43], s[0:1], 16")
    A("  s_load_dwordx4 s[52:55], s[0:1], 32")
    A("  v_lshrrev_b32 v7, 6, v0")
    A("  s_cmp_ge_u32 s2, 256")
    A("  s_cbranch_scc1 L_end")
    A("  v_readfirstlane_b32 s20, v7")
    A("  v_and_b32 v8, 63, v0")
    A(f"  v_lshlrev_b32 v{VL[0]}, 4, v8")
    A("  s_cmp_lg_u32 s20, 3")
    A("  s_cbranch_scc1 L_window")
    A("  s_cmp_ge_u32 s2, 224")
    A("  s_cbranch_scc1 L_window")
    A("  s_cmp_ge_u32 s2, 72")
    A("  s_cbranch_scc1 L_pref")
    A("  s_cmp_ge_u32 s2, 36")
    A("  s_cbranch_scc1 L_foldn")
    fold(A, opt, 0)
    A(".p2align 6")
    A("L_foldn:")
    fold(A, opt, 1)
    A(".p2align 6")
    A("L_pref:")
    srd_consts(A, opt)
    helper_misc(A, opt)
    srd_bases(A)
    if opt.pref:
        A("  s_getpc_b64 s[48:49]")
        A("L_pc:")
        A(f"  s_sub_u32 s48, s48, L_pc-{KN}")
        A("  s_subb_u32 s49, s49, 0")
        A("  s_lshr_b32 s26, s2, 3")
        A(f"  s_and_b32 s26, s26, {opt.prefn - 1}")
        A("  s_lshl_b32 s26, s26, 13")
        A("  v_lshl_add_u32 v9, v8, 7, s26")
        A(f"  v_min_u32 v9, L_last-{KN}, v9")
        A("  global_load_dword v16, v9, s[48:49]")
    A("L_loader:")
    A("  s_barrier")
    check_issue(A)
    A("L_loader2:")
    A("  s_lshr_b32 s26, s2, 3")
    A("  s_mul_i32 s27, s26, 57")
    A("  s_lshr_b32 s27, s27, 9")
    A("  s_mul_i32 s27, s27, 9")
    A("  s_sub_u32 s26, s26, s27")
    A("  s_lshl_b32 s21, s26, 13")
    A("  v_lshl_add_u32 v11, v8, 7, s21")
    A(f"  s_mov_b32 s21, {woff(0, 5)}")
    spin_first(A, opt)
    stamp(A, opt, 3)
    def hdma(mat, t):
        for c in range(3):
            A(f"  s_mov_b32 m0, {woff(mat, t) + 4096*c}")
            A("  s_nop 0")
            for k in range(4):
                A(f"  buffer_load_dwordx4 v{VL[0]}, s[16:19], m0 offen offset:{1024*k} sc1 lds")
    hdma(0, 0)
    A("  s_cmp_eq_u64 vcc, 0")
    A("  s_cbranch_scc1 L_pollB_x")
    spin_flags(A, "L_pollB", "s93", opt.sleep)
    e = 0
    if opt.scout:
        A("  buffer_load_dword v10, v11, s[16:19], s21 offen sc1"); e = 1
    hdma(0, 1)
    A(f"  s_waitcnt vmcnt({12+e}) lgkmcnt(0)")
    stamp(A, opt, 4)
    A("  s_barrier")
    A("  buffer_load_dwordx2 v[12:13], v2, s[16:19], s94 offen sc1")
    hdma(0, 2)
    A("  s_waitcnt vmcnt(13)")
    A("  s_barrier")
    hdma(0, 3); hdma(0, 4)
    A("  s_waitcnt vmcnt(24)")
    A("  s_barrier")
    hdma(0, 5)
    A("  v_cmp_ne_u64 vcc, v[12:13], v[14:15]")
    A("  s_cbranch_vccz L_pollN_x")
    spin_flags(A, "L_pollN", "s94", opt.sleep)
    if opt.scout:
        A("  buffer_load_dword v10, v11, s[16:19], 0 offen sc1")
    hdma(1, 0)
    A(f"  s_waitcnt vmcnt({12+e})")
    A("  s_barrier")
    A("  s_cmp_lg_u32 s2, 0")
    A("  s_cbranch_scc1 L_noep")
    A("  s_mov_b64 exec, 1")
    A("  buffer_store_dwordx2 v[6:7], off, s[16:19], s95 sc1")
    A("  s_mov_b64 exec, -1")
    A("L_noep:")
    for t in range(1, 6):
        if t == 5: A("  s_waitcnt vmcnt(48)")
        hdma(1, t)
    stamp(A, opt, 5)
    A("  s_cmp_ge_u32 s2, 224")
    A("  s_cbranch_scc1 L_late")
    A("  s_waitcnt vmcnt(0)")
    A("  s_barrier")
    stamp_out(A, opt)
    A("L_end:")
    A("  s_endpgm")
    A(".p2align 6")
    A("L_window:")
    A("  s_mul_i32 s21, s2, 3")
    A("  s_add_u32 s21, s21, s20")
    A("  s_add_u32 s22, s2, 1312")
    A("  s_and_b32 s25, s22, 1")
    A("  s_lshr_b32 s22, s22, 1")
    A("  s_cmp_eq_u32 s20, 3")
    A("  s_cselect_b32 s21, s22, s21")
    A("  s_cselect_b32 s25, s25, 0")
    A(f"  s_cselect_b32 s14, 0, {XBYTES}")
    A("  s_mul_hi_u32 s23, s21, 153391690")
    A("  s_mul_i32 s24, s23, 28")
    A("  s_sub_u32 s24, s21, s24")
    A("  s_mul_i32 s23, s23, 688128")
    A("  s_mul_i32 s24, s24, 3072")
    A("  s_add_u32 s23, s23, s24")
    A("  s_mul_i32 s25, s25, 344064")
    A(f"  s_add_u32 s{SO[0]}, s23, s25")
    A(f"  s_add_u32 s{SO[2]}, s23, 344064")
    A(f"  s_sub_u32 s{SO[2]}, s{SO[2]}, s25")
    A("  s_mul_i32 s24, s20, 24576")
    stage_offsets(A, 0)
    srd_consts(A, opt)
    srd_bases(A)
    if opt.bh:
        A("  s_cmp_ge_u32 s2, 72")
        A("  s_cbranch_scc1 L_nobh")
        A("  s_barrier")
        A("L_nobh:")
    n = 0
    for r in range(8):
        A(f"  s_add_u32 m0, s24, {3072*r}")
        if r % 4: A("  s_add_u32 s26, s26, 86016")
        else: A(f"  s_mov_b32 s26, s{SO[r // 2]}")
        for k in range(3):
            if n >= opt.xwin: A(f"  s_waitcnt vmcnt({opt.xwin-1})")
            A(f"  buffer_load_dwordx4 v{16+2*k+(r%2)}, s[8:11], s26 offen offset:{1024*k}{opt.xf} lds")
            n += 1
        if r == 1:
            A(f"  v_add_u32 v{VL[1]}, 0x10000, v{VL[0]}")
            A(f"  v_add_u32 v{VL[2]}, 0x20000, v{VL[0]}")
            A("  v_min_u32 v2, 35, v8")
            A(f"  v_lshlrev_b32 v2, {opt.fsh}, v2")
            A("  v_and_b32 v9, 31, v8")
            frag_addrs(A, "v9", "s24")
            A("  v_bfe_u32 v9, v8, 3, 1")
            A("  v_mul_u32_u24 v9, 86016, v9")
            A("  v_and_b32 v10, 7, v8")
            A("  v_mul_u32_u24 v10, 384, v10")
            A("  v_bfe_u32 v11, v8, 4, 1")
            A("  v_lshlrev_b32 v11, 5, v11")
            A("  v_lshl_add_u32 v11, v12, 4, v11")
            A(f"  v_add3_u32 v{VO}, v9, v10, v11")
            A(f"  s_add_u32 s{SO[1]}, s{SO[0]}, 172032")
            A(f"  s_add_u32 s{SO[3]}, s{SO[2]}, 172032")
    stamp(A, opt, 1)
    A(f"  s_waitcnt vmcnt({opt.pollat})")
    A("  s_barrier")
    A("  s_cmp_lg_u32 s20, 3")
    A("  s_cbranch_scc1 L_nochk")
    check_issue(A)
    A("L_nochk:")
    for tt in range(2):
        if tt: A("  s_waitcnt vmcnt(0) lgkmcnt(0)")
        for s in range(12):
            A(f"  ds_read_b128 {rng('a', X(tt, s), 4)}, v{24+s%4} offset:{(s//4)*128 + tt*12288}")
    A("  s_cmp_eq_u32 s20, 3")
    A("  s_cbranch_scc1 L_loader2")
    A("  s_waitcnt lgkmcnt(0)")
    stamp(A, opt, 2)
    A("  s_barrier")
    stamp(A, opt, 3)
    emit_body(A, opt, 2, Emitter(), [], {2: 4, 3: 5})
    A("L_late:")
    for t in opt.join_reads: A("  " + t)
    A("  s_waitcnt lgkmcnt(0)")
    A("  s_branch L_join")
    A("L_last:")
    A("  s_endpgm")
    return "\n".join(o)

def main():
    ap = argparse.ArgumentParser()
    ap.add_argument("--ring", type=int, default=12)
    ap.add_argument("--dslead", type=float, default=6.0)
    ap.add_argument("--stlead", type=float, default=40.0)
    ap.add_argument("--vstcost", type=int, default=20)
    ap.add_argument("--stcool", type=int, default=3)
    ap.add_argument("--sins", type=int, default=6)
    ap.add_argument("--b4blk", type=int, default=9)
    ap.add_argument("--b1at", type=int, default=5)
    ap.add_argument("--b2at", type=int, default=17)
    ap.add_argument("--b3at", type=int, default=29)
    ap.add_argument("--fastp", type=int, default=1)
    ap.add_argument("--pollat", type=int, default=4)
    ap.add_argument("--fsh", type=int, default=5)
    ap.add_argument("--wf", default="")
    ap.add_argument("--bh", type=int, default=1)
    ap.add_argument("--scout", type=int, default=1)
    ap.add_argument("--prefn", type=int, default=2)
    ap.add_argument("--presleep", type=int, default=0)
    ap.add_argument("--pausen", type=int, default=0)
    ap.add_argument("--budget", type=int, default=24)
    ap.add_argument("--maxfill", type=int, default=5)
    ap.add_argument("--lgextra", type=int, default=1)
    ap.add_argument("--xwin", type=int, default=7)
    ap.add_argument("--xearly", type=int, default=24)
    ap.add_argument("--sleep", type=int, default=2)
    ap.add_argument("--pref", type=int, default=1)
    ap.add_argument("--stflags", default="sc1")
    ap.add_argument("--xf", default="nt")
    ap.add_argument("--log", action="store_true")
    ap.add_argument("--nostore", action="store_true")
    ap.add_argument("--stamps", action="store_true")
    opt = ap.parse_args()
    if opt.stflags: opt.stflags = " " + opt.stflags.replace(",", " ")
    if opt.wf: opt.wf = " " + opt.wf.replace(",", " ")
    if opt.stamps: opt.prefn = 4
    if opt.xf: opt.xf = " " + opt.xf.replace(",", " ")
    print(HDR.rstrip())
    print(f"; @launch grid=(256,1,1) block=(256,1,1) lds=163840")
    print('.amdgcn_target "amdgcn-amd-amdhsa--gfx950"\n.text')
    print(main_kernel(opt))
    print('.section .rodata,"a"')
    print(f""".p2align 6
.amdhsa_kernel {KN}
  .amdhsa_next_free_vgpr {256 + 96 + 4 * opt.ring}
  .amdhsa_next_free_sgpr 96
  .amdhsa_accum_offset 256
  .amdhsa_group_segment_fixed_size 0
  .amdhsa_kernarg_size 48
  .amdhsa_user_sgpr_count 2
  .amdhsa_user_sgpr_kernarg_segment_ptr 1
  .amdhsa_system_sgpr_workgroup_id_x 1
.end_amdhsa_kernel""")

main()
```

```python
import re

def R(kind, lo, n=1):
    return [f"{kind}{i}" for i in range(lo, lo + n)]

def rng(kind, lo, n):
    return f"{kind}[{lo}:{lo+n-1}]" if n > 1 else f"{kind}{lo}"

VALU = ("valu", "trans", "perm")
COST = {"mfma": 8, "valu": 4, "trans": 8, "perm": 4, "dsr": 4, "dsw": 4, "vld": 4, "vst": 4, "dma": 4,
        "salu": 4, "bar": 8, "nop": 4, "wait": 4}

class Ins:
    def __init__(self, text, kind, reads=(), writes=(), srcc=(), after=None, lead=0.0, tag=""):
        self.text = text; self.kind = kind
        self.reads = list(reads); self.writes = list(writes); self.srcc = list(srcc)
        self.after = after
        self.lead = lead
        self.tag = tag
        self.preds = {}
        self.succs = []
        self.pos = None
        self.states = 1
        self.mindist = 0
    def __repr__(self):
        return self.text

def hazard(p, c, typ, reg):
    isv = reg[0] in "va" and reg[1:].isdigit()
    if not isv:
        if reg[0] == "s" and reg[1:].isdigit() or reg in ("vcc", "m0"):
            if typ == "RAW":
                if p.kind in VALU and c.kind in ("vld", "vst", "dma"): return 5
                if p.kind in VALU and c.kind in VALU: return 2
                if reg == "m0" and c.kind == "dma": return 1
        return 0
    if typ == "RAW":
        if p.kind in VALU and c.kind == "mfma": return 2
        if p.kind == "mfma":
            if c.kind == "mfma":
                if reg in c.srcc:
                    return 0 if c.srcc == p.writes else 10
                return 12
            return 12
        d = 0
        if p.kind == "trans" and c.kind != "trans": d = 1
        if p.kind in VALU and c.kind == "perm": d = 2
        return d
    if typ == "WAW":
        if p.kind == "mfma" and c.kind != "mfma": return 12
        return 0
    if typ == "WAR":
        if p.kind == "mfma" and reg in p.srcc and c.kind in VALU: return 7
        if p.kind in ("vst", "dsw"):
            return 2
        return 0
    return 0

def build_dag(base):
    lastw = {}; readers = {}
    for i in base:
        def edge(p, typ, r):
            if p is i: return
            d = hazard(p, i, typ, r)
            if typ == "RAW" and p.kind == "dsr": d = max(d, i.mindist)
            if p not in i.preds:
                i.preds[p] = d; p.succs.append(i)
            else:
                i.preds[p] = max(i.preds[p], d)
        for r in i.reads:
            if r in lastw: edge(lastw[r], "RAW", r)
        for r in i.writes:
            if r in lastw: edge(lastw[r], "WAW", r)
            for p in readers.get(r, []): edge(p, "WAR", r)
        if i.after is not None:
            if i.after not in i.preds:
                i.preds[i.after] = 0; i.after.succs.append(i)
        for r in i.reads:
            readers.setdefault(r, []).append(i)
        for r in i.writes:
            lastw[r] = i; readers[r] = []

class Emitter:
    def __init__(self):
        self.out = []
        self.state = 0
        self.vm = []
        self.lg = []
    def need(self, ins):
        regs = set(ins.reads) | set(ins.writes)
        vn = ln = None
        for k, op in enumerate(self.vm):
            if op.kind in ("vld", "dma") and regs & set(op.writes): vn = len(self.vm) - 1 - k
        for k, op in enumerate(self.lg):
            if op.kind == "dsw": continue
            if regs & set(op.writes): ln = len(self.lg) - 1 - k
        return vn, ln
    def raw(self, ins):
        ins.pos = self.state
        self.state += ins.states
        self.out.append(ins)
    def emit(self, ins, lg_extra=0):
        vn, ln = self.need(ins)
        cost = 0
        if vn is not None or ln is not None:
            parts = []
            if vn is not None:
                assert vn <= 63
                parts.append(f"vmcnt({vn})"); self.vm = self.vm[len(self.vm) - vn:] if vn else []
            if ln is not None:
                ln = max(0, ln - lg_extra)
                ln = min(ln, 15)
                parts.append(f"lgkmcnt({ln})"); self.lg = self.lg[len(self.lg) - ln:] if ln else []
            self.raw(Ins("s_waitcnt " + " ".join(parts), "wait")); cost += COST["wait"]
        self.raw(ins); cost += COST[ins.kind]
        if ins.kind in ("vld", "vst", "dma"):
            self.vm.append(ins)
            assert len(self.vm) <= 63, "vmcnt overflow"
        if ins.kind in ("dsr", "dsw"):
            self.lg.append(ins)
        return cost
    def nop(self, n):
        while n > 0:
            k = min(n, 16)
            i = Ins(f"s_nop {k-1}", "nop"); i.states = k
            self.raw(i); n -= k

def schedule(base, em, budget=24, maxfill=5, lg_extra=0, maxlg=15, log=None, prefill=0, cooldown={}):
    build_dag(base)
    mf = [i for i in base if i.kind == "mfma" and i.pos is None]
    for k, m in enumerate(mf): m.dl = float(k)
    END = len(mf) + 50.0
    for i in reversed(base):
        if i.kind == "mfma": continue
        dl = END
        for s in i.succs:
            lat = 0.2 + s.preds[i] * 0.25
            dl = min(dl, s.dl - lat)
        i.dl = dl - i.lead
    fill = [i for i in base if i.kind != "mfma" and i.pos is None]
    order = {id(i): k for k, i in enumerate(base)}
    def wait_states(i):
        miss = 0
        for p, d in i.preds.items():
            if p.pos is None: return None
            have = em.state - (p.pos + p.states)
            miss = max(miss, d - have)
        return miss
    cur = [0]; lastk = {}
    def cands(only=None):
        res = []
        for i in fill:
            if only is not None and id(i) not in only: continue
            w = wait_states(i)
            if w is None or w > 0: continue
            if i.kind in ("dsr", "dsw") and len(em.lg) >= maxlg: continue
            if only is None and i.kind in cooldown and cur[0] - lastk.get(i.kind, -99) < cooldown[i.kind]: continue
            res.append(((i.dl, order[id(i)]), i))
        res.sort(key=lambda x: x[0])
        return [i for _, i in res]
    def pick(only=None):
        c = cands(only)
        return c[0] if c else None
    def missing(m):
        seen = set(); st = [m]
        while st:
            x = st.pop()
            for p in x.preds:
                if p.pos is None and id(p) not in seen:
                    seen.add(id(p)); st.append(p)
        return seen
    stalls = 0
    for k, m in enumerate(mf):
        cur[0] = k
        while True:
            w = wait_states(m)
            if w is not None and w <= 0: break
            f = pick(missing(m)) if w is None else None
            if f is None:
                c = [i for i in cands() if i.kind not in ("dma", "bar")]
                f = c[0] if c else None
            if f is not None:
                em.emit(f, lg_extra); fill.remove(f); stalls += COST[f.kind]
                if log is not None: log.append((k, "forced", f.text))
            else:
                if w is None:
                    em.nop(1); stalls += 4
                else:
                    em.nop(w); stalls += 4 * w
                if log is not None: log.append((k, "nop", ""))
        if k == 0 and prefill:
            for _ in range(prefill):
                c = [i for i in cands() if i.kind == "dsr"]
                if not c: break
                em.emit(c[0], lg_extra); fill.remove(c[0])
        c = em.emit(m, lg_extra if k > 2 else 0) - COST["mfma"]
        used = 0; n = 0
        while n < maxfill:
            nxt = 0
            if k + 1 < len(mf):
                vn, ln = em.need(mf[k + 1])
                if vn is not None or ln is not None: nxt = 1
            if n + 1 + nxt > maxfill: break
            f = None
            for cnd in cands():
                if used + COST[cnd.kind] + 4 * nxt <= budget:
                    f = cnd; break
            if f is None: break
            used += em.emit(f, lg_extra); n += 1
            lastk[f.kind] = k
            fill.remove(f)
    cur[0] = 10**6
    cooldown = {}
    while fill:
        f = pick()
        if f is None:
            em.nop(1); continue
        em.emit(f, lg_extra); fill.remove(f)
    return stalls

def verify(base, out):
    def trace(seq):
        lastw = {}; res = {}
        for i in seq:
            res[id(i)] = tuple(id(lastw.get(r)) for r in i.reads)
            for r in i.writes: lastw[r] = i
        return res, {r: id(w) for r, w in lastw.items()}
    a, fa = trace(base); b, fb = trace([i for i in out if i.kind not in ("wait", "nop")])
    for i in base:
        assert a[id(i)] == b[id(i)], f"dataflow changed at {i.text}"
    assert fa == fb
    lastw = {}; readers = {}
    for i in out:
        def chk(p, typ, r):
            d = hazard(p, i, typ, r)
            have = i.pos - (p.pos + p.states)
            assert have >= d, f"hazard {typ} {r}: {p.text} -> {i.text}: have {have} need {d}"
        for r in i.reads:
            if r in lastw: chk(lastw[r], "RAW", r)
        for r in i.writes:
            if r in lastw: chk(lastw[r], "WAW", r)
            for p in readers.get(r, []):
                if p is not i: chk(p, "WAR", r)
        for r in i.reads: readers.setdefault(r, []).append(i)
        for r in i.writes:
            lastw[r] = i; readers[r] = []
```

```python
import sys, struct, argparse
import sched
from sched import *

KN = "standalone__swin_window_attn__vision_kernel"
XBYTES = 19267584
SCALE = (192 ** -0.5) * 1.4426950408889634
def f32bits(x): return struct.unpack("<I", struct.pack("<f", x))[0]
HDR = open("standalone__swin_window_attn__vision.s.ref").read().split("; Override launch")[0]
WS_STAMP = 0x1000000
WS_FLAG = 0x40000
WS_EPOCH = 0x50000

def woff(mat, t):
    return 90112 + t * 12288 if mat == 0 else t * 12288

X = lambda tt, s: (tt * 12 + s) * 4
WR0 = 96
ACC = lambda b, k: 16 + (b * 2 + k) * 16
ST = lambda kt, qt: 80 + (kt * 2 + qt) * 16
CB = lambda i: 144 + 16 * i
PB = lambda qt, kt, a: 208 + ((qt * 2 + kt) * 2 + a) * 4
OB = lambda b: 240 + 8 * b
VO = 1
VL = [3, 4, 5]
VPD = 15
VW = [2, 6]
VR = 15
SO = [44, 45, 46, 47]
OSRD = ["s[12:15]", "s[72:75]"]

def mfma(d, ak, a, bk, b, first, tag=""):
    c = "0" if first else rng("v", d, 16)
    rd = R(ak, a, 4) + R(bk, b, 4) + ([] if first else R("v", d, 16))
    return Ins(f"v_mfma_f32_32x32x16_bf16 {rng('v', d, 16)}, {rng(ak, a, 4)}, {rng(bk, b, 4)}, {c}",
               "mfma", rd, R("v", d, 16), srcc=([] if first else R("v", d, 16)), tag=tag)

def valu(op, d, *src, kind="valu", lead=0.0):
    rd = [s for s in src if isinstance(s, str) and s[0] in "vs" and s[1:].isdigit()]
    return Ins(f"{op} {d}, " + ", ".join(str(s) for s in src), kind, rd, [d], lead=lead)

def cvt(d, s0, lead=0.0):
    return valu("v_cvt_pk_bf16_f32", f"v{d}", f"v{s0}", f"v{s0+1}", lead=lead)

class Body:
    def __init__(self, opt):
        self.opt = opt
        self.base = []
        self.nfrag = 0
        self.nob = 0
        self.mf = []
    def add(self, i):
        self.base.append(i); return i
    def wfrag(self, mat, t, s):
        slot = self.nfrag % self.opt.ring; self.nfrag += 1
        reg = WR0 + 4 * slot
        off = woff(mat, t) + s * 1024
        self.add(Ins(f"ds_read_b128 {rng('a', reg, 4)}, v{VL[off >> 16]} offset:{off & 0xffff}", "dsr",
                     [f"v{VL[off >> 16]}", f"L:{mat}:{t}"], R("a", reg, 4), lead=self.opt.dslead))
        return reg
    def cvt16(self, dst, src, lead=0.0):
        for d in range(8): self.add(cvt(dst + d, src + 2 * d, lead))
    def softmax(self, qt):
        vals = [ST(kt, qt) + r for kt in range(2) for r in range(16)]
        t0 = 7 + 4 * qt
        m0, m1, l0, l1 = (f"v{t0+i}" for i in range(4))
        for ch, m in ((vals[:16], m0), (vals[16:], m1)):
            self.add(valu("v_max3_f32", m, f"v{ch[0]}", f"v{ch[1]}", f"v{ch[2]}"))
            for k in range(3, 15, 2):
                self.add(valu("v_max3_f32", m, m, f"v{ch[k]}", f"v{ch[k+1]}"))
        self.add(valu("v_max3_f32", m0, m0, f"v{vals[15]}", f"v{vals[31]}"))
        self.add(valu("v_max_f32", m0, m0, m1))
        self.add(valu("v_mov_b32", m1, m0))
        self.add(Ins(f"v_permlane32_swap_b32 {m0}, {m1}", "perm", [m0, m1], [m0, m1]))
        self.add(valu("v_max_f32", m0, m0, m1))
        for k, v in enumerate(vals):
            self.add(valu("v_sub_f32", f"v{v}", f"v{v}", m0))
            self.add(valu("v_exp_f32", f"v{v}", f"v{v}", kind="trans"))
            l = l0 if k % 2 == 0 else l1
            if k >= 2:
                if k < 4:
                    self.add(valu("v_add_f32", l, f"v{vals[k-2]}", f"v{v}"))
                else:
                    self.add(valu("v_add_f32", l, l, f"v{v}"))
        self.add(valu("v_add_f32", l0, l0, l1))
        self.add(valu("v_mov_b32", l1, l0))
        self.add(Ins(f"v_permlane32_swap_b32 {l0}, {l1}", "perm", [l0, l1], [l0, l1]))
        self.add(valu("v_add_f32", l0, l0, l1))
        self.add(valu("v_rcp_f32", l0, l0, kind="trans"))
        for kt in range(2):
            for a in range(2):
                for d in range(4):
                    s = ST(kt, qt) + 8 * a + 2 * d
                    self.add(valu("v_mul_f32", f"v{s}", f"v{s}", l0))
                    self.add(valu("v_mul_f32", f"v{s+1}", f"v{s+1}", l0))
                    self.add(cvt(PB(qt, kt, a) + d, s))
    def Sblk(self, t, qt, cb):
        for a in range(2):
            for kt in range(2):
                self.add(mfma(ST(kt, qt), "a", X(kt, 2 * t + a), "v", cb + 4 * a, t == 0 and a == 0, tag=f"S{t}{qt}"))
    def Omf(self, t, qt, kt):
        oo = ST(t % 2, qt)
        for a in range(2):
            self.add(mfma(oo, "v", CB(t % 4) + 8 * kt + 4 * a, "v", PB(qt, kt, a), kt == 0 and a == 0, tag=f"O{t}{qt}"))
    def Oout(self, t, qt):
        oo = ST(t % 2, qt)
        par = self.nob % 2; self.nob += 1
        ob = OB(par)
        fl = self.opt.stflags; L = self.opt.stlead
        for d in range(8): self.add(cvt(ob + d, oo + 2 * d, lead=L))
        def s1(dst):
            for d in range(4):
                self.add(Ins(f"v_cndmask_b32_dpp v{dst+d}, v{ob+4+d}, v{ob+d}, vcc quad_perm:[0,0,2,2] row_mask:0xf bank_mask:0xf",
                             "perm", [f"v{ob+4+d}", f"v{ob+d}", "vcc"], [f"v{dst+d}"], lead=L))
        def s2(dst):
            for d in range(4):
                self.add(Ins(f"v_cndmask_b32_dpp v{dst+d}, v{ob+d}, v{ob+4+d}, vcc quad_perm:[1,1,3,3] row_mask:0xf bank_mask:0xf",
                             "perm", [f"v{ob+4+d}", f"v{ob+d}", "vcc"], [f"v{dst+d}"], lead=L))
        def st(reg, odd):
            if self.opt.nostore: return
            self.add(Ins(f"buffer_store_dwordx4 {rng('v', reg, 4)}, v{VO}, {OSRD[qt]}, s{SO[2*qt]} offen offset:{64*t + 384*odd}{fl}",
                         "vst", R("v", reg, 4) + [f"v{VO}"], [], lead=L))
        flip = Ins("s_not_b64 vcc, vcc", "salu", ["vcc"], ["vcc"], lead=L)
        if par == 0:
            s1(oo); st(oo, 0); self.add(flip); s2(ob + 4); st(ob + 4, 1)
        else:
            s2(oo); st(oo, 1); self.add(flip); s1(ob); st(ob, 0)
    def Oblk(self, t, qt):
        self.Omf(t, qt, 0); self.Omf(t, qt, 1); self.Oout(t, qt)
    def bar(self, tiles, after, text="s_barrier"):
        return self.add(Ins(text, "bar", [], [f"L:{m}:{t}" for m, t in tiles], after=after))
    def flushS(self, pend):
        t, qt, acc, cb = pend
        self.cvt16(cb, acc)
        self.Sblk(t, qt, cb)
        if t == 5: self.softmax(qt)

    def build(self, nq):
        opt = self.opt
        SI = opt.sins
        pend = None
        blk = 0
        lastm = None
        allN = [(1, tn) for tn in range(6)]
        for qt in range(nq):
            for t in range(6):
                acc = ACC((blk // 2) % 2, blk % 2)
                if blk == 1: self.bar([(0, 1)], self.mf[opt.b1at])
                if blk == 2: self.bar([(0, 2)], self.mf[opt.b2at])
                if blk == 3: self.bar([(0, 3), (0, 4), (0, 5)], self.mf[opt.b3at])
                if blk == opt.b4blk: self.bar(allN, lastm, "s_waitcnt vmcnt(0)\n  s_barrier")
                for s in range(12):
                    if s == SI and pend is not None:
                        self.flushS(pend); pend = None
                    w = self.wfrag(0, t, s)
                    lastm = self.add(mfma(acc, "a", w, "a", X(qt, s), s == 0, tag=f"T{t}{qt}"))
                    self.mf.append(lastm)
                    if blk == 6 and s == 0: self.join = lastm
                pend = (t, qt, acc, CB((blk // 2) % 4) + 8 * (blk % 2))
                blk += 1
        if nq == 2:
            pos = {(1,4): [(0,0)], (2,4): [(1,0)], (2,8): [(0,1)], (3,0): [(1,1)], (3,4): [(2,0)], (3,9): [(2,1)],
                   (4,4): [(3,0)], (4,9): [(3,1)], (5,4): [(4,0)], (opt.o41 // 12, opt.o41 % 12): [(4,1)]}
        else:
            pos = {(2,8): [(0,0)], (3,0): [(1,0)], (3,6): [(2,0)], (4,4): [(3,0)], (6,0): [(4,0)]}
        yb = (blk // 2) % 2
        if nq == 1: yb = 1
        for t in range(6):
            steps = [(s, None) for s in range(12)] if t < 5 else [(s, 0) for s in range(12)] + [(s, 1) for s in range(12)]
            for n, (s, only) in enumerate(steps):
                p = n if t < 5 else n // 2 if n % 2 == 0 else -1
                if p == SI // 2 + 1 and pend is not None:
                    self.flushS(pend); pend = None
                if p == 4 and t >= 1:
                    for kt in range(2): self.cvt16(CB((t - 1) % 4) + 8 * kt, ACC((t - 1 + yb) % 2, kt))
                for ob in pos.get((t, p), []): self.Oblk(*ob)
                w = self.wfrag(1, t, s)
                for kt in range(2):
                    if only is None or only == kt:
                        self.add(mfma(ACC((t + yb) % 2, kt), "a", X(kt, s), "a", w, s == 0, tag=f"Y{t}"))
        L = self.opt.stlead + 5
        self.cvt16(CB(5 % 4), ACC((5 + yb) % 2, 0), lead=L)
        for ob in pos.get((6, 0), []): self.Oblk(*ob)
        for qt in range(nq): self.Omf(5, qt, 0)
        self.cvt16(CB(5 % 4) + 8, ACC((5 + yb) % 2, 1), lead=L)
        for qt in range(nq):
            self.Omf(5, qt, 1)
        for qt in range(nq):
            self.Oout(5, qt)

def stamp(A, opt, k):
    if opt.stamps:
        A(f"  s_memrealtime s[{56+2*k}:{57+2*k}]")
        A(f"  s_memtime s[{76+2*k}:{77+2*k}]")
        A(f"  s_waitcnt lgkmcnt(0)")

def stamp_out(A, opt):
    if not opt.stamps: return
    for k in range(8): A(f"  v_mov_b32 v{16+k}, s{56+2*k}")
    for k in range(8): A(f"  v_mov_b32 v{24+k}, s{76+2*k}")
    A(f"  s_lshl_b32 s26, s2, 2\n  s_add_u32 s26, s26, s20\n  s_lshl_b32 s26, s26, 5\n  s_add_u32 s26, s26, {WS_STAMP}")
    A("  s_mov_b32 s18, 0x10000000")
    A("  v_mov_b32 v7, 0")
    A("  buffer_store_dwordx4 v[16:19], v7, s[16:19], s26 offen")
    A("  buffer_store_dwordx4 v[20:23], v7, s[16:19], s26 offen offset:16")
    A("  s_add_u32 s26, s26, 0x10000")
    A("  buffer_store_dwordx4 v[24:27], v7, s[16:19], s26 offen")
    A("  buffer_store_dwordx4 v[28:31], v7, s[16:19], s26 offen offset:16")

def bound(A, label):
    A("  s_add_u32 s92, s92, 1")
    A("  s_cmp_gt_u32 s92, 50000")
    A(f"  s_cbranch_scc1 {label}_x")

def check_issue(A):
    A("  buffer_load_dwordx2 v[14:15], off, s[36:39], 0 sc1")
    A("  buffer_load_dwordx2 v[12:13], v2, s[16:19], s93 offen sc1")

def spin_first(A, opt):
    A("  s_branch L_pollA_0")
    A("L_pollA:")
    A(f"  s_sleep {opt.sleep}")
    check_issue(A)
    bound(A, "L_pollA")
    A("L_pollA_0:")
    A("  s_waitcnt vmcnt(0)")
    A("  v_cmp_ne_u64 vcc, v[12:13], v[14:15]")
    A("  v_cmp_eq_u32 s[26:27], 0, v14")
    A("  s_nop 1")
    A("  s_or_b64 vcc, vcc, s[26:27]")
    A("  s_and_b32 s26, vcc_lo, 0x3f")
    A("  s_cbranch_scc1 L_pollA")
    A("L_pollA_x:")

def spin_flags(A, label, sreg, sleep):
    A(f"  s_branch {label}_0")
    A(f"{label}:")
    A(f"  s_sleep {sleep}")
    A(f"{label}_0:")
    A(f"  buffer_load_dwordx2 v[12:13], v2, s[16:19], {sreg} offen sc1")
    bound(A, label)
    A("  s_waitcnt vmcnt(0)")
    A("  v_cmp_ne_u64 vcc, v[12:13], v[14:15]")
    A(f"  s_cbranch_vccnz {label}")
    A(f"{label}_x:")

def stage_offsets(A, rowx):
    for k in range(3):
        A(f"  v_add_u32 v9, {64*k}, v8")
        A("  v_mul_u32_u24 v9, 0xaab, v9")
        if rowx:
            A("  v_lshrrev_b32 v10, 16, v9")
            A(f"  v_mul_u32_u24 v10, {rowx}, v10")
        A("  v_lshrrev_b32 v9, 17, v9")
        A("  v_xor_b32 v9, v9, v8")
        if rowx:
            A("  v_xor_b32 v11, 4, v9")
            A(f"  v_lshl_add_u32 v{16+2*k}, v9, 4, v10")
            A(f"  v_lshl_add_u32 v{17+2*k}, v11, 4, v10")
        else:
            A(f"  v_lshlrev_b32 v{16+2*k}, 4, v9")
            A(f"  v_xor_b32 v{17+2*k}, 64, v{16+2*k}")

def frag_addrs(A, jreg, base):
    A(f"  v_mul_u32_u24 v10, 384, {jreg}")
    A(f"  v_add_u32 v10, {base}, v10")
    A(f"  v_bfe_u32 v11, {jreg}, 1, 3")
    A("  v_lshrrev_b32 v12, 5, v8")
    A("  v_xor_b32 v11, v11, v12")
    for m in range(4):
        A(f"  v_xor_b32 v13, {2*m}, v11")
        A(f"  v_lshl_add_u32 v{24+m}, v13, 4, v10")

def fold(A, opt):
    SC = 73728
    A("  s_cmp_ge_u32 s2, 36")
    A("  s_cselect_b32 s51, 36, 0")
    A("  s_cselect_b64 vcc, -1, 0")
    A("  s_cselect_b32 s50, 768, 0")
    A("  s_cselect_b32 s21, 64, 36864")
    A("  s_cselect_b32 s24, 0, 384")
    A("  s_cselect_b32 s25, 18432, s10")
    A("  s_cselect_b32 s34, 73728, s30")
    A("  s_sub_u32 s51, s2, s51")
    A("  s_mul_i32 s48, s51, 43")
    A("  s_lshr_b32 s48, s48, 8")
    A("  s_mul_i32 s49, s48, 6")
    A("  s_sub_u32 s49, s51, s49")
    A("  s_mul_i32 s22, s49, 36864")
    A("  s_add_u32 s22, s22, s50")
    A("  s_mul_i32 s23, s48, s21")
    A("  s_add_u32 s23, s23, s24")
    stage_offsets(A, 768)
    A("  v_lshrrev_b32 v14, 2, v8")
    A("  v_mul_u32_u24 v14, 384, v14")
    A("  v_and_b32 v13, 3, v8")
    A("  v_lshl_add_u32 v14, v13, 4, v14")
    for k in range(3):
        if k: A(f"  v_add_u32 v14, 5120, v14")
        A(f"  v_cndmask_b32 v{144+2*k}, v{16+2*k}, v14, vcc")
        A(f"  v_cndmask_b32 v{145+2*k}, v{17+2*k}, v14, vcc")
    A("  s_waitcnt lgkmcnt(0)")
    A("  s_cmp_ge_u32 s2, 36")
    A("  s_mov_b64 s[28:29], s[6:7]")
    A("  s_cselect_b64 s[32:33], s[40:41], s[6:7]")
    def panel(sreg, lds, v0, srd, step):
        for r in range(4):
            A(f"  s_mov_b32 m0, {lds + 3072*r}")
            if r: A(f"  s_add_u32 {sreg}, {sreg}, {step}")
            else: A("  s_nop 0")
            for k in range(3):
                A(f"  buffer_load_dwordx4 v{v0+2*k+(r%2)}, {srd}, {sreg} offen offset:{1024*k}{opt.wf} lds")
    panel("s23", SC + 12288, 144, "s[32:35]", "s25")
    panel("s22", SC, 16, "s[28:31]", 9216)
    srd_consts(A, opt, True)
    srd_bases(A, True)
    A(f"  s_mov_b32 s95, {WS_EPOCH}")
    A("  buffer_load_dwordx2 v[6:7], off, s[16:19], s95 sc1")
    stamp(A, opt, 7)
    if opt.bh: A("  s_barrier")
    helper_misc(A, opt)
    A("  v_and_b32 v9, 0x13, v8")
    A("  v_and_b32 v10, 4, v8")
    A("  v_lshl_or_b32 v9, v10, 1, v9")
    A("  v_and_b32 v10, 8, v8")
    A("  v_lshrrev_b32 v10, 1, v10")
    A("  v_or_b32 v9, v9, v10")
    frag_addrs(A, "v9", SC)
    A("  v_bfe_u32 v14, v8, 2, 2")
    A("  v_lshl_add_u32 v14, v12, 3, v14")
    A("  v_lshlrev_b32 v14, 6, v14")
    A("  v_bfe_u32 v13, v8, 4, 1")
    A("  v_lshl_add_u32 v14, v13, 4, v14")
    A("  v_and_b32 v13, 1, v8")
    A("  v_lshl_add_u32 v14, v13, 5, v14")
    A("  v_bfe_u32 v13, v8, 1, 1")
    A("  v_lshl_add_u32 v14, v13, 3, v14")
    A(f"  v_add_u32 v14, {SC + 12288}, v14")
    A("  s_mul_i32 s26, s48, 12288")
    A(f"  s_add_u32 s27, s26, {woff(0,0)}")
    A("  s_lshl_b32 s54, s49, 11")
    A("  s_cmp_ge_u32 s2, 36")
    A("  s_cselect_b32 s26, s26, s27")
    A(f"  s_cselect_b32 s27, 1.0, {f32bits(SCALE):#x}")
    A("  s_add_u32 s26, s26, s54")
    A(f"  s_lshl_b32 s54, s2, {opt.fsh}")
    A(f"  s_add_u32 s54, s54, {WS_FLAG}")
    if opt.fstamp: stamp(A, opt, 5)
    A("  s_waitcnt vmcnt(13)")
    if opt.fstamp: stamp(A, opt, 3)
    A("  s_cbranch_vccnz L_fold_tr")
    for s in range(12):
        A(f"  ds_read_b128 v[{80+4*s}:{83+4*s}], v{24+s%4} offset:{(s//4)*128 + 12288}")
    A("  s_branch L_fold_a")
    A("L_fold_tr:")
    for s in range(12):
        for jj in range(2):
            A(f"  ds_read_b64_tr_b16 v[{80+4*s+2*jj}:{81+4*s+2*jj}], v14 offset:{1024*s + 256*jj}")
        if s == 6: A("  s_waitcnt lgkmcnt(0)")
    A("L_fold_a:")
    A("  s_waitcnt vmcnt(1) lgkmcnt(0)")
    if opt.fstamp: stamp(A, opt, 4)
    for s in range(12):
        A(f"  ds_read_b128 v[{32+4*s}:{35+4*s}], v{24+s%4} offset:{(s//4)*128}")
    for s in range(12):
        c = "0" if s == 0 else "v[128:143]"
        A(f"  s_waitcnt lgkmcnt({11-s})")
        A(f"  v_mfma_f32_32x32x16_bf16 v[128:143], v[{32+4*s}:{35+4*s}], v[{80+4*s}:{83+4*s}], {c}")
    stamp(A, opt, 1)
    A("  s_waitcnt vmcnt(0)")
    A("  v_add_co_u32 v6, vcc, 2, v6")
    A("  s_nop 1")
    A("  v_addc_co_u32 v7, vcc, 0, v7, vcc")
    A("  v_or_b32 v6, 1, v6")
    A("  s_nop 5")
    for d in range(8):
        A(f"  v_mul_f32 v{128+2*d}, s27, v{128+2*d}")
        A(f"  v_mul_f32 v{129+2*d}, s27, v{129+2*d}")
        A(f"  v_cvt_pk_bf16_f32 v{32+d}, v{128+2*d}, v{129+2*d}")
        if d == 3: A(f"  buffer_store_dwordx4 v[32:35], v{VL[0]}, s[16:19], s26 offen sc1")
    A(f"  buffer_store_dwordx4 v[36:39], v{VL[0]}, s[16:19], s26 offen offset:1024 sc1")
    A("  s_mov_b64 exec, 1")
    A("  s_cmp_lg_u32 s2, 0")
    A("  s_cbranch_scc1 L_fold_pub")
    A("  buffer_store_dwordx2 v[6:7], off, s[36:39], 0 sc1")
    A("  s_waitcnt vmcnt(1)")
    A("  s_branch L_fold_pub2")
    A("L_fold_pub:")
    A("  s_waitcnt vmcnt(0)")
    A("L_fold_pub2:")
    stamp(A, opt, 2)
    A("  buffer_store_dwordx2 v[6:7], off, s[16:19], s54 sc1")
    A("  s_mov_b64 exec, -1")
    stamp(A, opt, 6)
    A("  s_branch L_loader")

def helper_misc(A, opt):
    A("  s_mov_b32 s14, 0")
    A(f"  v_mov_b32 v{VO}, 0")
    A("  v_min_u32 v2, 35, v8")
    A(f"  v_lshlrev_b32 v2, {opt.fsh}, v2")
    A("  s_lshr_b32 s26, s2, 3")
    A("  s_mul_i32 s27, s26, 57")
    A("  s_lshr_b32 s27, s27, 9")
    A("  s_mul_i32 s27, s27, 9")
    A("  s_sub_u32 s26, s26, s27")
    A("  s_lshl_b32 s26, s26, 13")
    A("  v_lshl_add_u32 v28, v8, 7, s26")
    A(f"  s_mov_b32 s3, {woff(0, 0)}")

def srd_consts(A, opt, prod=False):
    A(f"  s_mov_b32 s10, {XBYTES}\n  s_mov_b32 s11, 0x00020000")
    A(f"  s_mov_b32 s15, 0x00020000")
    A("  s_mov_b32 s18, 0x60000\n  s_mov_b32 s19, 0x00020000")
    A("  s_mov_b32 s38, 256\n  s_mov_b32 s39, 0x00020000")
    A(f"  s_mov_b32 s74, {XBYTES}\n  s_mov_b32 s75, 0x00020000")
    A(f"  s_mov_b32 s93, {WS_FLAG}")
    A(f"  s_mov_b32 s94, {WS_FLAG + (36 << opt.fsh)}")
    A("  s_mov_b32 s92, 0")

def srd_bases(A, prod=False):
    if not prod: A("  s_waitcnt lgkmcnt(0)")
    A("  s_mov_b64 s[8:9], s[4:5]\n  s_mov_b64 s[16:17], s[54:55]\n  s_mov_b64 s[36:37], s[52:53]")
    A("  s_mov_b64 s[12:13], s[42:43]\n  s_mov_b64 s[72:73], s[42:43]")

def emit_body(A, opt, nq, em, pre, stmap, pre_lines):
    b = Body(opt); b.build(nq)
    log = []
    sched.COST["vst"] = opt.vstcost
    sched.COST["dsw"] = opt.dswcost
    stalls = schedule(pre + b.base, em, budget=opt.budget, maxfill=opt.maxfill, lg_extra=opt.lgextra, log=log,
                      prefill=7, cooldown={'vst': opt.stcool})
    verify(pre + b.base, em.out)
    nm = sum(1 for i in em.out if i.kind == "mfma")
    sys.stderr.write(f"body{nq}: instrs {len(em.out)} mfma {nm} forced-cycles {stalls}\n")
    if opt.log:
        for l in log: sys.stderr.write(str(l) + "\n")
    ji = em.out.index(b.join)
    if em.out[ji - 1].kind == "wait": ji -= 1
    live = []
    for k, i in enumerate(em.out[:ji]):
        if i.kind != "dsr": continue
        w = set(i.writes)
        later_w = any(j.kind == "dsr" and set(j.writes) & w for j in em.out[k + 1:ji])
        used_before = any(j.kind == "mfma" and set(j.reads) & w for j in em.out[k + 1:ji])
        if not later_w and not used_before: live.append(i.text)
    opt.join_reads = live
    lines = list(pre_lines)
    L = lines.append
    nb = 0
    for k, i in enumerate(em.out):
        if k == ji: L("L_join:")
        for t in i.text.split("\n"): L("  " + t.strip() + (f"   ; {i.tag}" if i.tag else ""))
        if opt.stamps and i.kind == "bar":
            if nb in stmap:
                L("  s_waitcnt lgkmcnt(0)")
                stamp(L, opt, stmap[nb])
            nb += 1
    if opt.stamps:
        stamp(L, opt, 6)
        L("  s_waitcnt vmcnt(0)")
        stamp(L, opt, 7)
        stamp_out(L, opt)
    L("  s_endpgm")
    lines = [x for l in lines for x in l.split("\n")]
    sizes = insn_sizes([l for l in lines if not l.endswith(":")])
    total = sum(sizes)
    sys.stderr.write(f"body bytes {total}\n")
    npad = (total + 16) // 4096 if opt.pads else 0
    addr = 0; k = 0; placed = 0
    for l in lines:
        if l.endswith(":"):
            A(l); continue
        if placed < npad and addr >= 4096 * (placed + 1):
            placed += 1
            A(f"L_pad{placed}:")
            A(f"  s_cbranch_execz {'L_pad%d' % (placed + 1) if placed < npad else 'L_padret'}")
            addr += 4
        A(l); addr += sizes[k]; k += 1
    assert placed == npad

def insn_sizes(lines):
    import subprocess, tempfile, re, os
    src = '.amdgcn_target "amdgcn-amd-amdhsa--gfx950"\n.text\nL_pad1:\n' + "\n".join(lines) + "\n"
    open("_sz.s", "w").write(src)
    subprocess.check_call(["clang", "-x", "assembler", "-target", "amdgcn-amd-amdhsa", "-mcpu=gfx950", "-c", "_sz.s", "-o", "_sz.o"])
    out = subprocess.check_output(["llvm-objdump", "-d", "--mcpu=gfx950", "_sz.o"]).decode()
    res = []
    for l in out.splitlines():
        m = re.search(r"// [0-9A-F]{12}: ((?:[0-9A-F]{8} ?)+)", l)
        if m: res.append(4 * len(m.group(1).split()))
    assert len(res) == len(lines), (len(res), len(lines))
    return res

def win_base(A):
    A("  s_mul_hi_u32 s23, s21, 153391690")
    A("  s_mul_i32 s24, s23, 28")
    A("  s_sub_u32 s24, s21, s24")
    A("  s_mul_i32 s23, s23, 688128")
    A("  s_mul_i32 s24, s24, 3072")
    A(f"  s_add_u32 s{SO[0]}, s23, s24")

def x_row(A, r):
    A(f"  s_add_u32 m0, s24, {3072*r}")
    if r % 4: A("  s_add_u32 s25, s25, 86016")
    else: A(f"  s_mov_b32 s25, s{SO[r // 2]}")

def x_load(A, opt, r, k):
    A(f"  buffer_load_dwordx4 v{16+2*k+(r%2)}, s[8:11], s25 offen offset:{1024*k}{opt.xf} lds")

def x_frags(A, tt):
    for s in range(12):
        A(f"  ds_read_b128 {rng('a', X(tt, s), 4)}, v{24+s%4} offset:{(s//4)*128 + tt*12288}")

def win_addrs(A):
    A(f"  v_add_u32 v{VL[1]}, 0x10000, v{VL[0]}")
    A(f"  v_add_u32 v{VL[2]}, 0x20000, v{VL[0]}")
    A("  v_and_b32 v9, 31, v8")
    frag_addrs(A, "v9", "s24")

def out_addrs(A):
    A("  v_bfe_u32 v9, v8, 3, 2")
    A("  v_mul_u32_u24 v9, 86016, v9")
    A("  v_and_b32 v10, 6, v8")
    A("  v_mul_u32_u24 v10, 384, v10")
    A("  v_and_b32 v11, 1, v8")
    A("  v_lshlrev_b32 v11, 4, v11")
    A("  v_and_b32 v12, 32, v8")
    A("  v_or_b32 v11, v11, v12")
    A(f"  v_add3_u32 v{VO}, v9, v10, v11")

def main_kernel(opt):
    o = []
    A = o.append
    A(f".globl {KN}\n.p2align 12\n.p2align 8\n.type {KN},@function\n{KN}:")
    stamp(A, opt, 0)
    A("  s_load_dwordx4 s[4:7], s[0:1], 0")
    A("  s_load_dwordx4 s[40:43], s[0:1], 16")
    A("  s_load_dwordx4 s[52:55], s[0:1], 32")
    A("  v_lshrrev_b32 v7, 6, v0")
    A("  s_cmp_ge_u32 s2, 256")
    A("  s_cbranch_scc1 L_end")
    A("  v_readfirstlane_b32 s20, v7")
    A("  v_and_b32 v8, 63, v0")
    A(f"  v_lshlrev_b32 v{VL[0]}, 4, v8")
    A("  s_cmp_lg_u32 s20, 3")
    A("  s_cbranch_scc1 L_window")
    A("  s_cmp_ge_u32 s2, 72")
    A("  s_cbranch_scc1 L_pref")
    A("  s_mov_b32 s30, 221184\n  s_mov_b32 s31, 0x00020000\n  s_mov_b32 s35, 0x00020000\n  s_mov_b32 s10, 9216")
    fold(A, opt)
    nl = [0]
    def hdma(mat, t, n=1):
        nl[0] += 1
        A(f"  s_mov_b32 m0, {woff(mat, t)}")
        A("  s_nop 0")
        A(f"L_fill{nl[0]}:")
        for k in range(4):
            A(f"  buffer_load_dwordx4 v{VL[0]}, s[16:19], m0 offen offset:{1024*k} sc1 lds")
        A("  s_add_u32 m0, m0, 4096")
        A(f"  s_cmp_lt_u32 m0, {woff(mat, t) + 12288*n}")
        A(f"  s_cbranch_scc1 L_fill{nl[0]}")
    A(".p2align 6")
    A("L_window:")
    A("  s_mul_i32 s21, s2, 3")
    A("  s_add_u32 s21, s21, s20")
    win_base(A)
    A(f"  s_add_u32 s{SO[2]}, s{SO[0]}, 344064")
    A("  s_mul_i32 s24, s20, 24576")
    A(f"  s_mov_b32 s14, {XBYTES}")
    stage_offsets(A, 0)
    srd_consts(A, opt)
    srd_bases(A)
    if opt.fastp:
        A(f"  s_sub_u32 s26, s2, {opt.p0}")
        A(f"  s_cmp_lt_u32 s26, {opt.pn - opt.p0}")
        A("  s_cselect_b64 vcc, -1, 0")
    if opt.bh:
        A("  s_cmp_ge_u32 s2, 72")
        A("  s_cbranch_scc1 L_nobh")
        A("  s_barrier")
        A("L_nobh:")
    n = 0
    if opt.fstamp: stamp(A, opt, 1)
    for r in range(8):
        x_row(A, r)
        for k in range(3):
            if n >= opt.xwin:
                if opt.fastp: A(f"  s_cbranch_vccnz L_xs{n}")
                A(f"  s_waitcnt vmcnt({opt.xwin-1})")
                if opt.fastp:
                    A(f"L_xs{n}:")
                    if n >= opt.fastp: A(f"  s_waitcnt vmcnt({opt.fastp-1})")
            x_load(A, opt, r, k)
            n += 1
        if r == 1:
            win_addrs(A)
            out_addrs(A)
    if not opt.fstamp: stamp(A, opt, 1)
    A(f"  s_waitcnt vmcnt({opt.pollat})")
    A("  s_barrier")
    x_frags(A, 0)
    A("  s_mov_b32 vcc_lo, 0x55555555\\n  s_mov_b32 vcc_hi, 0x55555555".replace("\\n", "\n"))
    if opt.pads:
        A("  s_mov_b64 exec, 0")
        A("  s_branch L_pad1")
    else:
        A("  s_branch L_padret")
    A(".p2align 6")
    A("L_pref:")
    srd_consts(A, opt)
    helper_misc(A, opt)
    srd_bases(A)
    if opt.pref:
        A("  s_getpc_b64 s[48:49]")
        A("L_pc:")
        A(f"  s_sub_u32 s48, s48, L_pc-{KN}")
        A("  s_subb_u32 s49, s49, 0")
        A("  s_lshr_b32 s26, s2, 3")
        A(f"  s_and_b32 s26, s26, {opt.prefn - 1}")
        A("  s_lshl_b32 s26, s26, 13")
        A("  v_lshl_add_u32 v9, v8, 7, s26")
        A(f"  v_min_u32 v9, L_last-{KN}, v9")
        A("  global_load_dword v29, v9, s[48:49]")
    A("  s_add_u32 s21, s2, 1312")
    A("  s_and_b32 s22, s21, 1")
    A("  s_lshr_b32 s21, s21, 1")
    win_base(A)
    A("  s_mul_i32 s22, s22, 344064")
    A(f"  s_add_u32 s{SO[2]}, s{SO[0]}, 344064")
    A(f"  s_sub_u32 s{SO[2]}, s{SO[2]}, s22")
    A(f"  s_add_u32 s{SO[0]}, s{SO[0]}, s22")
    A("  s_mov_b32 s24, 65536")
    stage_offsets(A, 0)
    if opt.crow < 8:
        A("  s_cmp_lt_u32 s2, 224")
        A("  s_cbranch_scc1 L_loader")
        n = 0
        for r in range(opt.crow, 8):
            A(f"  s_add_u32 m0, s24, {3072*r}")
            A(f"  s_add_u32 s25, s{SO[2*(r//4)]}, {86016*(r%4)}")
            for k in range(3):
                if n >= opt.cwin: A(f"  s_waitcnt vmcnt({opt.cwin-1})")
                x_load(A, opt, r, k); n += 1
    win_addrs(A)
    out_addrs(A)
    A("  s_branch L_loader")
    A(".p2align 12")
    pl = []
    P = pl.append
    P("L_padret:")
    if opt.pads: P("  s_mov_b64 exec, -1")
    P("  s_waitcnt vmcnt(0) lgkmcnt(0)")
    x_frags(P, 1)
    P("  s_waitcnt lgkmcnt(0)")
    stamp(P, opt, 2)
    P("  s_barrier")
    stamp(P, opt, 3)
    emit_body(A, opt, 2, Emitter(), [], {2: 4, 3: 5}, pl)
    A(".p2align 6")
    A("L_loader:")
    A("  s_barrier")
    check_issue(A)
    spin_first(A, opt)
    if not opt.fstamp: stamp(A, opt, 3)
    hdma(0, 0)
    A("  s_cmp_eq_u64 vcc, 0")
    A("  s_cbranch_scc1 L_pollB_x")
    spin_flags(A, "L_pollB", "s93", opt.sleep)
    e = 0
    if opt.scout:
        A("  buffer_load_dword v29, v28, s[16:19], s3 offen sc1"); e = 1
    hdma(0, 1)
    A(f"  s_waitcnt vmcnt({12+e}) lgkmcnt(0)")
    if not opt.fstamp: stamp(A, opt, 4)
    A("  s_barrier")
    A("  buffer_load_dwordx2 v[12:13], v2, s[16:19], s94 offen sc1")
    hdma(0, 2)
    A("  s_waitcnt vmcnt(13)")
    A("  s_barrier")
    hdma(0, 3, 2)
    A("  s_waitcnt vmcnt(24)")
    A("  s_barrier")
    hdma(0, 5)
    A("  v_cmp_ne_u64 vcc, v[12:13], v[14:15]")
    A("  s_cbranch_vccnz L_nlate")
    if opt.scout:
        A("  buffer_load_dword v29, v28, s[16:19], 0 offen sc1")
    hdma(1, 0)
    A(f"  s_waitcnt vmcnt({12+e})")
    A("  s_barrier")
    A("L_nback:")
    A("  s_cmp_lg_u32 s2, 0")
    A("  s_cbranch_scc1 L_noep")
    A("  s_mov_b64 exec, 1")
    A("  buffer_store_dwordx2 v[6:7], off, s[16:19], s95 sc1")
    A("  s_mov_b64 exec, -1")
    A("L_noep:")
    A("  s_cmp_ge_u32 s2, 224")
    A("  s_cbranch_scc1 L_late")
    hdma(1, 1, 4)
    A("  s_waitcnt vmcnt(48)")
    hdma(1, 5)
    if not opt.fstamp: stamp(A, opt, 5)
    A("  s_waitcnt vmcnt(0)")
    A("  s_barrier")
    stamp_out(A, opt)
    A("L_end:")
    A("  s_endpgm")
    A("L_nlate:")
    A("  s_waitcnt vmcnt(0)")
    A("  s_barrier")
    spin_flags(A, "L_pollN", "s94", opt.sleep)
    if opt.scout:
        A("  buffer_load_dword v29, v28, s[16:19], 0 offen sc1")
    hdma(1, 0)
    A("  s_branch L_nback")
    A("L_late:")
    for r in range(opt.crow):
        x_row(A, r)
        for k in range(3): x_load(A, opt, r, k)
    if opt.crow <= 4: x_frags(A, 1)
    hdma(1, 1, 2)
    A("  s_waitcnt vmcnt(24) lgkmcnt(0)")
    x_frags(A, 0)
    hdma(1, 3)
    if opt.crow > 4:
        A("  s_waitcnt lgkmcnt(0)")
        x_frags(A, 1)
    hdma(1, 4)
    A("  s_waitcnt lgkmcnt(0)")
    for t in opt.join_reads: A("  " + t)
    hdma(1, 5)
    if not opt.fstamp: stamp(A, opt, 5)
    A("  s_mov_b32 vcc_lo, 0x55555555\n  s_mov_b32 vcc_hi, 0x55555555")
    A("  s_waitcnt lgkmcnt(0)")
    A("  s_branch L_join")
    A("L_last:")
    A("  s_endpgm")
    return "\n".join(o)

def main():
    ap = argparse.ArgumentParser()
    ap.add_argument("--ring", type=int, default=12)
    ap.add_argument("--dslead", type=float, default=6.0)
    ap.add_argument("--stlead", type=float, default=40.0)
    ap.add_argument("--vstcost", type=int, default=24)
    ap.add_argument("--stcool", type=int, default=3)
    ap.add_argument("--sins", type=int, default=6)
    ap.add_argument("--b4blk", type=int, default=9)
    ap.add_argument("--b1at", type=int, default=5)
    ap.add_argument("--b2at", type=int, default=17)
    ap.add_argument("--b3at", type=int, default=29)
    ap.add_argument("--fastp", type=int, default=10)
    ap.add_argument("--pollat", type=int, default=4)
    ap.add_argument("--fsh", type=int, default=5)
    ap.add_argument("--wf", default="")
    ap.add_argument("--bh", type=int, default=1)
    ap.add_argument("--pads", type=int, default=1)
    ap.add_argument("--crow", type=int, default=4)
    ap.add_argument("--cwin", type=int, default=4)
    ap.add_argument("--o41", type=int, default=68)
    ap.add_argument("--dswcost", type=int, default=8)
    ap.add_argument("--bxn", type=int, default=24)
    ap.add_argument("--slowp", type=int, default=0)
    ap.add_argument("--slown", type=int, default=10)
    ap.add_argument("--pn", type=int, default=72)
    ap.add_argument("--p0", type=int, default=36)
    ap.add_argument("--fstamp", type=int, default=0)
    ap.add_argument("--swapmn", type=int, default=0)
    ap.add_argument("--scout", type=int, default=1)
    ap.add_argument("--prefn", type=int, default=2)
    ap.add_argument("--presleep", type=int, default=0)
    ap.add_argument("--pausen", type=int, default=0)
    ap.add_argument("--budget", type=int, default=24)
    ap.add_argument("--maxfill", type=int, default=5)
    ap.add_argument("--lgextra", type=int, default=1)
    ap.add_argument("--xwin", type=int, default=7)
    ap.add_argument("--xearly", type=int, default=24)
    ap.add_argument("--sleep", type=int, default=2)
    ap.add_argument("--pref", type=int, default=1)
    ap.add_argument("--stflags", default="sc1")
    ap.add_argument("--xf", default="")
    ap.add_argument("--log", action="store_true")
    ap.add_argument("--nostore", action="store_true")
    ap.add_argument("--stamps", action="store_true")
    opt = ap.parse_args()
    if opt.stflags: opt.stflags = " " + opt.stflags.replace(",", " ")
    if opt.wf: opt.wf = " " + opt.wf.replace(",", " ")
    if opt.stamps: opt.prefn = 4
    if opt.xf: opt.xf = " " + opt.xf.replace(",", " ")
    print(HDR.rstrip())
    print(f"; @launch grid=(256,1,1) block=(256,1,1) lds=163840")
    print('.amdgcn_target "amdgcn-amd-amdhsa--gfx950"\n.text')
    print(main_kernel(opt))
    print('.section .rodata,"a"')
    print(f""".p2align 6
.amdhsa_kernel {KN}
  .amdhsa_next_free_vgpr {256 + 96 + 4 * opt.ring}
  .amdhsa_next_free_sgpr 96
  .amdhsa_accum_offset 256
  .amdhsa_group_segment_fixed_size 0
  .amdhsa_kernarg_size 48
  .amdhsa_user_sgpr_count 2
  .amdhsa_user_sgpr_kernarg_segment_ptr 1
  .amdhsa_system_sgpr_workgroup_id_x 1
.end_amdhsa_kernel""")

main()
```

```python
import re

def R(kind, lo, n=1):
    return [f"{kind}{i}" for i in range(lo, lo + n)]

def rng(kind, lo, n):
    return f"{kind}[{lo}:{lo+n-1}]" if n > 1 else f"{kind}{lo}"

VALU = ("valu", "trans", "perm")
COST = {"mfma": 8, "valu": 4, "trans": 8, "perm": 4, "dsr": 4, "dsw": 4, "vld": 4, "vst": 4, "dma": 4,
        "salu": 4, "bar": 4, "nop": 4, "wait": 4}

def size(i):
    t = i.text
    if i.kind in ("dsr", "dsw", "vld", "vst", "dma", "mfma"): return 8
    if i.kind in ("salu", "bar", "wait", "nop"): return 4 * len(t.split("\n"))
    op = t.split()[0]
    if op in ("v_cvt_pk_bf16_f32", "v_max3_f32") or "dpp" in op: return 8
    return 4

class Ins:
    def __init__(self, text, kind, reads=(), writes=(), srcc=(), after=None, lead=0.0, tag=""):
        self.text = text; self.kind = kind
        self.reads = list(reads); self.writes = list(writes); self.srcc = list(srcc)
        self.after = after
        self.lead = lead
        self.tag = tag
        self.preds = {}
        self.succs = []
        self.pos = None
        self.states = 1
        self.mindist = 0
    def __repr__(self):
        return self.text

def hazard(p, c, typ, reg):
    isv = reg[0] in "va" and reg[1:].isdigit()
    if not isv:
        if reg[0] == "s" and reg[1:].isdigit() or reg in ("vcc", "m0"):
            if typ == "RAW":
                if p.kind in VALU and c.kind in ("vld", "vst", "dma"): return 5
                if p.kind in VALU and c.kind in VALU: return 2
                if reg == "m0" and c.kind == "dma": return 1
        return 0
    if typ == "RAW":
        if p.kind in VALU and c.kind == "mfma": return 2
        if p.kind == "mfma":
            if c.kind == "mfma":
                if reg in c.srcc:
                    return 0 if c.srcc == p.writes else 10
                return 12
            return 12
        d = 0
        if p.kind == "trans" and c.kind != "trans": d = 1
        if p.kind in VALU and c.kind == "perm": d = 2
        return d
    if typ == "WAW":
        if p.kind == "mfma" and c.kind != "mfma": return 12
        return 0
    if typ == "WAR":
        if p.kind == "mfma" and reg in p.srcc and c.kind in VALU: return 7
        if p.kind in ("vst", "dsw"):
            return 2
        return 0
    return 0

def build_dag(base):
    lastw = {}; readers = {}
    for i in base:
        def edge(p, typ, r):
            if p is i: return
            d = hazard(p, i, typ, r)
            if typ == "RAW" and p.kind == "dsr": d = max(d, i.mindist)
            if p not in i.preds:
                i.preds[p] = d; p.succs.append(i)
            else:
                i.preds[p] = max(i.preds[p], d)
        for r in i.reads:
            if r in lastw: edge(lastw[r], "RAW", r)
        for r in i.writes:
            if r in lastw: edge(lastw[r], "WAW", r)
            for p in readers.get(r, []): edge(p, "WAR", r)
        if i.after is not None:
            if i.after not in i.preds:
                i.preds[i.after] = 0; i.after.succs.append(i)
        for r in i.reads:
            readers.setdefault(r, []).append(i)
        for r in i.writes:
            lastw[r] = i; readers[r] = []

class Emitter:
    def __init__(self):
        self.out = []
        self.state = 0
        self.vm = []
        self.lg = []
        self.nm = 0
        self.age = 0
    def need(self, ins):
        regs = set(ins.reads) | set(ins.writes)
        vn = ln = None
        for k, op in enumerate(self.vm):
            if op.kind in ("vld", "dma") and regs & set(op.writes): vn = len(self.vm) - 1 - k
        for k, op in enumerate(self.lg):
            if op.kind == "dsw": continue
            if regs & set(op.writes): ln = len(self.lg) - 1 - k
        return vn, ln
    def raw(self, ins):
        ins.pos = self.state
        self.state += ins.states
        self.out.append(ins)
    def emit(self, ins, lg_extra=0):
        vn, ln = self.need(ins)
        cost = 0
        if vn is not None or ln is not None:
            parts = []
            if vn is not None:
                assert vn <= 63
                parts.append(f"vmcnt({vn})"); self.vm = self.vm[len(self.vm) - vn:] if vn else []
            if ln is not None:
                if self.age:
                    young = sum(1 for op in self.lg if self.nm - op.born < self.age)
                    ln = min(ln, young)
                else:
                    ln = max(0, ln - lg_extra)
                ln = min(ln, 15)
                parts.append(f"lgkmcnt({ln})"); self.lg = self.lg[len(self.lg) - ln:] if ln else []
            self.raw(Ins("s_waitcnt " + " ".join(parts), "wait")); cost += COST["wait"]
        self.raw(ins); cost += COST[ins.kind]
        if ins.kind in ("vld", "vst", "dma"):
            self.vm.append(ins)
            assert len(self.vm) <= 63, "vmcnt overflow"
        if ins.kind in ("dsr", "dsw"):
            ins.born = self.nm
            self.lg.append(ins)
        if ins.kind == "mfma": self.nm += 1
        return cost
    def prewait(self, ins):
        vn, ln = self.need(ins)
        if vn is None and ln is None: return False
        probe = Ins("", "nop", ins.reads, ins.writes)
        self.emit(probe, 0)
        self.out.pop(); self.state -= 1
        return True
    def nop(self, n):
        n = int(n)
        while n > 0:
            k = min(n, 16)
            i = Ins(f"s_nop {k-1}", "nop"); i.states = k
            self.raw(i); n -= k

def schedule(base, em, budget=24, maxfill=5, lg_extra=0, maxlg=15, log=None, prefill=0, cooldown={}, padwin=0, maxbytes=40):
    build_dag(base)
    mf = [i for i in base if i.kind == "mfma" and i.pos is None]
    for k, m in enumerate(mf): m.dl = float(k)
    END = len(mf) + 50.0
    for i in reversed(base):
        if i.kind == "mfma": continue
        dl = END
        for s in i.succs:
            lat = 0.2 + s.preds[i] * 0.25
            dl = min(dl, s.dl - lat)
        i.dl = dl - i.lead
    fill = [i for i in base if i.kind != "mfma" and i.pos is None]
    order = {id(i): k for k, i in enumerate(base)}
    def wait_states(i):
        miss = 0
        for p, d in i.preds.items():
            if p.pos is None: return None
            have = em.state - (p.pos + p.states)
            miss = max(miss, d - have)
        return miss
    cur = [0]; lastk = {}
    def cands(only=None):
        res = []
        for i in fill:
            if only is not None and id(i) not in only: continue
            w = wait_states(i)
            if w is None or w > 0: continue
            if i.kind in ("dsr", "dsw") and len(em.lg) >= maxlg: continue
            if only is None and i.kind in cooldown and cur[0] - lastk.get(i.kind, -99) < cooldown[i.kind]: continue
            res.append(((i.dl, order[id(i)]), i))
        res.sort(key=lambda x: x[0])
        return [i for _, i in res]
    def pick(only=None):
        c = cands(only)
        return c[0] if c else None
    def missing(m):
        seen = set(); st = [m]
        while st:
            x = st.pop()
            for p in x.preds:
                if p.pos is None and id(p) not in seen:
                    seen.add(id(p)); st.append(p)
        return seen
    stalls = 0
    for k, m in enumerate(mf):
        cur[0] = k
        while True:
            w = wait_states(m)
            if w is not None and w <= 0: break
            f = pick(missing(m)) if w is None else None
            if f is None:
                c = [i for i in cands() if i.kind not in ("dma", "bar")]
                f = c[0] if c else None
            if f is not None:
                em.emit(f, lg_extra); fill.remove(f); stalls += COST[f.kind]
                if log is not None: log.append((k, "forced", f.text))
            else:
                if w is None:
                    em.nop(1); stalls += 4
                else:
                    em.nop(w); stalls += 4 * w
                if log is not None: log.append((k, "nop", ""))
        if k == 0 and prefill:
            for _ in range(prefill):
                c = [i for i in cands() if i.kind == "dsr"]
                if not c: break
                em.emit(c[0], lg_extra); fill.remove(c[0])
        em.emit(m, 0)
        used = 0; nbytes = 0; free = True
        def charge(cost, size, scalar):
            nonlocal used, nbytes, free
            if scalar and free and used == 0:
                free = False; return
            free = False
            used += cost; nbytes += size
        def fits(cost, size, scalar):
            if scalar and free and used == 0: return True
            return used + cost <= budget and nbytes + size <= maxbytes
        if k + 1 < len(mf) and k >= 2:
            w = em.prewait(mf[k + 1])
            if w: charge(4, 4, True)
        tu, tb = used, nbytes; first = []
        for cnd in cands():
            c_, s_ = COST[cnd.kind], size(cnd)
            if cnd.kind in ("salu", "bar") and free and not any(x.kind in ("salu", "bar") for x in first):
                first.append(cnd); continue
            if tu + c_ > budget or tb + s_ > maxbytes: continue
            if cnd.kind in cooldown and any(x.kind == cnd.kind for x in first): continue
            if cnd.kind == "dsr" and len(em.lg) + sum(1 for x in first if x.kind == "dsr") >= maxlg: continue
            tu += c_; tb += s_
            if cnd.kind not in VALU: first.append(cnd)
        first.sort(key=lambda x: 0 if x.kind in ("salu", "bar") else 1)
        for f in first:
            n0 = len(em.out)
            em.emit(f, 0); fill.remove(f); lastk[f.kind] = k
            for e in em.out[n0:]:
                charge(COST[e.kind], size(e), e.kind in ("salu", "bar", "wait"))
        if first and first[0].kind == "bar":
            for cnd in cands():
                if cnd.kind == "dsr" and fits(4, 8, False) and len(em.lg) < maxlg:
                    em.emit(cnd, 0); fill.remove(cnd); charge(4, 8, False)
        while True:
            f = None
            for cnd in cands():
                if cnd.kind in VALU or cnd.kind == "salu":
                    if fits(COST[cnd.kind], size(cnd), cnd.kind == "salu"):
                        f = cnd; break
            if f is None:
                room = (budget - used) // 4 + (1 if free and used == 0 else 0)
                blocked = [w for w in (wait_states(i) for i in fill if i.dl < k + padwin) if w is not None and w > 0]
                if padwin and room >= 1 and blocked and nbytes + 4 <= maxbytes:
                    d = min(min(blocked), room)
                    em.nop(d)
                    used += 4 * (d - (1 if free and used == 0 else 0)); nbytes += 4; free = False
                    if used == 0: used = 0.01
                    continue
                break
            em.emit(f, 0); fill.remove(f)
            charge(COST[f.kind], size(f), f.kind == "salu")
    cur[0] = 10**6
    cooldown = {}
    while fill:
        f = pick()
        if f is None:
            em.nop(1); continue
        em.emit(f, lg_extra); fill.remove(f)
    return stalls

def verify(base, out):
    def trace(seq):
        lastw = {}; res = {}
        for i in seq:
            res[id(i)] = tuple(id(lastw.get(r)) for r in i.reads)
            for r in i.writes: lastw[r] = i
        return res, {r: id(w) for r, w in lastw.items()}
    a, fa = trace(base); b, fb = trace([i for i in out if i.kind not in ("wait", "nop")])
    for i in base:
        assert a[id(i)] == b[id(i)], f"dataflow changed at {i.text}"
    assert fa == fb
    lastw = {}; readers = {}
    for i in out:
        def chk(p, typ, r):
            d = hazard(p, i, typ, r)
            have = i.pos - (p.pos + p.states)
            assert have >= d, f"hazard {typ} {r}: {p.text} -> {i.text}: have {have} need {d}"
        for r in i.reads:
            if r in lastw: chk(lastw[r], "RAW", r)
        for r in i.writes:
            if r in lastw: chk(lastw[r], "WAW", r)
            for p in readers.get(r, []):
                if p is not i: chk(p, "WAR", r)
        for r in i.reads: readers.setdefault(r, []).append(i)
        for r in i.writes:
            lastw[r] = i; readers[r] = []
```

```python
import sys, struct, argparse
import sched
from sched import *

KN = "standalone__swin_window_attn__vision_kernel"
XBYTES = 19267584
SCALE = (192 ** -0.5) * 1.4426950408889634
def f32bits(x): return struct.unpack("<I", struct.pack("<f", x))[0]
HDR = open("standalone__swin_window_attn__vision.s.ref").read().split("; Override launch")[0]
WS_STAMP = 0x1000000
WS_FLAG = 0x40000
WS_EPOCH = 0x50000

def woff(mat, t):
    return 90112 + t * 12288 if mat == 0 else t * 12288

X = lambda tt, s: (tt * 12 + s) * 4
WR0 = 96
ACC = lambda b, k: 16 + (b * 2 + k) * 16
ST = lambda kt, qt: 80 + (kt * 2 + qt) * 16
CB = lambda i: 144 + 16 * i
PB = lambda qt, kt, a: 208 + ((qt * 2 + kt) * 2 + a) * 4
OB = lambda b: 240 + 8 * b
VO = 1
VL = [3, 4, 5]
VPD = 15
FA = 240
VW = [2, 6]
VR = 15
SO = [44, 45, 46, 47]
OSRD = ["s[12:15]", "s[72:75]"]

def mfma(d, ak, a, bk, b, first, tag=""):
    c = "0" if first else rng("v", d, 16)
    rd = R(ak, a, 4) + R(bk, b, 4) + ([] if first else R("v", d, 16))
    return Ins(f"v_mfma_f32_32x32x16_bf16 {rng('v', d, 16)}, {rng(ak, a, 4)}, {rng(bk, b, 4)}, {c}",
               "mfma", rd, R("v", d, 16), srcc=([] if first else R("v", d, 16)), tag=tag)

def valu(op, d, *src, kind="valu", lead=0.0):
    rd = [s for s in src if isinstance(s, str) and s[0] in "vs" and s[1:].isdigit()]
    return Ins(f"{op} {d}, " + ", ".join(str(s) for s in src), kind, rd, [d], lead=lead)

def cvt(d, s0, lead=0.0):
    return valu("v_cvt_pk_bf16_f32", f"v{d}", f"v{s0}", f"v{s0+1}", lead=lead)

class Body:
    def __init__(self, opt):
        self.opt = opt
        self.base = []
        self.nfrag = 0
        self.nob = 0
        self.mf = []
        self.deferred = []
    def add(self, i):
        self.base.append(i); return i
    def wfrag(self, mat, t, s):
        slot = self.nfrag % self.opt.ring; self.nfrag += 1
        reg = WR0 + 4 * slot
        off = woff(mat, t) + s * 1024
        self.add(Ins(f"ds_read_b128 {rng('a', reg, 4)}, v{VL[off >> 16]} offset:{off & 0xffff}", "dsr",
                     [f"v{VL[off >> 16]}", f"L:{mat}:{t}"], R("a", reg, 4), lead=self.opt.dslead))
        return reg
    def cvt16(self, dst, src, lead=0.0):
        for d in range(8): self.add(cvt(dst + d, src + 2 * d, lead))
    def softmax(self, qt):
        vals = [ST(kt, qt) + r for kt in range(2) for r in range(16)]
        t0 = 7 + 4 * qt
        m0, m1, l0, l1 = (f"v{t0+i}" for i in range(4))
        for ch, m in ((vals[:16], m0), (vals[16:], m1)):
            self.add(valu("v_max3_f32", m, f"v{ch[0]}", f"v{ch[1]}", f"v{ch[2]}"))
            for k in range(3, 15, 2):
                self.add(valu("v_max3_f32", m, m, f"v{ch[k]}", f"v{ch[k+1]}"))
        self.add(valu("v_max3_f32", m0, m0, f"v{vals[15]}", f"v{vals[31]}"))
        self.add(valu("v_max_f32", m0, m0, m1))
        self.add(valu("v_mov_b32", m1, m0))
        self.add(Ins(f"v_permlane32_swap_b32 {m0}, {m1}", "perm", [m0, m1], [m0, m1]))
        self.add(valu("v_max_f32", m0, m0, m1))
        for k, v in enumerate(vals):
            self.add(valu("v_sub_f32", f"v{v}", f"v{v}", m0))
            self.add(valu("v_exp_f32", f"v{v}", f"v{v}", kind="trans"))
            l = l0 if k % 2 == 0 else l1
            if k >= 2:
                if k < 4:
                    self.add(valu("v_add_f32", l, f"v{vals[k-2]}", f"v{v}"))
                else:
                    self.add(valu("v_add_f32", l, l, f"v{v}"))
        self.add(valu("v_add_f32", l0, l0, l1))
        self.add(valu("v_mov_b32", l1, l0))
        self.add(Ins(f"v_permlane32_swap_b32 {l0}, {l1}", "perm", [l0, l1], [l0, l1]))
        self.add(valu("v_add_f32", l0, l0, l1))
        self.add(valu("v_rcp_f32", l0, l0, kind="trans"))
        for kt in range(2):
            for a in range(2):
                for d in range(4):
                    s = ST(kt, qt) + 8 * a + 2 * d
                    self.add(valu("v_mul_f32", f"v{s}", f"v{s}", l0))
                    self.add(valu("v_mul_f32", f"v{s+1}", f"v{s+1}", l0))
                    self.add(cvt(PB(qt, kt, a) + d, s))
    def Sblk(self, t, qt, cb, kts=(0, 1)):
        for a in range(2):
            for kt in kts:
                self.add(mfma(ST(kt, qt), "a", X(kt, 2 * t + a), "v", cb + 4 * a, t == 0 and a == 0, tag=f"S{t}{qt}"))
    def Omf(self, t, qt, kt):
        oo = ST(t % 2, qt)
        for a in range(2):
            self.add(mfma(oo, "v", CB(t % 4) + 8 * kt + 4 * a, "v", PB(qt, kt, a), kt == 0 and a == 0, tag=f"O{t}{qt}"))
    def Oout(self, t, qt):
        oo = ST(t % 2, qt)
        par = self.nob % 2; self.nob += 1
        ob = OB(par)
        fl = self.opt.stflags; L = self.opt.stlead
        for d in range(8): self.add(cvt(ob + d, oo + 2 * d, lead=L))
        def s1(dst):
            for d in range(4):
                self.add(Ins(f"v_cndmask_b32_dpp v{dst+d}, v{ob+4+d}, v{ob+d}, vcc quad_perm:[0,0,2,2] row_mask:0xf bank_mask:0xf",
                             "perm", [f"v{ob+4+d}", f"v{ob+d}", "vcc"], [f"v{dst+d}"], lead=L))
        def s2(dst):
            for d in range(4):
                self.add(Ins(f"v_cndmask_b32_dpp v{dst+d}, v{ob+d}, v{ob+4+d}, vcc quad_perm:[1,1,3,3] row_mask:0xf bank_mask:0xf",
                             "perm", [f"v{ob+4+d}", f"v{ob+d}", "vcc"], [f"v{dst+d}"], lead=L))
        def st(reg, odd):
            if self.opt.nostore: return
            self.add(Ins(f"buffer_store_dwordx4 {rng('v', reg, 4)}, v{VO}, {OSRD[qt]}, s{SO[2*qt]} offen offset:{64*t + 384*odd}{fl}",
                         "vst", R("v", reg, 4) + [f"v{VO}"], [], lead=L))
        flip = Ins("s_not_b64 vcc, vcc", "salu", ["vcc"], ["vcc"], lead=L)
        if par == 0:
            s1(oo); st(oo, 0); self.add(flip); s2(ob + 4); st(ob + 4, 1)
        else:
            s2(oo); st(oo, 1); self.add(flip); s1(ob); st(ob, 0)
    def Oblk(self, t, qt):
        self.Omf(t, qt, 0); self.Omf(t, qt, 1); self.Oout(t, qt)
    def bar(self, tiles, after, text="s_barrier", reads=()):
        return self.add(Ins(text, "bar", ["BAR"] + list(reads), ["BAR"] + [f"L:{m}:{t}" for m, t in tiles], after=after))
    def flushS(self, pend):
        t, qt, acc, cb = pend
        self.cvt16(cb, acc)
        if qt == 0 and t < self.opt.ndefer:
            self.Sblk(t, qt, cb, (0,)); self.deferred.append((t, cb))
        else:
            self.Sblk(t, qt, cb)
        if t == 5: self.softmax(qt)

    def build(self, nq):
        opt = self.opt
        SI = opt.sins
        pend = None
        blk = 0
        lastm = None
        allN = [(1, tn) for tn in range(6)]
        for qt in range(nq):
            for t in range(6):
                acc = ACC((blk // 2) % 2, blk % 2)
                if blk == 1: self.bar([(0, 1)], self.mf[opt.b1at])
                if blk == 2: self.bar([(0, 2)], self.mf[opt.b2at])
                if blk == 3: self.bar([(0, 3)], self.mf[opt.b3at])
                if blk == opt.ndefer + 1:
                    self.add(Ins("s_waitcnt vmcnt(0)", "salu", [], ["XW"], after=self.mf[opt.xwat], lead=50))
                    for s in range(12):
                        self.add(Ins(f"ds_read_b128 {rng('a', X(1, s), 4)}, v{FA+s%4} offset:{(s//4)*128 + 12288}", "dsr",
                                     ["XW", f"v{FA+s%4}"], R("a", X(1, s), 4), lead=50))
                    b5 = self.bar([(0, 4), (0, 5)], self.mf[opt.b5at], reads=[r for s in range(12) for r in R("a", X(1, s), 4)])
                    b5.lead = 200
                    for tt, cb in self.deferred: self.Sblk(tt, 0, cb, (1,))
                if blk == opt.b4blk: self.bar(allN, lastm, "s_waitcnt vmcnt(0)\n  s_barrier")
                for s in range(12):
                    if s == SI and pend is not None:
                        self.flushS(pend); pend = None
                    w = self.wfrag(0, t, s)
                    lastm = self.add(mfma(acc, "a", w, "a", X(qt, s), s == 0, tag=f"T{t}{qt}"))
                    self.mf.append(lastm)
                    if blk == 6 and s == 0: self.join = lastm
                pend = (t, qt, acc, CB((blk // 2) % 4) + 8 * (blk % 2))
                blk += 1
        if nq == 2:
            pos = {(1,4): [(0,0)], (2,4): [(1,0)], (2,8): [(0,1)], (3,0): [(1,1)], (3,4): [(2,0)], (3,9): [(2,1)],
                   (4,4): [(3,0)], (4,9): [(3,1)], (5,4): [(4,0)], (opt.o41 // 12, opt.o41 % 12): [(4,1)]}
        else:
            pos = {(2,8): [(0,0)], (3,0): [(1,0)], (3,6): [(2,0)], (4,4): [(3,0)], (6,0): [(4,0)]}
        yb = (blk // 2) % 2
        if nq == 1: yb = 1
        for t in range(6):
            steps = [(s, None) for s in range(12)] if t < 5 else [(s, 0) for s in range(12)] + [(s, 1) for s in range(12)]
            for n, (s, only) in enumerate(steps):
                p = n if t < 5 else n // 2 if n % 2 == 0 else -1
                if p == SI // 2 + 1 and pend is not None:
                    self.flushS(pend); pend = None
                if p == 4 and t >= 1:
                    for kt in range(2): self.cvt16(CB((t - 1) % 4) + 8 * kt, ACC((t - 1 + yb) % 2, kt))
                for ob in pos.get((t, p), []): self.Oblk(*ob)
                w = self.wfrag(1, t, s)
                for kt in range(2):
                    if only is None or only == kt:
                        self.add(mfma(ACC((t + yb) % 2, kt), "a", X(kt, s), "a", w, s == 0, tag=f"Y{t}"))
        L = self.opt.stlead + 5
        self.cvt16(CB(5 % 4), ACC((5 + yb) % 2, 0), lead=L)
        for ob in pos.get((6, 0), []): self.Oblk(*ob)
        for qt in range(nq): self.Omf(5, qt, 0)
        self.cvt16(CB(5 % 4) + 8, ACC((5 + yb) % 2, 1), lead=L)
        for qt in range(nq):
            self.Omf(5, qt, 1)
        for qt in range(nq):
            self.Oout(5, qt)

def stamp(A, opt, k):
    if opt.stamps:
        A(f"  s_memrealtime s[{56+2*k}:{57+2*k}]")
        A(f"  s_memtime s[{76+2*k}:{77+2*k}]")
        A(f"  s_waitcnt lgkmcnt(0)")

def stamp_out(A, opt):
    if not opt.stamps: return
    for k in range(8): A(f"  v_mov_b32 v{16+k}, s{56+2*k}")
    for k in range(8): A(f"  v_mov_b32 v{24+k}, s{76+2*k}")
    A(f"  s_lshl_b32 s26, s2, 2\n  s_add_u32 s26, s26, s20\n  s_lshl_b32 s26, s26, 5\n  s_add_u32 s26, s26, {WS_STAMP}")
    A("  s_mov_b32 s18, 0x10000000")
    A("  v_mov_b32 v7, 0")
    A("  buffer_store_dwordx4 v[16:19], v7, s[16:19], s26 offen")
    A("  buffer_store_dwordx4 v[20:23], v7, s[16:19], s26 offen offset:16")
    A("  s_add_u32 s26, s26, 0x10000")
    A("  buffer_store_dwordx4 v[24:27], v7, s[16:19], s26 offen")
    A("  buffer_store_dwordx4 v[28:31], v7, s[16:19], s26 offen offset:16")

def bound(A, label):
    A("  s_add_u32 s92, s92, 1")
    A("  s_cmp_gt_u32 s92, 50000")
    A(f"  s_cbranch_scc1 {label}_x")

def check_issue(A):
    A("  buffer_load_dwordx2 v[14:15], off, s[36:39], 0 sc1")
    A("  buffer_load_dwordx2 v[12:13], v2, s[16:19], s93 offen sc1")

def spin_first(A, opt):
    A("  s_branch L_pollA_0")
    A("L_pollA:")
    A(f"  s_sleep {opt.sleep}")
    check_issue(A)
    bound(A, "L_pollA")
    A("L_pollA_0:")
    A("  s_waitcnt vmcnt(0)")
    A("  v_cmp_ne_u64 vcc, v[12:13], v[14:15]")
    A("  v_cmp_eq_u32 s[26:27], 0, v14")
    A("  s_nop 1")
    A("  s_or_b64 vcc, vcc, s[26:27]")
    A("  s_and_b32 s26, vcc_lo, 0x3f")
    A("  s_cbranch_scc1 L_pollA")
    A("L_pollA_x:")

def spin_flags(A, label, sreg, sleep):
    A(f"  s_branch {label}_0")
    A(f"{label}:")
    A(f"  s_sleep {sleep}")
    A(f"{label}_0:")
    A(f"  buffer_load_dwordx2 v[12:13], v2, s[16:19], {sreg} offen sc1")
    bound(A, label)
    A("  s_waitcnt vmcnt(0)")
    A("  v_cmp_ne_u64 vcc, v[12:13], v[14:15]")
    A(f"  s_cbranch_vccnz {label}")
    A(f"{label}_x:")

def stage_offsets(A, rowx):
    for k in range(3):
        A(f"  v_add_u32 v9, {64*k}, v8")
        A("  v_mul_u32_u24 v9, 0xaab, v9")
        if rowx:
            A("  v_lshrrev_b32 v10, 16, v9")
            A(f"  v_mul_u32_u24 v10, {rowx}, v10")
        A("  v_lshrrev_b32 v9, 17, v9")
        A("  v_xor_b32 v9, v9, v8")
        if rowx:
            A("  v_xor_b32 v11, 4, v9")
            A(f"  v_lshl_add_u32 v{16+2*k}, v9, 4, v10")
            A(f"  v_lshl_add_u32 v{17+2*k}, v11, 4, v10")
        else:
            A(f"  v_lshlrev_b32 v{16+2*k}, 4, v9")
            A(f"  v_xor_b32 v{17+2*k}, 64, v{16+2*k}")

def frag_addrs(A, jreg, base, dst=24):
    A(f"  v_mul_u32_u24 v10, 384, {jreg}")
    A(f"  v_add_u32 v10, {base}, v10")
    A(f"  v_bfe_u32 v11, {jreg}, 1, 3")
    A("  v_lshrrev_b32 v12, 5, v8")
    A("  v_xor_b32 v11, v11, v12")
    for m in range(4):
        A(f"  v_xor_b32 v13, {2*m}, v11")
        A(f"  v_lshl_add_u32 v{dst+m}, v13, 4, v10")

def fold(A, opt):
    SC = 73728
    A("  s_cmp_ge_u32 s2, 36")
    A("  s_cselect_b32 s51, 36, 0")
    A("  s_cselect_b64 vcc, -1, 0")
    A("  s_cselect_b32 s50, 768, 0")
    A("  s_cselect_b32 s21, 64, 36864")
    A("  s_cselect_b32 s24, 0, 384")
    A("  s_cselect_b32 s25, 18432, s10")
    A("  s_cselect_b32 s34, 73728, s30")
    A("  s_sub_u32 s51, s2, s51")
    A("  s_mul_i32 s48, s51, 43")
    A("  s_lshr_b32 s48, s48, 8")
    A("  s_mul_i32 s49, s48, 6")
    A("  s_sub_u32 s49, s51, s49")
    A("  s_mul_i32 s22, s49, 36864")
    A("  s_add_u32 s22, s22, s50")
    A("  s_mul_i32 s23, s48, s21")
    A("  s_add_u32 s23, s23, s24")
    stage_offsets(A, 768)
    A("  v_lshrrev_b32 v14, 2, v8")
    A("  v_mul_u32_u24 v14, 384, v14")
    A("  v_and_b32 v13, 3, v8")
    A("  v_lshl_add_u32 v14, v13, 4, v14")
    for k in range(3):
        if k: A(f"  v_add_u32 v14, 5120, v14")
        A(f"  v_cndmask_b32 v{144+2*k}, v{16+2*k}, v14, vcc")
        A(f"  v_cndmask_b32 v{145+2*k}, v{17+2*k}, v14, vcc")
    A("  s_waitcnt lgkmcnt(0)")
    A("  s_cmp_ge_u32 s2, 36")
    A("  s_mov_b64 s[28:29], s[6:7]")
    A("  s_cselect_b64 s[32:33], s[40:41], s[6:7]")
    def panel(sreg, lds, v0, srd, step):
        for r in range(4):
            A(f"  s_mov_b32 m0, {lds + 3072*r}")
            if r: A(f"  s_add_u32 {sreg}, {sreg}, {step}")
            else: A("  s_nop 0")
            for k in range(3):
                A(f"  buffer_load_dwordx4 v{v0+2*k+(r%2)}, {srd}, {sreg} offen offset:{1024*k}{opt.wf} lds")
    panel("s23", SC + 12288, 144, "s[32:35]", "s25")
    panel("s22", SC, 16, "s[28:31]", 9216)
    srd_consts(A, opt, True)
    srd_bases(A, True)
    A(f"  s_mov_b32 s95, {WS_EPOCH}")
    A("  buffer_load_dwordx2 v[6:7], off, s[16:19], s95 sc1")
    stamp(A, opt, 7)
    if opt.bh: A("  s_barrier")
    helper_misc(A, opt)
    A("  v_and_b32 v9, 0x13, v8")
    A("  v_and_b32 v10, 4, v8")
    A("  v_lshl_or_b32 v9, v10, 1, v9")
    A("  v_and_b32 v10, 8, v8")
    A("  v_lshrrev_b32 v10, 1, v10")
    A("  v_or_b32 v9, v9, v10")
    frag_addrs(A, "v9", SC)
    A("  v_bfe_u32 v14, v8, 2, 2")
    A("  v_lshl_add_u32 v14, v12, 3, v14")
    A("  v_lshlrev_b32 v14, 6, v14")
    A("  v_bfe_u32 v13, v8, 4, 1")
    A("  v_lshl_add_u32 v14, v13, 4, v14")
    A("  v_and_b32 v13, 1, v8")
    A("  v_lshl_add_u32 v14, v13, 5, v14")
    A("  v_bfe_u32 v13, v8, 1, 1")
    A("  v_lshl_add_u32 v14, v13, 3, v14")
    A(f"  v_add_u32 v14, {SC + 12288}, v14")
    A("  s_mul_i32 s26, s48, 12288")
    A(f"  s_add_u32 s27, s26, {woff(0,0)}")
    A("  s_lshl_b32 s54, s49, 11")
    A("  s_cmp_ge_u32 s2, 36")
    A("  s_cselect_b32 s26, s26, s27")
    A(f"  s_cselect_b32 s27, 1.0, {f32bits(SCALE):#x}")
    A("  s_add_u32 s26, s26, s54")
    A(f"  s_lshl_b32 s54, s2, {opt.fsh}")
    A(f"  s_add_u32 s54, s54, {WS_FLAG}")
    if opt.fstamp: stamp(A, opt, 5)
    A("  s_waitcnt vmcnt(13)")
    if opt.fstamp: stamp(A, opt, 3)
    A("  s_cbranch_vccnz L_fold_tr")
    for s in range(12):
        A(f"  ds_read_b128 v[{80+4*s}:{83+4*s}], v{24+s%4} offset:{(s//4)*128 + 12288}")
    A("  s_branch L_fold_a")
    A("L_fold_tr:")
    for s in range(12):
        for jj in range(2):
            A(f"  ds_read_b64_tr_b16 v[{80+4*s+2*jj}:{81+4*s+2*jj}], v14 offset:{1024*s + 256*jj}")
        if s == 6: A("  s_waitcnt lgkmcnt(0)")
    A("L_fold_a:")
    A("  s_waitcnt vmcnt(1) lgkmcnt(0)")
    if opt.fstamp: stamp(A, opt, 4)
    for s in range(12):
        A(f"  ds_read_b128 v[{32+4*s}:{35+4*s}], v{24+s%4} offset:{(s//4)*128}")
    for s in range(12):
        c = "0" if s == 0 else "v[128:143]"
        A(f"  s_waitcnt lgkmcnt({11-s})")
        A(f"  v_mfma_f32_32x32x16_bf16 v[128:143], v[{32+4*s}:{35+4*s}], v[{80+4*s}:{83+4*s}], {c}")
    stamp(A, opt, 1)
    A("  s_waitcnt vmcnt(0)")
    A("  v_add_co_u32 v6, vcc, 2, v6")
    A("  s_nop 1")
    A("  v_addc_co_u32 v7, vcc, 0, v7, vcc")
    A("  v_or_b32 v6, 1, v6")
    A("  s_nop 5")
    for d in range(8):
        A(f"  v_mul_f32 v{128+2*d}, s27, v{128+2*d}")
        A(f"  v_mul_f32 v{129+2*d}, s27, v{129+2*d}")
        A(f"  v_cvt_pk_bf16_f32 v{32+d}, v{128+2*d}, v{129+2*d}")
        if d == 3: A(f"  buffer_store_dwordx4 v[32:35], v{VL[0]}, s[16:19], s26 offen sc1")
    A(f"  buffer_store_dwordx4 v[36:39], v{VL[0]}, s[16:19], s26 offen offset:1024 sc1")
    A("  s_mov_b64 exec, 1")
    A("  s_cmp_lg_u32 s2, 0")
    A("  s_cbranch_scc1 L_fold_pub")
    A("  buffer_store_dwordx2 v[6:7], off, s[36:39], 0 sc1")
    A("  s_waitcnt vmcnt(1)")
    A("  s_branch L_fold_pub2")
    A("L_fold_pub:")
    A("  s_waitcnt vmcnt(0)")
    A("L_fold_pub2:")
    stamp(A, opt, 2)
    A("  buffer_store_dwordx2 v[6:7], off, s[16:19], s54 sc1")
    A("  s_mov_b64 exec, -1")
    stamp(A, opt, 6)
    A("  s_branch L_loader")

def helper_misc(A, opt):
    A("  s_mov_b32 s14, 0")
    A(f"  v_mov_b32 v{VO}, 0")
    A("  v_min_u32 v2, 35, v8")
    A(f"  v_lshlrev_b32 v2, {opt.fsh}, v2")
    A("  s_lshr_b32 s26, s2, 3")
    if opt.scout == 1:
        A("  s_mul_i32 s27, s26, 57")
        A("  s_lshr_b32 s27, s27, 9")
        A("  s_mul_i32 s27, s27, 9")
        A("  s_sub_u32 s26, s26, s27")
        A("  s_lshl_b32 s26, s26, 13")
        A("  v_lshl_add_u32 v28, v8, 7, s26")
    else:
        A("  s_cmp_ge_u32 s26, 18")
        A("  s_cselect_b32 s27, 14, 0")
        A("  s_sub_u32 s26, s26, s27")
        A("  s_lshl_b32 s26, s26, 12")
        A("  v_and_b32 v28, 31, v8")
        A("  v_lshl_add_u32 v28, v28, 7, s26")
    A(f"  s_mov_b32 s3, {woff(0, 0)}")

def srd_consts(A, opt, prod=False):
    A(f"  s_mov_b32 s10, {XBYTES}\n  s_mov_b32 s11, 0x00020000")
    A(f"  s_mov_b32 s15, 0x00020000")
    A("  s_mov_b32 s18, 0x60000\n  s_mov_b32 s19, 0x00020000")
    A("  s_mov_b32 s38, 256\n  s_mov_b32 s39, 0x00020000")
    A(f"  s_mov_b32 s74, {XBYTES}\n  s_mov_b32 s75, 0x00020000")
    A(f"  s_mov_b32 s93, {WS_FLAG}")
    A(f"  s_mov_b32 s94, {WS_FLAG + (36 << opt.fsh)}")
    A("  s_mov_b32 s92, 0")

def srd_bases(A, prod=False):
    if not prod: A("  s_waitcnt lgkmcnt(0)")
    A("  s_mov_b64 s[8:9], s[4:5]\n  s_mov_b64 s[16:17], s[54:55]\n  s_mov_b64 s[36:37], s[52:53]")
    A("  s_mov_b64 s[12:13], s[42:43]\n  s_mov_b64 s[72:73], s[42:43]")

def emit_body(A, opt, nq, em, pre, stmap, pre_lines):
    b = Body(opt); b.build(nq)
    em.age = opt.age
    log = []
    sched.COST["vst"] = opt.vstcost
    sched.COST["dsw"] = opt.dswcost
    stalls = schedule(pre + b.base, em, budget=opt.budget, maxfill=opt.maxfill, lg_extra=opt.lgextra, log=log,
                      prefill=7, cooldown={'vst': opt.stcool}, padwin=opt.padwin, maxbytes=opt.maxbytes)
    verify(pre + b.base, em.out)
    nm = sum(1 for i in em.out if i.kind == "mfma")
    sys.stderr.write(f"body{nq}: instrs {len(em.out)} mfma {nm} forced-cycles {stalls}\n")
    if opt.log:
        for l in log: sys.stderr.write(str(l) + "\n")
    ji = em.out.index(b.join)
    if em.out[ji - 1].kind == "wait": ji -= 1
    live = []
    for k, i in enumerate(em.out[:ji]):
        if i.kind != "dsr" or int(i.writes[0][1:]) < WR0: continue
        w = set(i.writes)
        later_w = any(j.kind == "dsr" and set(j.writes) & w for j in em.out[k + 1:ji])
        used_before = any(j.kind == "mfma" and set(j.reads) & w for j in em.out[k + 1:ji])
        if not later_w and not used_before: live.append(i.text)
    opt.join_reads = live
    lines = list(pre_lines)
    L = lines.append
    nb = 0
    for k, i in enumerate(em.out):
        if k == ji: L("L_join:")
        for t in i.text.split("\n"): L("  " + t.strip() + (f"   ; {i.tag}" if i.tag else ""))
        if opt.stamps and i.kind == "bar":
            if nb in stmap:
                L("  s_waitcnt lgkmcnt(0)")
                stamp(L, opt, stmap[nb])
            nb += 1
    if opt.stamps:
        stamp(L, opt, 6)
        L("  s_waitcnt vmcnt(0)")
        stamp(L, opt, 7)
        stamp_out(L, opt)
    L("  s_endpgm")
    lines = [x for l in lines for x in l.split("\n")]
    sizes = insn_sizes([l for l in lines if not l.endswith(":")])
    total = sum(sizes)
    sys.stderr.write(f"body bytes {total}\n")
    npad = (total + 16) // 4096 if opt.pads else 0
    addr = 0; k = 0; placed = 0
    for l in lines:
        if l.endswith(":"):
            A(l); continue
        if placed < npad and addr >= 4096 * (placed + 1):
            placed += 1
            A(f"L_pad{placed}:")
            A(f"  s_cbranch_execz {'L_pad%d' % (placed + 1) if placed < npad else 'L_padret'}")
            addr += 4
        A(l); addr += sizes[k]; k += 1
    assert placed == npad

def insn_sizes(lines):
    import subprocess, tempfile, re, os
    src = '.amdgcn_target "amdgcn-amd-amdhsa--gfx950"\n.text\nL_pad1:\n' + "\n".join(lines) + "\n"
    open("_sz.s", "w").write(src)
    subprocess.check_call(["clang", "-x", "assembler", "-target", "amdgcn-amd-amdhsa", "-mcpu=gfx950", "-c", "_sz.s", "-o", "_sz.o"])
    out = subprocess.check_output(["llvm-objdump", "-d", "--mcpu=gfx950", "_sz.o"]).decode()
    res = []
    for l in out.splitlines():
        m = re.search(r"// [0-9A-F]{12}: ((?:[0-9A-F]{8} ?)+)", l)
        if m: res.append(4 * len(m.group(1).split()))
    assert len(res) == len(lines), (len(res), len(lines))
    return res

def win_base(A):
    A("  s_mul_hi_u32 s23, s21, 153391690")
    A("  s_mul_i32 s24, s23, 28")
    A("  s_sub_u32 s24, s21, s24")
    A("  s_mul_i32 s23, s23, 688128")
    A("  s_mul_i32 s24, s24, 3072")
    A(f"  s_add_u32 s{SO[0]}, s23, s24")

def x_row(A, r):
    A(f"  s_add_u32 m0, s24, {3072*r}")
    if r % 4: A("  s_add_u32 s25, s25, 86016")
    else: A(f"  s_mov_b32 s25, s{SO[r // 2]}")

def x_load(A, opt, r, k):
    A(f"  buffer_load_dwordx4 v{16+2*k+(r%2)}, s[8:11], s25 offen offset:{1024*k}{opt.xf} lds")

def x_frags(A, tt, step=12288):
    for s in range(12):
        A(f"  ds_read_b128 {rng('a', X(tt, s), 4)}, v{FA+s%4} offset:{(s//4)*128 + tt*step}")

def win_addrs(A):
    A(f"  v_add_u32 v{VL[1]}, 0x10000, v{VL[0]}")
    A(f"  v_add_u32 v{VL[2]}, 0x20000, v{VL[0]}")
    A("  v_and_b32 v9, 31, v8")
    frag_addrs(A, "v9", "s24", FA)

def out_addrs(A):
    A("  v_bfe_u32 v9, v8, 3, 2")
    A("  v_mul_u32_u24 v9, 86016, v9")
    A("  v_and_b32 v10, 6, v8")
    A("  v_mul_u32_u24 v10, 384, v10")
    A("  v_and_b32 v11, 1, v8")
    A("  v_lshlrev_b32 v11, 4, v11")
    A("  v_and_b32 v12, 32, v8")
    A("  v_or_b32 v11, v11, v12")
    A(f"  v_add3_u32 v{VO}, v9, v10, v11")

def main_kernel(opt):
    o = []
    A = o.append
    A(f".globl {KN}\n.p2align 12\n.p2align 8\n.type {KN},@function\n{KN}:")
    stamp(A, opt, 0)
    A("  s_load_dwordx4 s[4:7], s[0:1], 0")
    A("  s_load_dwordx4 s[40:43], s[0:1], 16")
    A("  s_load_dwordx4 s[52:55], s[0:1], 32")
    A("  v_lshrrev_b32 v7, 6, v0")
    A("  s_cmp_ge_u32 s2, 256")
    A("  s_cbranch_scc1 L_end")
    A("  v_readfirstlane_b32 s20, v7")
    A("  v_and_b32 v8, 63, v0")
    A(f"  v_lshlrev_b32 v{VL[0]}, 4, v8")
    A("  s_cmp_lg_u32 s20, 3")
    A("  s_cbranch_scc1 L_window")
    A("  s_cmp_ge_u32 s2, 72")
    A("  s_cbranch_scc1 L_pref")
    A("  s_mov_b32 s30, 221184\n  s_mov_b32 s31, 0x00020000\n  s_mov_b32 s35, 0x00020000\n  s_mov_b32 s10, 9216")
    fold(A, opt)
    nl = [0]
    def hdma(mat, t, n=1):
        nl[0] += 1
        A(f"  s_mov_b32 m0, {woff(mat, t)}")
        A("  s_nop 0")
        A(f"L_fill{nl[0]}:")
        for k in range(4):
            A(f"  buffer_load_dwordx4 v{VL[0]}, s[16:19], m0 offen offset:{1024*k} sc1 lds")
        A("  s_add_u32 m0, m0, 4096")
        A(f"  s_cmp_lt_u32 m0, {woff(mat, t) + 12288*n}")
        A(f"  s_cbranch_scc1 L_fill{nl[0]}")
    A(".p2align 6")
    A("L_window:")
    A("  s_mul_i32 s21, s2, 3")
    A("  s_add_u32 s21, s21, s20")
    win_base(A)
    A(f"  s_add_u32 s{SO[2]}, s{SO[0]}, 344064")
    A("  s_mul_i32 s24, s20, 24576")
    A(f"  s_mov_b32 s14, {XBYTES}")
    stage_offsets(A, 0)
    srd_consts(A, opt)
    srd_bases(A)
    if opt.fastp:
        A(f"  s_sub_u32 s26, s2, {opt.p0}")
        A(f"  s_cmp_lt_u32 s26, {opt.pn - opt.p0}")
        A("  s_cselect_b64 vcc, -1, 0")
    if opt.bh:
        A("  s_cmp_ge_u32 s2, 72")
        A("  s_cbranch_scc1 L_nobh")
        A("  s_barrier")
        A("L_nobh:")
    n = 0
    if opt.fstamp: stamp(A, opt, 1)
    for r in range(8):
        x_row(A, r)
        for k in range(3):
            w = opt.xwin if n < opt.xsw else opt.xwin2
            if n >= w:
                if opt.fastp > w: A(f"  s_cbranch_vccnz L_xs{n}")
                A(f"  s_waitcnt vmcnt({w-1})")
                if opt.fastp > w:
                    A(f"L_xs{n}:")
                    if n >= opt.fastp: A(f"  s_waitcnt vmcnt({opt.fastp-1})")
            if n == opt.bxn: A("  s_barrier")
            x_load(A, opt, r, k)
            n += 1
        if r == 1:
            win_addrs(A)
            out_addrs(A)
    if not opt.fstamp: stamp(A, opt, 1)
    if opt.bxn >= 24:
        A(f"  s_waitcnt vmcnt({opt.pollat})")
        A("  s_barrier")
    A("  s_waitcnt vmcnt(12)")
    x_frags(A, 0)
    A("  s_mov_b32 vcc_lo, 0x55555555\\n  s_mov_b32 vcc_hi, 0x55555555".replace("\\n", "\n"))
    if opt.pads:
        A("  s_mov_b64 exec, 0")
        A("  s_branch L_pad1")
    else:
        A("  s_branch L_padret")
    A(".p2align 6")
    A("L_pref:")
    srd_consts(A, opt)
    helper_misc(A, opt)
    srd_bases(A)
    if opt.pref:
        A("  s_getpc_b64 s[48:49]")
        A("L_pc:")
        A(f"  s_sub_u32 s48, s48, L_pc-{KN}")
        A("  s_subb_u32 s49, s49, 0")
        A("  s_lshr_b32 s26, s2, 3")
        A(f"  s_and_b32 s26, s26, {opt.prefn - 1}")
        A("  s_lshl_b32 s26, s26, 13")
        A("  s_add_u32 s26, s26, 1024")
        A("  v_lshl_add_u32 v9, v8, 7, s26")
        A(f"  v_min_u32 v9, L_last-{KN}, v9")
        A("  global_load_dword v29, v9, s[48:49]")
    A("  s_add_u32 s21, s2, 1312")
    A("  s_and_b32 s22, s21, 1")
    A("  s_lshr_b32 s21, s21, 1")
    win_base(A)
    A("  s_mul_i32 s22, s22, 344064")
    A(f"  s_add_u32 s{SO[2]}, s{SO[0]}, 344064")
    A(f"  s_sub_u32 s{SO[2]}, s{SO[2]}, s22")
    A(f"  s_add_u32 s{SO[0]}, s{SO[0]}, s22")
    A("  s_mov_b32 s24, 49152")
    stage_offsets(A, 0)
    A("  s_cmp_lt_u32 s2, 224")
    A("  s_cbranch_scc1 L_loader")
    n = 0
    for r in range(4, 8):
        A(f"  s_mov_b32 m0, {73728 + 3072*(r-4)}")
        A(f"  s_add_u32 s25, s{SO[2]}, {86016*(r%4)}")
        for k in range(3):
            if n >= opt.cwin: A(f"  s_waitcnt vmcnt({opt.cwin-1})")
            x_load(A, opt, r, k); n += 1
    win_addrs(A)
    out_addrs(A)
    A("  s_branch L_loader")
    A(".p2align 12")
    pl = []
    P = pl.append
    P("L_padret:")
    if opt.pads: P("  s_mov_b64 exec, -1")
    P("  s_waitcnt lgkmcnt(0)")
    stamp(P, opt, 2)
    P("  s_barrier")
    stamp(P, opt, 3)
    emit_body(A, opt, 2, Emitter(), [], {3: 4, 4: 5}, pl)
    A(".p2align 6")
    A("L_loader:")
    A("  s_barrier")
    check_issue(A)
    spin_first(A, opt)
    if not opt.fstamp: stamp(A, opt, 3)
    hdma(0, 0)
    A("  s_cmp_eq_u64 vcc, 0")
    A("  s_cbranch_scc1 L_pollB_x")
    spin_flags(A, "L_pollB", "s93", opt.sleep)
    e = 0
    if opt.scout:
        A("  buffer_load_dword v29, v28, s[16:19], s3 offen sc1"); e = 1
    hdma(0, 1)
    A(f"  s_waitcnt vmcnt({12+e}) lgkmcnt(0)")
    if not opt.fstamp: stamp(A, opt, 4)
    A("  s_barrier")
    A("  buffer_load_dwordx2 v[12:13], v2, s[16:19], s94 offen sc1")
    hdma(0, 2)
    A("  s_waitcnt vmcnt(13)")
    A("  s_barrier")
    hdma(0, 3, 2)
    A("  s_waitcnt vmcnt(24)")
    A("  s_barrier")
    hdma(0, 5)
    A("  v_cmp_ne_u64 vcc, v[12:13], v[14:15]")
    A("  s_waitcnt vmcnt(24)")
    A("  s_barrier")
    A("  s_cmp_lt_u32 s2, 224")
    A("  s_cbranch_scc1 L_nox")
    A("  s_waitcnt vmcnt(0)")
    for r in range(4):
        x_row(A, r)
        for k in range(3): x_load(A, opt, r, k)
    A("L_nox:")
    A("  s_cbranch_vccnz L_nlate")
    A("  buffer_load_dword v29, v28, s[16:19], 0 offen sc1")
    hdma(1, 0)
    A("  s_cmp_ge_u32 s2, 224")
    A("  s_cbranch_scc1 L_b5")
    hdma(1, 4)
    A("  s_waitcnt vmcnt(25)")
    A("L_b5:")
    A("  s_barrier")
    A("L_nback:")
    A("  s_cmp_lg_u32 s2, 0")
    A("  s_cbranch_scc1 L_noep")
    A("  s_mov_b64 exec, 1")
    A("  buffer_store_dwordx2 v[6:7], off, s[16:19], s95 sc1")
    A("  s_mov_b64 exec, -1")
    A("L_noep:")
    hdma(1, 1, 3)
    A("  s_cmp_ge_u32 s2, 224")
    A("  s_cbranch_scc1 L_late")
    A("  s_waitcnt vmcnt(48)")
    hdma(1, 5)
    if not opt.fstamp: stamp(A, opt, 5)
    A("  s_waitcnt vmcnt(0)")
    A("  s_barrier")
    stamp_out(A, opt)
    A("L_end:")
    A("  s_endpgm")
    A("L_nlate:")
    A("  s_waitcnt vmcnt(0)")
    A("  s_barrier")
    spin_flags(A, "L_pollN", "s94", opt.sleep)
    A("  buffer_load_dword v29, v28, s[16:19], 0 offen sc1")
    hdma(1, 0)
    A("  s_cmp_ge_u32 s2, 224")
    A("  s_cbranch_scc1 L_nback")
    hdma(1, 4)
    A("  s_branch L_nback")
    A("L_late:")
    x_frags(A, 1, 24576)
    A("  s_waitcnt vmcnt(36) lgkmcnt(0)")
    x_frags(A, 0)
    hdma(1, 5)
    A("  s_waitcnt lgkmcnt(0)")
    for t in opt.join_reads: A("  " + t)
    hdma(1, 4)
    if not opt.fstamp: stamp(A, opt, 5)
    A("  s_mov_b32 vcc_lo, 0x55555555\n  s_mov_b32 vcc_hi, 0x55555555")
    A("  s_waitcnt lgkmcnt(0)")
    A("  s_branch L_join")
    A("L_last:")
    A("  s_endpgm")
    return "\n".join(o)

def main():
    ap = argparse.ArgumentParser()
    ap.add_argument("--ring", type=int, default=12)
    ap.add_argument("--dslead", type=float, default=6.0)
    ap.add_argument("--stlead", type=float, default=40.0)
    ap.add_argument("--vstcost", type=int, default=24)
    ap.add_argument("--stcool", type=int, default=3)
    ap.add_argument("--sins", type=int, default=6)
    ap.add_argument("--b4blk", type=int, default=9)
    ap.add_argument("--b1at", type=int, default=5)
    ap.add_argument("--b2at", type=int, default=17)
    ap.add_argument("--b3at", type=int, default=29)
    ap.add_argument("--fastp", type=int, default=10)
    ap.add_argument("--pollat", type=int, default=4)
    ap.add_argument("--fsh", type=int, default=5)
    ap.add_argument("--wf", default="")
    ap.add_argument("--bh", type=int, default=1)
    ap.add_argument("--pads", type=int, default=1)
    ap.add_argument("--maxbytes", type=int, default=36)
    ap.add_argument("--age", type=int, default=5)
    ap.add_argument("--padwin", type=int, default=4)
    ap.add_argument("--ndefer", type=int, default=3)
    ap.add_argument("--xwat", type=int, default=33)
    ap.add_argument("--b5at", type=int, default=42)
    ap.add_argument("--xsw", type=int, default=24)
    ap.add_argument("--xwin2", type=int, default=8)
    ap.add_argument("--cwin", type=int, default=4)
    ap.add_argument("--o41", type=int, default=68)
    ap.add_argument("--dswcost", type=int, default=8)
    ap.add_argument("--bxn", type=int, default=24)
    ap.add_argument("--slowp", type=int, default=0)
    ap.add_argument("--slown", type=int, default=10)
    ap.add_argument("--pn", type=int, default=72)
    ap.add_argument("--p0", type=int, default=36)
    ap.add_argument("--fstamp", type=int, default=0)
    ap.add_argument("--swapmn", type=int, default=0)
    ap.add_argument("--scout", type=int, default=1)
    ap.add_argument("--prefn", type=int, default=2)
    ap.add_argument("--presleep", type=int, default=0)
    ap.add_argument("--pausen", type=int, default=0)
    ap.add_argument("--budget", type=int, default=24)
    ap.add_argument("--maxfill", type=int, default=5)
    ap.add_argument("--lgextra", type=int, default=1)
    ap.add_argument("--xwin", type=int, default=7)
    ap.add_argument("--xearly", type=int, default=24)
    ap.add_argument("--sleep", type=int, default=2)
    ap.add_argument("--pref", type=int, default=1)
    ap.add_argument("--stflags", default="sc1")
    ap.add_argument("--xf", default="")
    ap.add_argument("--log", action="store_true")
    ap.add_argument("--nostore", action="store_true")
    ap.add_argument("--stamps", action="store_true")
    opt = ap.parse_args()
    if opt.stflags: opt.stflags = " " + opt.stflags.replace(",", " ")
    if opt.wf: opt.wf = " " + opt.wf.replace(",", " ")
    if opt.stamps: opt.prefn = 4
    if opt.xf: opt.xf = " " + opt.xf.replace(",", " ")
    print(HDR.rstrip())
    print(f"; @launch grid=(256,1,1) block=(256,1,1) lds=163840")
    print('.amdgcn_target "amdgcn-amd-amdhsa--gfx950"\n.text')
    print(main_kernel(opt))
    print('.section .rodata,"a"')
    print(f""".p2align 6
.amdhsa_kernel {KN}
  .amdhsa_next_free_vgpr {256 + 96 + 4 * opt.ring}
  .amdhsa_next_free_sgpr 96
  .amdhsa_accum_offset 256
  .amdhsa_group_segment_fixed_size 0
  .amdhsa_kernarg_size 48
  .amdhsa_user_sgpr_count 2
  .amdhsa_user_sgpr_kernarg_segment_ptr 1
  .amdhsa_system_sgpr_workgroup_id_x 1
.end_amdhsa_kernel""")

main()
```

```python
import sys, struct, argparse, re
import sched
from sched import *

KN = "standalone__swin_window_attn__vision_kernel"
XBYTES = 19267584
SCALE = (192 ** -0.5) * 1.4426950408889634
def f32bits(x): return struct.unpack("<I", struct.pack("<f", x))[0]
HDR = open("standalone__swin_window_attn__vision.s.ref").read().split("; Override launch")[0]
WS_STAMP = 0x1000000
WS_FLAG = 0x40000
WS_EPOCH = 0x50000

def woff(mat, t):
    return 90112 + t * 12288 if mat == 0 else t * 12288

X = lambda tt, s: (tt * 12 + s) * 4
WR0 = 96
ACC = lambda b, k: 16 + (b * 2 + k) * 16
ST = lambda kt, qt: 80 + (kt * 2 + qt) * 16
CB = lambda i: 144 + 16 * i
PB = lambda qt, kt, a: 208 + ((qt * 2 + kt) * 2 + a) * 4
OB = lambda b: 240 + 8 * b
VO = 1
VL = [3, 4, 5]
VPD = 15
FA = 240
VW = [2, 6]
VR = 15
SO = [44, 45, 46, 47]
OSRD = ["s[12:15]", "s[72:75]"]

def mfma(d, ak, a, bk, b, first, tag=""):
    c = "0" if first else rng("v", d, 16)
    rd = R(ak, a, 4) + R(bk, b, 4) + ([] if first else R("v", d, 16))
    return Ins(f"v_mfma_f32_32x32x16_bf16 {rng('v', d, 16)}, {rng(ak, a, 4)}, {rng(bk, b, 4)}, {c}",
               "mfma", rd, R("v", d, 16), srcc=([] if first else R("v", d, 16)), tag=tag)

def valu(op, d, *src, kind="valu", lead=0.0):
    rd = [s for s in src if isinstance(s, str) and s[0] in "vs" and s[1:].isdigit()]
    return Ins(f"{op} {d}, " + ", ".join(str(s) for s in src), kind, rd, [d], lead=lead)

def cvt(d, s0, lead=0.0):
    return valu("v_cvt_pk_bf16_f32", f"v{d}", f"v{s0}", f"v{s0+1}", lead=lead)

class Body:
    def __init__(self, opt):
        self.opt = opt
        self.base = []
        self.nfrag = 0
        self.nob = 0
        self.mf = []
        self.deferred = []
    def add(self, i):
        self.base.append(i); return i
    def wfrag(self, mat, t, s):
        slot = self.nfrag % self.opt.ring; self.nfrag += 1
        reg = WR0 + 4 * slot
        off = woff(mat, t) + s * 1024
        self.add(Ins(f"ds_read_b128 {rng('a', reg, 4)}, v{VL[off >> 16]} offset:{off & 0xffff}", "dsr",
                     [f"v{VL[off >> 16]}", f"L:{mat}:{t}"], R("a", reg, 4), lead=self.opt.dslead))
        return reg
    def cvt16(self, dst, src, lead=0.0):
        for d in range(8): self.add(cvt(dst + d, src + 2 * d, lead))
    def softmax(self, qt):
        vals = [ST(kt, qt) + r for kt in range(2) for r in range(16)]
        t0 = 7 + 4 * qt
        m0, m1, l0, l1 = (f"v{t0+i}" for i in range(4))
        for ch, m in ((vals[:16], m0), (vals[16:], m1)):
            self.add(valu("v_max3_f32", m, f"v{ch[0]}", f"v{ch[1]}", f"v{ch[2]}"))
            for k in range(3, 15, 2):
                self.add(valu("v_max3_f32", m, m, f"v{ch[k]}", f"v{ch[k+1]}"))
        self.add(valu("v_max3_f32", m0, m0, f"v{vals[15]}", f"v{vals[31]}"))
        self.add(valu("v_max_f32", m0, m0, m1))
        self.add(valu("v_mov_b32", m1, m0))
        self.add(Ins(f"v_permlane32_swap_b32 {m0}, {m1}", "perm", [m0, m1], [m0, m1]))
        self.add(valu("v_max_f32", m0, m0, m1))
        for k, v in enumerate(vals):
            self.add(valu("v_sub_f32", f"v{v}", f"v{v}", m0))
            self.add(valu("v_exp_f32", f"v{v}", f"v{v}", kind="trans"))
            l = l0 if k % 2 == 0 else l1
            if k >= 2:
                if k < 4:
                    self.add(valu("v_add_f32", l, f"v{vals[k-2]}", f"v{v}"))
                else:
                    self.add(valu("v_add_f32", l, l, f"v{v}"))
        self.add(valu("v_add_f32", l0, l0, l1))
        self.add(valu("v_mov_b32", l1, l0))
        self.add(Ins(f"v_permlane32_swap_b32 {l0}, {l1}", "perm", [l0, l1], [l0, l1]))
        self.add(valu("v_add_f32", l0, l0, l1))
        self.add(valu("v_rcp_f32", l0, l0, kind="trans"))
        for kt in range(2):
            for a in range(2):
                for d in range(4):
                    s = ST(kt, qt) + 8 * a + 2 * d
                    self.add(valu("v_mul_f32", f"v{s}", f"v{s}", l0))
                    self.add(valu("v_mul_f32", f"v{s+1}", f"v{s+1}", l0))
                    self.add(cvt(PB(qt, kt, a) + d, s))
    def Sblk(self, t, qt, cb, kts=(0, 1)):
        for a in range(2):
            for kt in kts:
                self.add(mfma(ST(kt, qt), "a", X(kt, 2 * t + a), "v", cb + 4 * a, t == 0 and a == 0, tag=f"S{t}{qt}"))
    def Omf(self, t, qt, kt):
        oo = ST(t % 2, qt)
        for a in range(2):
            self.add(mfma(oo, "v", CB(t % 4) + 8 * kt + 4 * a, "v", PB(qt, kt, a), kt == 0 and a == 0, tag=f"O{t}{qt}"))
    def Oout(self, t, qt):
        oo = ST(t % 2, qt)
        par = self.nob % 2; self.nob += 1
        ob = OB(par)
        fl = self.opt.stflags; L = self.opt.stlead
        for d in range(8): self.add(cvt(ob + d, oo + 2 * d, lead=L))
        def s1(dst):
            for d in range(4):
                self.add(Ins(f"v_cndmask_b32_dpp v{dst+d}, v{ob+4+d}, v{ob+d}, vcc quad_perm:[0,0,2,2] row_mask:0xf bank_mask:0xf",
                             "perm", [f"v{ob+4+d}", f"v{ob+d}", "vcc"], [f"v{dst+d}"], lead=L))
        def s2(dst):
            for d in range(4):
                self.add(Ins(f"v_cndmask_b32_dpp v{dst+d}, v{ob+d}, v{ob+4+d}, vcc quad_perm:[1,1,3,3] row_mask:0xf bank_mask:0xf",
                             "perm", [f"v{ob+4+d}", f"v{ob+d}", "vcc"], [f"v{dst+d}"], lead=L))
        def st(reg, odd):
            if self.opt.nostore: return
            self.add(Ins(f"buffer_store_dwordx4 {rng('v', reg, 4)}, v{VO}, {OSRD[qt]}, s{SO[2*qt]} offen offset:{64*t + 384*odd}{fl}",
                         "vst", R("v", reg, 4) + [f"v{VO}"], [], lead=L))
        flip = Ins("s_not_b64 vcc, vcc", "salu", ["vcc"], ["vcc"], lead=L)
        if par == 0:
            s1(oo); st(oo, 0); self.add(flip); s2(ob + 4); st(ob + 4, 1)
        else:
            s2(oo); st(oo, 1); self.add(flip); s1(ob); st(ob, 0)
    def Oblk(self, t, qt):
        self.Omf(t, qt, 0); self.Omf(t, qt, 1); self.Oout(t, qt)
    def bar(self, tiles, after, text="s_barrier", reads=()):
        return self.add(Ins(text, "bar", ["BAR"] + list(reads), ["BAR"] + [f"L:{m}:{t}" for m, t in tiles], after=after))
    def flushS(self, pend):
        t, qt, acc, cb = pend
        self.cvt16(cb, acc)
        if qt == 0 and t < self.opt.ndefer:
            self.Sblk(t, qt, cb, (0,)); self.deferred.append((t, cb))
        else:
            self.Sblk(t, qt, cb)
        if t == 5: self.softmax(qt)

    def build(self, nq):
        opt = self.opt
        SI = opt.sins
        pend = None
        blk = 0
        lastm = None
        allN = [(1, tn) for tn in range(6)]
        for qt in range(nq):
            for t in range(6):
                acc = ACC((blk // 2) % 2, blk % 2)
                if blk == 1: self.bar([(0, 1)], self.mf[opt.b1at])
                if blk == 2: self.bar([(0, 2)], self.mf[opt.b2at])
                if blk == 3: self.bar([(0, 3)], self.mf[opt.b3at])
                if blk == opt.ndefer + 1:
                    self.add(Ins("s_waitcnt vmcnt(0)", "salu", [], ["XW"], after=self.mf[opt.xwat], lead=50))
                    for s in range(12):
                        self.add(Ins(f"ds_read_b128 {rng('a', X(1, s), 4)}, v{FA+s%4} offset:{(s//4)*128 + 12288}", "dsr",
                                     ["XW", f"v{FA+s%4}"], R("a", X(1, s), 4), lead=50))
                    b5 = self.bar([(0, 4), (0, 5)], self.mf[opt.b5at], reads=[r for s in range(12) for r in R("a", X(1, s), 4)])
                    b5.lead = 200
                    for tt, cb in self.deferred: self.Sblk(tt, 0, cb, (1,))
                if blk == opt.b4blk: self.bar(allN, lastm, "s_waitcnt vmcnt(0)\n  s_barrier")
                for s in range(12):
                    if s == SI and pend is not None:
                        self.flushS(pend); pend = None
                    w = self.wfrag(0, t, s)
                    lastm = self.add(mfma(acc, "a", w, "a", X(qt, s), s == 0, tag=f"T{t}{qt}"))
                    self.mf.append(lastm)
                    if blk == 6 and s == 0: self.join = lastm
                pend = (t, qt, acc, CB((blk // 2) % 4) + 8 * (blk % 2))
                blk += 1
        if nq == 2:
            pos = {(1,4): [(0,0)], (2,4): [(1,0)], (2,8): [(0,1)], (3,0): [(1,1)], (3,4): [(2,0)], (3,9): [(2,1)],
                   (4,4): [(3,0)], (4,9): [(3,1)], (5,4): [(4,0)], (opt.o41 // 12, opt.o41 % 12): [(4,1)]}
        else:
            pos = {(2,8): [(0,0)], (3,0): [(1,0)], (3,6): [(2,0)], (4,4): [(3,0)], (6,0): [(4,0)]}
        yb = (blk // 2) % 2
        if nq == 1: yb = 1
        for t in range(6):
            steps = [(s, None) for s in range(12)] if t < 5 else [(s, 0) for s in range(12)] + [(s, 1) for s in range(12)]
            for n, (s, only) in enumerate(steps):
                p = n if t < 5 else n // 2 if n % 2 == 0 else -1
                if p == SI // 2 + 1 and pend is not None:
                    self.flushS(pend); pend = None
                if p == 4 and t >= 1:
                    for kt in range(2): self.cvt16(CB((t - 1) % 4) + 8 * kt, ACC((t - 1 + yb) % 2, kt))
                for ob in pos.get((t, p), []): self.Oblk(*ob)
                w = self.wfrag(1, t, s)
                for kt in range(2):
                    if only is None or only == kt:
                        self.add(mfma(ACC((t + yb) % 2, kt), "a", X(kt, s), "a", w, s == 0, tag=f"Y{t}"))
        L = self.opt.stlead + 5
        self.cvt16(CB(5 % 4), ACC((5 + yb) % 2, 0), lead=L)
        for ob in pos.get((6, 0), []): self.Oblk(*ob)
        for qt in range(nq): self.Omf(5, qt, 0)
        self.cvt16(CB(5 % 4) + 8, ACC((5 + yb) % 2, 1), lead=L)
        for qt in range(nq):
            self.Omf(5, qt, 1)
        for qt in range(nq):
            self.Oout(5, qt)

_ph = [0]
ROLE = ["h"]
def stamp(A, opt, k):
    if opt.probe is not None:
        if (ROLE[0], k) == opt.probe or (k == 0 and opt.probe[1] == 0):
            A("  s_memrealtime s[56:57]")
            A("  s_waitcnt lgkmcnt(0)")
        return
    if opt.stamps:
        A(f"  s_memrealtime s[{56+2*k}:{57+2*k}]")
        A(f"  s_memtime s[{76+2*k}:{77+2*k}]")
        A(f"  s_waitcnt lgkmcnt(0)")

def stamp_out(A, opt):
    if opt.probe is not None:
        if ROLE[0] != opt.probe[0]: return
        _ph[0] += 1; n = _ph[0]
        A(f"  s_sub_u32 s60, s2, {opt.pwg[0]}")
        A(f"  s_cmp_ge_u32 s60, {opt.pwg[1] - opt.pwg[0]}")
        A(f"  s_cbranch_scc1 L_hx{n}")
        if ROLE[0] == "m":
            A("  s_cmp_eq_u32 s20, 3")
            A(f"  s_cbranch_scc1 L_hx{n}")
        A(f"L_hold{n}:")
        A("  s_memrealtime s[58:59]")
        A("  s_waitcnt lgkmcnt(0)")
        A("  s_sub_u32 s60, s58, s56")
        A("  s_cmp_lt_u32 s60, 1500")
        A(f"  s_cbranch_scc1 L_hold{n}")
        A(f"L_hx{n}:")
        return
    if not opt.stamps: return
    for k in range(8): A(f"  v_mov_b32 v{16+k}, s{56+2*k}")
    for k in range(8): A(f"  v_mov_b32 v{24+k}, s{76+2*k}")
    A(f"  s_lshl_b32 s26, s2, 2\n  s_add_u32 s26, s26, s20\n  s_lshl_b32 s26, s26, 5\n  s_add_u32 s26, s26, {WS_STAMP}")
    A("  s_mov_b32 s18, 0x10000000")
    A("  v_mov_b32 v7, 0")
    A("  buffer_store_dwordx4 v[16:19], v7, s[16:19], s26 offen")
    A("  buffer_store_dwordx4 v[20:23], v7, s[16:19], s26 offen offset:16")
    A("  s_add_u32 s26, s26, 0x10000")
    A("  buffer_store_dwordx4 v[24:27], v7, s[16:19], s26 offen")
    A("  buffer_store_dwordx4 v[28:31], v7, s[16:19], s26 offen offset:16")

def bound(A, label):
    A("  s_add_u32 s92, s92, 1")
    A("  s_cmp_gt_u32 s92, 50000")
    A(f"  s_cbranch_scc1 {label}_x")

def check_issue(A):
    A("  buffer_load_dwordx2 v[14:15], off, s[36:39], 0 sc1")
    A("  buffer_load_dwordx2 v[12:13], v2, s[16:19], s93 offen sc1")

def spin_first(A, opt):
    A("  s_branch L_pollA_0")
    A("L_pollA:")
    A(f"  s_sleep {opt.sleep}")
    check_issue(A)
    bound(A, "L_pollA")
    A("L_pollA_0:")
    A("  s_waitcnt vmcnt(0)")
    A("  v_cmp_ne_u64 vcc, v[12:13], v[14:15]")
    A("  v_cmp_eq_u32 s[26:27], 0, v14")
    A("  s_nop 1")
    A("  s_or_b64 vcc, vcc, s[26:27]")
    A("  s_and_b32 s26, vcc_lo, 0x3f")
    A("  s_cbranch_scc1 L_pollA")
    A("L_pollA_x:")

def spin_flags(A, label, sreg, sleep):
    A(f"  s_branch {label}_0")
    A(f"{label}:")
    A(f"  s_sleep {sleep}")
    A(f"{label}_0:")
    A(f"  buffer_load_dwordx2 v[12:13], v2, s[16:19], {sreg} offen sc1")
    bound(A, label)
    A("  s_waitcnt vmcnt(0)")
    A("  v_cmp_ne_u64 vcc, v[12:13], v[14:15]")
    A(f"  s_cbranch_vccnz {label}")
    A(f"{label}_x:")

def stage_offsets(A, rowx):
    for k in range(3):
        A(f"  v_add_u32 v9, {64*k}, v8")
        A("  v_mul_u32_u24 v9, 0xaab, v9")
        if rowx:
            A("  v_lshrrev_b32 v10, 16, v9")
            A(f"  v_mul_u32_u24 v10, {rowx}, v10")
        A("  v_lshrrev_b32 v9, 17, v9")
        A("  v_xor_b32 v9, v9, v8")
        if rowx:
            A("  v_xor_b32 v11, 4, v9")
            A(f"  v_lshl_add_u32 v{16+2*k}, v9, 4, v10")
            A(f"  v_lshl_add_u32 v{17+2*k}, v11, 4, v10")
        else:
            A(f"  v_lshlrev_b32 v{16+2*k}, 4, v9")
            A(f"  v_xor_b32 v{17+2*k}, 64, v{16+2*k}")

def frag_addrs(A, jreg, base, dst=24):
    A(f"  v_mul_u32_u24 v10, 384, {jreg}")
    A(f"  v_add_u32 v10, {base}, v10")
    A(f"  v_bfe_u32 v11, {jreg}, 1, 3")
    A("  v_lshrrev_b32 v12, 5, v8")
    A("  v_xor_b32 v11, v11, v12")
    for m in range(4):
        A(f"  v_xor_b32 v13, {2*m}, v11")
        A(f"  v_lshl_add_u32 v{dst+m}, v13, 4, v10")

def fold(A, opt):
    SC = 73728
    A("  s_cmp_ge_u32 s2, 36")
    A("  s_cselect_b32 s51, 36, 0")
    A("  s_cselect_b64 vcc, -1, 0")
    A("  s_cselect_b32 s50, 768, 0")
    A("  s_cselect_b32 s21, 64, 36864")
    A("  s_cselect_b32 s24, 0, 384")
    A("  s_cselect_b32 s25, 18432, s10")
    A("  s_cselect_b32 s34, 73728, s30")
    A("  s_sub_u32 s51, s2, s51")
    A("  s_mul_i32 s48, s51, 43")
    A("  s_lshr_b32 s48, s48, 8")
    A("  s_mul_i32 s49, s48, 6")
    A("  s_sub_u32 s49, s51, s49")
    A("  s_mul_i32 s22, s49, 36864")
    A("  s_add_u32 s22, s22, s50")
    A("  s_mul_i32 s23, s48, s21")
    A("  s_add_u32 s23, s23, s24")
    stage_offsets(A, 768)
    A("  v_lshrrev_b32 v14, 2, v8")
    A("  v_mul_u32_u24 v14, 384, v14")
    A("  v_and_b32 v13, 3, v8")
    A("  v_lshl_add_u32 v14, v13, 4, v14")
    for k in range(3):
        if k: A(f"  v_add_u32 v14, 5120, v14")
        A(f"  v_cndmask_b32 v{144+2*k}, v{16+2*k}, v14, vcc")
        A(f"  v_cndmask_b32 v{145+2*k}, v{17+2*k}, v14, vcc")
    A("  s_waitcnt lgkmcnt(0)")
    A("  s_cmp_ge_u32 s2, 36")
    A("  s_mov_b64 s[28:29], s[6:7]")
    A("  s_cselect_b64 s[32:33], s[40:41], s[6:7]")
    def panel(sreg, lds, v0, srd, step):
        for r in range(4):
            A(f"  s_mov_b32 m0, {lds + 3072*r}")
            if r: A(f"  s_add_u32 {sreg}, {sreg}, {step}")
            else: A("  s_nop 0")
            for k in range(3):
                A(f"  buffer_load_dwordx4 v{v0+2*k+(r%2)}, {srd}, {sreg} offen offset:{1024*k}{opt.wf} lds")
    panel("s23", SC + 12288, 144, "s[32:35]", "s25")
    panel("s22", SC, 16, "s[28:31]", 9216)
    srd_consts(A, opt, True)
    srd_bases(A, True)
    A(f"  s_mov_b32 s95, {WS_EPOCH}")
    A("  buffer_load_dwordx2 v[6:7], off, s[16:19], s95 sc1")
    stamp(A, opt, 7)
    if opt.bh: A("  s_barrier")
    helper_misc(A, opt)
    A("  v_and_b32 v9, 0x13, v8")
    A("  v_and_b32 v10, 4, v8")
    A("  v_lshl_or_b32 v9, v10, 1, v9")
    A("  v_and_b32 v10, 8, v8")
    A("  v_lshrrev_b32 v10, 1, v10")
    A("  v_or_b32 v9, v9, v10")
    frag_addrs(A, "v9", SC)
    A("  v_bfe_u32 v14, v8, 2, 2")
    A("  v_lshl_add_u32 v14, v12, 3, v14")
    A("  v_lshlrev_b32 v14, 6, v14")
    A("  v_bfe_u32 v13, v8, 4, 1")
    A("  v_lshl_add_u32 v14, v13, 4, v14")
    A("  v_and_b32 v13, 1, v8")
    A("  v_lshl_add_u32 v14, v13, 5, v14")
    A("  v_bfe_u32 v13, v8, 1, 1")
    A("  v_lshl_add_u32 v14, v13, 3, v14")
    A(f"  v_add_u32 v14, {SC + 12288}, v14")
    A("  s_mul_i32 s26, s48, 12288")
    A(f"  s_add_u32 s27, s26, {woff(0,0)}")
    A("  s_lshl_b32 s54, s49, 11")
    A("  s_cmp_ge_u32 s2, 36")
    A("  s_cselect_b32 s26, s26, s27")
    A(f"  s_cselect_b32 s27, 1.0, {f32bits(SCALE):#x}")
    A("  s_add_u32 s26, s26, s54")
    A(f"  s_lshl_b32 s54, s2, {opt.fsh}")
    A(f"  s_add_u32 s54, s54, {WS_FLAG}")
    if opt.fstamp: stamp(A, opt, 5)
    A("  s_waitcnt vmcnt(13)")
    if opt.fstamp: stamp(A, opt, 3)
    A("  s_cbranch_vccnz L_fold_tr")
    for s in range(12):
        A(f"  ds_read_b128 v[{80+4*s}:{83+4*s}], v{24+s%4} offset:{(s//4)*128 + 12288}")
    A("  s_branch L_fold_a")
    A("L_fold_tr:")
    for s in range(12):
        for jj in range(2):
            A(f"  ds_read_b64_tr_b16 v[{80+4*s+2*jj}:{81+4*s+2*jj}], v14 offset:{1024*s + 256*jj}")
        if s == 6: A("  s_waitcnt lgkmcnt(0)")
    A("L_fold_a:")
    A("  s_waitcnt vmcnt(1) lgkmcnt(0)")
    if opt.fstamp: stamp(A, opt, 4)
    for s in range(12):
        A(f"  ds_read_b128 v[{32+4*s}:{35+4*s}], v{24+s%4} offset:{(s//4)*128}")
    for s in range(12):
        c = "0" if s == 0 else "v[128:143]"
        A(f"  s_waitcnt lgkmcnt({11-s})")
        A(f"  v_mfma_f32_32x32x16_bf16 v[128:143], v[{32+4*s}:{35+4*s}], v[{80+4*s}:{83+4*s}], {c}")
    stamp(A, opt, 1)
    A("  s_waitcnt vmcnt(0)")
    A("  v_add_co_u32 v6, vcc, 2, v6")
    A("  s_nop 1")
    A("  v_addc_co_u32 v7, vcc, 0, v7, vcc")
    A("  v_or_b32 v6, 1, v6")
    A("  s_nop 5")
    for d in range(8):
        A(f"  v_mul_f32 v{128+2*d}, s27, v{128+2*d}")
        A(f"  v_mul_f32 v{129+2*d}, s27, v{129+2*d}")
        A(f"  v_cvt_pk_bf16_f32 v{32+d}, v{128+2*d}, v{129+2*d}")
        if d == 3: A(f"  buffer_store_dwordx4 v[32:35], v{VL[0]}, s[16:19], s26 offen sc1")
    A(f"  buffer_store_dwordx4 v[36:39], v{VL[0]}, s[16:19], s26 offen offset:1024 sc1")
    A("  s_mov_b64 exec, 1")
    A("  s_cmp_lg_u32 s2, 0")
    A("  s_cbranch_scc1 L_fold_pub")
    A("  buffer_store_dwordx2 v[6:7], off, s[36:39], 0 sc1")
    A("  s_waitcnt vmcnt(1)")
    A("  s_branch L_fold_pub2")
    A("L_fold_pub:")
    A("  s_waitcnt vmcnt(0)")
    A("L_fold_pub2:")
    stamp(A, opt, 2)
    A("  buffer_store_dwordx2 v[6:7], off, s[16:19], s54 sc1")
    A("  s_mov_b64 exec, -1")
    stamp(A, opt, 6)
    A("  s_branch L_loader")

def helper_misc(A, opt):
    A("  s_mov_b32 s14, 0")
    A(f"  v_mov_b32 v{VO}, 0")
    A("  v_min_u32 v2, 35, v8")
    A(f"  v_lshlrev_b32 v2, {opt.fsh}, v2")
    A("  s_lshr_b32 s26, s2, 3")
    if opt.scout == 1:
        A("  s_mul_i32 s27, s26, 57")
        A("  s_lshr_b32 s27, s27, 9")
        A("  s_mul_i32 s27, s27, 9")
        A("  s_sub_u32 s26, s26, s27")
        A("  s_lshl_b32 s26, s26, 13")
        A("  v_lshl_add_u32 v28, v8, 7, s26")
    else:
        A("  s_cmp_ge_u32 s26, 18")
        A("  s_cselect_b32 s27, 14, 0")
        A("  s_sub_u32 s26, s26, s27")
        A("  s_lshl_b32 s26, s26, 12")
        A("  v_and_b32 v28, 31, v8")
        A("  v_lshl_add_u32 v28, v28, 7, s26")
    A(f"  s_mov_b32 s3, {woff(0, 0)}")

def srd_consts(A, opt, prod=False):
    A(f"  s_mov_b32 s10, {XBYTES}\n  s_mov_b32 s11, 0x00020000")
    A(f"  s_mov_b32 s15, 0x00020000")
    A("  s_mov_b32 s18, 0x60000\n  s_mov_b32 s19, 0x00020000")
    A("  s_mov_b32 s38, 256\n  s_mov_b32 s39, 0x00020000")
    A(f"  s_mov_b32 s74, {XBYTES}\n  s_mov_b32 s75, 0x00020000")
    A(f"  s_mov_b32 s93, {WS_FLAG}")
    A(f"  s_mov_b32 s94, {WS_FLAG + (36 << opt.fsh)}")
    A("  s_mov_b32 s92, 0")

def srd_bases(A, prod=False):
    if not prod: A("  s_waitcnt lgkmcnt(0)")
    A("  s_mov_b64 s[8:9], s[4:5]\n  s_mov_b64 s[16:17], s[54:55]\n  s_mov_b64 s[36:37], s[52:53]")
    A("  s_mov_b64 s[12:13], s[42:43]\n  s_mov_b64 s[72:73], s[42:43]")

def emit_body(A, opt, nq, em, pre, stmap, pre_lines):
    b = Body(opt); b.build(nq)
    em.age = opt.age
    log = []
    sched.COST["vst"] = opt.vstcost
    sched.COST["dsw"] = opt.dswcost
    stalls = schedule(pre + b.base, em, budget=opt.budget, maxfill=opt.maxfill, lg_extra=opt.lgextra, log=log,
                      prefill=7, cooldown={'vst': opt.stcool}, padwin=opt.padwin, maxbytes=opt.maxbytes)
    verify(pre + b.base, em.out)
    nm = sum(1 for i in em.out if i.kind == "mfma")
    sys.stderr.write(f"body{nq}: instrs {len(em.out)} mfma {nm} forced-cycles {stalls}\n")
    if opt.log:
        for l in log: sys.stderr.write(str(l) + "\n")
    ji = em.out.index(b.join)
    if em.out[ji - 1].kind == "wait": ji -= 1
    live = []
    for k, i in enumerate(em.out[:ji]):
        if i.kind != "dsr" or int(i.writes[0][1:]) < WR0: continue
        w = set(i.writes)
        later_w = any(j.kind == "dsr" and set(j.writes) & w for j in em.out[k + 1:ji])
        used_before = any(j.kind == "mfma" and set(j.reads) & w for j in em.out[k + 1:ji])
        if not later_w and not used_before: live.append(i.text)
    opt.join_reads = live
    lines = list(pre_lines)
    L = lines.append
    nb = 0
    for k, i in enumerate(em.out):
        if k == ji: L("L_join:")
        for t in i.text.split("\n"): L("  " + t.strip() + (f"   ; {i.tag}" if i.tag else ""))
        if opt.stamps and i.kind == "bar":
            if nb in stmap:
                if opt.probe is None: L("  s_waitcnt lgkmcnt(0)")
                stamp(L, opt, stmap[nb])
            nb += 1
    if opt.stamps:
        stamp(L, opt, 6)
        L("  s_waitcnt vmcnt(0)")
        stamp(L, opt, 7)
        stamp_out(L, opt)
    L("  s_endpgm")
    lines = [x for l in lines for x in l.split("\n")]
    sizes = insn_sizes([re.sub(r"L_h\w+", "L_pad1", l) for l in lines if not l.endswith(":")])
    total = sum(sizes)
    sys.stderr.write(f"body bytes {total}\n")
    npad = (total + 16) // 4096 if opt.pads else 0
    addr = 0; k = 0; placed = 0
    for l in lines:
        if l.endswith(":"):
            A(l); continue
        if placed < npad and addr >= 4096 * (placed + 1):
            placed += 1
            A(f"L_pad{placed}:")
            A(f"  s_cbranch_execz {'L_pad%d' % (placed + 1) if placed < npad else 'L_padret'}")
            addr += 4
        A(l); addr += sizes[k]; k += 1
    assert placed == npad

def insn_sizes(lines):
    import subprocess, tempfile, re, os
    src = '.amdgcn_target "amdgcn-amd-amdhsa--gfx950"\n.text\nL_pad1:\n' + "\n".join(lines) + "\n"
    open("_sz.s", "w").write(src)
    subprocess.check_call(["clang", "-x", "assembler", "-target", "amdgcn-amd-amdhsa", "-mcpu=gfx950", "-c", "_sz.s", "-o", "_sz.o"])
    out = subprocess.check_output(["llvm-objdump", "-d", "--mcpu=gfx950", "_sz.o"]).decode()
    res = []
    for l in out.splitlines():
        m = re.search(r"// [0-9A-F]{12}: ((?:[0-9A-F]{8} ?)+)", l)
        if m: res.append(4 * len(m.group(1).split()))
    assert len(res) == len(lines), (len(res), len(lines))
    return res

def win_base(A):
    A("  s_mul_hi_u32 s23, s21, 153391690")
    A("  s_mul_i32 s24, s23, 28")
    A("  s_sub_u32 s24, s21, s24")
    A("  s_mul_i32 s23, s23, 688128")
    A("  s_mul_i32 s24, s24, 3072")
    A(f"  s_add_u32 s{SO[0]}, s23, s24")

def x_row(A, r):
    A(f"  s_add_u32 m0, s24, {3072*r}")
    if r % 4: A("  s_add_u32 s25, s25, 86016")
    else: A(f"  s_mov_b32 s25, s{SO[r // 2]}")

def x_load(A, opt, r, k):
    A(f"  buffer_load_dwordx4 v{16+2*k+(r%2)}, s[8:11], s25 offen offset:{1024*k}{opt.xf} lds")

def x_frags(A, tt, step=12288):
    for s in range(12):
        A(f"  ds_read_b128 {rng('a', X(tt, s), 4)}, v{FA+s%4} offset:{(s//4)*128 + tt*step}")

def win_addrs(A):
    A(f"  v_add_u32 v{VL[1]}, 0x10000, v{VL[0]}")
    A(f"  v_add_u32 v{VL[2]}, 0x20000, v{VL[0]}")
    A("  v_and_b32 v9, 31, v8")
    frag_addrs(A, "v9", "s24", FA)

def out_addrs(A):
    A("  v_bfe_u32 v9, v8, 3, 2")
    A("  v_mul_u32_u24 v9, 86016, v9")
    A("  v_and_b32 v10, 6, v8")
    A("  v_mul_u32_u24 v10, 384, v10")
    A("  v_and_b32 v11, 1, v8")
    A("  v_lshlrev_b32 v11, 4, v11")
    A("  v_and_b32 v12, 32, v8")
    A("  v_or_b32 v11, v11, v12")
    A(f"  v_add3_u32 v{VO}, v9, v10, v11")

def main_kernel(opt):
    o = []
    A = o.append
    A(f".globl {KN}\n.p2align 12\n.p2align 8\n.type {KN},@function\n{KN}:")
    stamp(A, opt, 0)
    A("  s_load_dwordx4 s[4:7], s[0:1], 0")
    A("  s_load_dwordx4 s[40:43], s[0:1], 16")
    A("  s_load_dwordx4 s[52:55], s[0:1], 32")
    A("  v_lshrrev_b32 v7, 6, v0")
    A("  s_cmp_ge_u32 s2, 256")
    A("  s_cbranch_scc1 L_end")
    A("  v_readfirstlane_b32 s20, v7")
    A("  v_and_b32 v8, 63, v0")
    A(f"  v_lshlrev_b32 v{VL[0]}, 4, v8")
    A("  s_cmp_lg_u32 s20, 3")
    A("  s_cbranch_scc1 L_window")
    A("  s_cmp_ge_u32 s2, 72")
    A("  s_cbranch_scc1 L_pref")
    A("  s_mov_b32 s30, 221184\n  s_mov_b32 s31, 0x00020000\n  s_mov_b32 s35, 0x00020000\n  s_mov_b32 s10, 9216")
    fold(A, opt)
    nl = [0]
    def hdma(mat, t, n=1):
        nl[0] += 1
        A(f"  s_mov_b32 m0, {woff(mat, t)}")
        A("  s_nop 0")
        A(f"L_fill{nl[0]}:")
        for k in range(4):
            A(f"  buffer_load_dwordx4 v{VL[0]}, s[16:19], m0 offen offset:{1024*k} sc1 lds")
        A("  s_add_u32 m0, m0, 4096")
        A(f"  s_cmp_lt_u32 m0, {woff(mat, t) + 12288*n}")
        A(f"  s_cbranch_scc1 L_fill{nl[0]}")
    ROLE[0] = "m"
    A(".p2align 6")
    A("L_window:")
    A("  s_mul_i32 s21, s2, 3")
    A("  s_add_u32 s21, s21, s20")
    win_base(A)
    A(f"  s_add_u32 s{SO[2]}, s{SO[0]}, 344064")
    A("  s_mul_i32 s24, s20, 24576")
    A(f"  s_mov_b32 s14, {XBYTES}")
    stage_offsets(A, 0)
    srd_consts(A, opt)
    srd_bases(A)
    if opt.fastp:
        A(f"  s_sub_u32 s26, s2, {opt.p0}")
        A(f"  s_cmp_lt_u32 s26, {opt.pn - opt.p0}")
        A("  s_cselect_b64 vcc, -1, 0")
    if opt.bh:
        A("  s_cmp_ge_u32 s2, 72")
        A("  s_cbranch_scc1 L_nobh")
        A("  s_barrier")
        A("L_nobh:")
    n = 0
    if opt.fstamp: stamp(A, opt, 1)
    for r in range(8):
        x_row(A, r)
        for k in range(3):
            w = opt.xwin if n < opt.xsw else opt.xwin2
            if n >= w:
                if opt.fastp > w: A(f"  s_cbranch_vccnz L_xs{n}")
                A(f"  s_waitcnt vmcnt({w-1})")
                if opt.fastp > w:
                    A(f"L_xs{n}:")
                    if n >= opt.fastp: A(f"  s_waitcnt vmcnt({opt.fastp-1})")
            if n == opt.bxn: A("  s_barrier")
            x_load(A, opt, r, k)
            n += 1
        if r == 1:
            win_addrs(A)
            out_addrs(A)
    if not opt.fstamp: stamp(A, opt, 1)
    if opt.bxn >= 24:
        A(f"  s_waitcnt vmcnt({opt.pollat})")
        A("  s_barrier")
    A("  s_waitcnt vmcnt(12)")
    x_frags(A, 0)
    A("  s_mov_b32 vcc_lo, 0x55555555\\n  s_mov_b32 vcc_hi, 0x55555555".replace("\\n", "\n"))
    if opt.pads:
        A("  s_mov_b64 exec, 0")
        A("  s_branch L_pad1")
    else:
        A("  s_branch L_padret")
    ROLE[0] = "h"
    A(".p2align 6")
    A("L_pref:")
    srd_consts(A, opt)
    helper_misc(A, opt)
    srd_bases(A)
    if opt.pref:
        A("  s_getpc_b64 s[48:49]")
        A("L_pc:")
        A(f"  s_sub_u32 s48, s48, L_pc-{KN}")
        A("  s_subb_u32 s49, s49, 0")
        A("  s_lshr_b32 s26, s2, 3")
        A(f"  s_and_b32 s26, s26, {opt.prefn - 1}")
        A("  s_lshl_b32 s26, s26, 13")
        A("  s_add_u32 s26, s26, 1024")
        A("  v_lshl_add_u32 v9, v8, 7, s26")
        A(f"  v_min_u32 v9, L_last-{KN}, v9")
        A("  global_load_dword v29, v9, s[48:49]")
    A("  s_add_u32 s21, s2, 1312")
    A("  s_and_b32 s22, s21, 1")
    A("  s_lshr_b32 s21, s21, 1")
    win_base(A)
    A("  s_mul_i32 s22, s22, 344064")
    A(f"  s_add_u32 s{SO[2]}, s{SO[0]}, 344064")
    A(f"  s_sub_u32 s{SO[2]}, s{SO[2]}, s22")
    A(f"  s_add_u32 s{SO[0]}, s{SO[0]}, s22")
    A("  s_mov_b32 s24, 49152")
    stage_offsets(A, 0)
    A("  s_cmp_lt_u32 s2, 224")
    A("  s_cbranch_scc1 L_loader")
    n = 0
    for r in range(4, 8):
        A(f"  s_mov_b32 m0, {73728 + 3072*(r-4)}")
        A(f"  s_add_u32 s25, s{SO[2]}, {86016*(r%4)}")
        for k in range(3):
            if n >= opt.cwin: A(f"  s_waitcnt vmcnt({opt.cwin-1})")
            x_load(A, opt, r, k); n += 1
    win_addrs(A)
    out_addrs(A)
    A("  s_branch L_loader")
    ROLE[0] = "m"
    A(".p2align 12")
    pl = []
    P = pl.append
    P("L_padret:")
    if opt.pads: P("  s_mov_b64 exec, -1")
    P("  s_waitcnt lgkmcnt(0)")
    stamp(P, opt, 2)
    P("  s_barrier")
    stamp(P, opt, 3)
    emit_body(A, opt, 2, Emitter(), [], {3: 4, 4: 5}, pl)
    A(".p2align 6")
    ROLE[0] = "h"
    A("L_loader:")
    A("  s_barrier")
    check_issue(A)
    spin_first(A, opt)
    if not opt.fstamp: stamp(A, opt, 3)
    hdma(0, 0)
    A("  s_cmp_eq_u64 vcc, 0")
    A("  s_cbranch_scc1 L_pollB_x")
    spin_flags(A, "L_pollB", "s93", opt.sleep)
    e = 0
    if opt.scout:
        A("  buffer_load_dword v29, v28, s[16:19], s3 offen sc1"); e = 1
    hdma(0, 1)
    A(f"  s_waitcnt vmcnt({12+e}) lgkmcnt(0)")
    if not opt.fstamp: stamp(A, opt, 4)
    A("  s_barrier")
    A("  buffer_load_dwordx2 v[12:13], v2, s[16:19], s94 offen sc1")
    hdma(0, 2)
    A("  s_waitcnt vmcnt(13)")
    A("  s_barrier")
    hdma(0, 3, 2)
    A("  s_waitcnt vmcnt(24)")
    A("  s_barrier")
    hdma(0, 5)
    A("  v_cmp_ne_u64 vcc, v[12:13], v[14:15]")
    A("  s_waitcnt vmcnt(24)")
    A("  s_barrier")
    A("  s_cmp_lt_u32 s2, 224")
    A("  s_cbranch_scc1 L_nox")
    A("  s_waitcnt vmcnt(0)")
    for r in range(4):
        x_row(A, r)
        for k in range(3): x_load(A, opt, r, k)
    A("L_nox:")
    A("  s_cbranch_vccnz L_nlate")
    A("  buffer_load_dword v29, v28, s[16:19], 0 offen sc1")
    hdma(1, 0)
    A("  s_cmp_ge_u32 s2, 224")
    A("  s_cbranch_scc1 L_b5")
    hdma(1, 4)
    A("  s_waitcnt vmcnt(25)")
    A("L_b5:")
    A("  s_barrier")
    A("L_nback:")
    A("  s_cmp_lg_u32 s2, 0")
    A("  s_cbranch_scc1 L_noep")
    A("  s_mov_b64 exec, 1")
    A("  buffer_store_dwordx2 v[6:7], off, s[16:19], s95 sc1")
    A("  s_mov_b64 exec, -1")
    A("L_noep:")
    hdma(1, 1, 3)
    A("  s_cmp_ge_u32 s2, 224")
    A("  s_cbranch_scc1 L_late")
    A("  s_waitcnt vmcnt(48)")
    hdma(1, 5)
    if not opt.fstamp: stamp(A, opt, 5)
    A("  s_waitcnt vmcnt(0)")
    A("  s_barrier")
    stamp_out(A, opt)
    A("L_end:")
    A("  s_endpgm")
    A("L_nlate:")
    A("  s_waitcnt vmcnt(0)")
    A("  s_barrier")
    spin_flags(A, "L_pollN", "s94", opt.sleep)
    A("  buffer_load_dword v29, v28, s[16:19], 0 offen sc1")
    hdma(1, 0)
    A("  s_cmp_ge_u32 s2, 224")
    A("  s_cbranch_scc1 L_nback")
    hdma(1, 4)
    A("  s_branch L_nback")
    A("L_late:")
    x_frags(A, 1, 24576)
    A("  s_waitcnt vmcnt(36) lgkmcnt(0)")
    x_frags(A, 0)
    hdma(1, 5)
    A("  s_waitcnt lgkmcnt(0)")
    for t in opt.join_reads: A("  " + t)
    hdma(1, 4)
    if not opt.fstamp: stamp(A, opt, 5)
    A("  s_mov_b32 vcc_lo, 0x55555555\n  s_mov_b32 vcc_hi, 0x55555555")
    A("  s_waitcnt lgkmcnt(0)")
    A("  s_branch L_join")
    A("L_last:")
    A("  s_endpgm")
    return "\n".join(o)

def main():
    ap = argparse.ArgumentParser()
    ap.add_argument("--ring", type=int, default=12)
    ap.add_argument("--dslead", type=float, default=6.0)
    ap.add_argument("--stlead", type=float, default=40.0)
    ap.add_argument("--vstcost", type=int, default=24)
    ap.add_argument("--stcool", type=int, default=3)
    ap.add_argument("--sins", type=int, default=6)
    ap.add_argument("--b4blk", type=int, default=9)
    ap.add_argument("--b1at", type=int, default=5)
    ap.add_argument("--b2at", type=int, default=17)
    ap.add_argument("--b3at", type=int, default=29)
    ap.add_argument("--fastp", type=int, default=10)
    ap.add_argument("--pollat", type=int, default=4)
    ap.add_argument("--fsh", type=int, default=5)
    ap.add_argument("--wf", default="")
    ap.add_argument("--bh", type=int, default=1)
    ap.add_argument("--pads", type=int, default=1)
    ap.add_argument("--maxbytes", type=int, default=36)
    ap.add_argument("--age", type=int, default=5)
    ap.add_argument("--padwin", type=int, default=4)
    ap.add_argument("--ndefer", type=int, default=3)
    ap.add_argument("--xwat", type=int, default=33)
    ap.add_argument("--b5at", type=int, default=42)
    ap.add_argument("--xsw", type=int, default=24)
    ap.add_argument("--xwin2", type=int, default=8)
    ap.add_argument("--cwin", type=int, default=4)
    ap.add_argument("--o41", type=int, default=68)
    ap.add_argument("--dswcost", type=int, default=8)
    ap.add_argument("--bxn", type=int, default=24)
    ap.add_argument("--slowp", type=int, default=0)
    ap.add_argument("--slown", type=int, default=10)
    ap.add_argument("--pn", type=int, default=72)
    ap.add_argument("--p0", type=int, default=36)
    ap.add_argument("--fstamp", type=int, default=0)
    ap.add_argument("--swapmn", type=int, default=0)
    ap.add_argument("--scout", type=int, default=1)
    ap.add_argument("--prefn", type=int, default=2)
    ap.add_argument("--presleep", type=int, default=0)
    ap.add_argument("--pausen", type=int, default=0)
    ap.add_argument("--budget", type=int, default=24)
    ap.add_argument("--maxfill", type=int, default=5)
    ap.add_argument("--lgextra", type=int, default=1)
    ap.add_argument("--xwin", type=int, default=7)
    ap.add_argument("--xearly", type=int, default=24)
    ap.add_argument("--sleep", type=int, default=2)
    ap.add_argument("--pref", type=int, default=1)
    ap.add_argument("--stflags", default="sc1")
    ap.add_argument("--xf", default="")
    ap.add_argument("--log", action="store_true")
    ap.add_argument("--nostore", action="store_true")
    ap.add_argument("--stamps", action="store_true")
    ap.add_argument("--probe", default=None)
    ap.add_argument("--pwg", default="0,256")
    opt = ap.parse_args()
    if opt.probe:
        opt.probe = (opt.probe[0], int(opt.probe[1:])); opt.stamps = True
        opt.pwg = [int(x) for x in opt.pwg.split(",")]
    if opt.stflags: opt.stflags = " " + opt.stflags.replace(",", " ")
    if opt.wf: opt.wf = " " + opt.wf.replace(",", " ")
    if opt.stamps and not opt.probe: opt.prefn = 4
    if opt.xf: opt.xf = " " + opt.xf.replace(",", " ")
    print(HDR.rstrip())
    print(f"; @launch grid=(256,1,1) block=(256,1,1) lds=163840")
    print('.amdgcn_target "amdgcn-amd-amdhsa--gfx950"\n.text')
    print(main_kernel(opt))
    print('.section .rodata,"a"')
    print(f""".p2align 6
.amdhsa_kernel {KN}
  .amdhsa_next_free_vgpr {256 + 96 + 4 * opt.ring}
  .amdhsa_next_free_sgpr 96
  .amdhsa_accum_offset 256
  .amdhsa_group_segment_fixed_size 0
  .amdhsa_kernarg_size 48
  .amdhsa_user_sgpr_count 2
  .amdhsa_user_sgpr_kernarg_segment_ptr 1
  .amdhsa_system_sgpr_workgroup_id_x 1
.end_amdhsa_kernel""")

main()
```

```python
import re

def R(kind, lo, n=1):
    return [f"{kind}{i}" for i in range(lo, lo + n)]

def rng(kind, lo, n):
    return f"{kind}[{lo}:{lo+n-1}]" if n > 1 else f"{kind}{lo}"

VALU = ("valu", "trans", "perm")
COST = {"mfma": 8, "valu": 4, "trans": 8, "perm": 4, "dsr": 4, "dsw": 4, "vld": 4, "vst": 4, "dma": 4,
        "salu": 4, "bar": 4, "nop": 4, "wait": 4}

def size(i):
    t = i.text
    if i.kind in ("dsr", "dsw", "vld", "vst", "dma", "mfma"): return 8
    if i.kind in ("salu", "bar", "wait", "nop"): return 4 * len(t.split("\n"))
    op = t.split()[0]
    if op in ("v_cvt_pk_bf16_f32", "v_max3_f32") or "dpp" in op: return 8
    return 4

class Ins:
    def __init__(self, text, kind, reads=(), writes=(), srcc=(), after=None, lead=0.0, tag=""):
        self.text = text; self.kind = kind
        self.reads = list(reads); self.writes = list(writes); self.srcc = list(srcc)
        self.after = after
        self.lead = lead
        self.tag = tag
        self.preds = {}
        self.succs = []
        self.pos = None
        self.states = 1
        self.mindist = 0
    def __repr__(self):
        return self.text

def hazard(p, c, typ, reg):
    isv = reg[0] in "va" and reg[1:].isdigit()
    if not isv:
        if reg[0] == "s" and reg[1:].isdigit() or reg in ("vcc", "m0"):
            if typ == "RAW":
                if p.kind in VALU and c.kind in ("vld", "vst", "dma"): return 5
                if p.kind in VALU and c.kind in VALU: return 2
                if reg == "m0" and c.kind == "dma": return 1
        return 0
    if typ == "RAW":
        if p.kind in VALU and c.kind == "mfma": return 2
        if p.kind == "mfma":
            big = len(p.writes) == 16
            if c.kind == "mfma" and reg in c.srcc:
                return 0 if c.srcc == p.writes else (10 if big else 6)
            return 12 if big else 8
        d = 0
        if p.kind == "trans" and c.kind != "trans": d = 1
        if p.kind in VALU and c.kind == "perm": d = 2
        return d
    if typ == "WAW":
        if p.kind == "mfma" and c.kind != "mfma": return 12 if len(p.writes) == 16 else 8
        return 0
    if typ == "WAR":
        if p.kind == "mfma" and reg in p.srcc and c.kind in VALU: return 7 if len(p.writes) == 16 else 3
        if p.kind in ("vst", "dsw"):
            return 2
        return 0
    return 0

def build_dag(base):
    lastw = {}; readers = {}
    for i in base:
        def edge(p, typ, r):
            if p is i: return
            d = hazard(p, i, typ, r)
            if typ == "RAW" and p.kind == "dsr": d = max(d, i.mindist)
            if p not in i.preds:
                i.preds[p] = d; p.succs.append(i)
            else:
                i.preds[p] = max(i.preds[p], d)
        for r in i.reads:
            if r in lastw: edge(lastw[r], "RAW", r)
        for r in i.writes:
            if r in lastw: edge(lastw[r], "WAW", r)
            for p in readers.get(r, []): edge(p, "WAR", r)
        if i.after is not None:
            if i.after not in i.preds:
                i.preds[i.after] = 0; i.after.succs.append(i)
        for r in i.reads:
            readers.setdefault(r, []).append(i)
        for r in i.writes:
            lastw[r] = i; readers[r] = []

class Emitter:
    def __init__(self):
        self.out = []
        self.state = 0
        self.vm = []
        self.lg = []
        self.nm = 0
        self.age = 0
    def need(self, ins):
        regs = set(ins.reads) | set(ins.writes)
        vn = ln = None
        for k, op in enumerate(self.vm):
            if op.kind in ("vld", "dma") and regs & set(op.writes): vn = len(self.vm) - 1 - k
        for k, op in enumerate(self.lg):
            if op.kind == "dsw": continue
            if regs & set(op.writes): ln = len(self.lg) - 1 - k
        return vn, ln
    def raw(self, ins):
        ins.pos = self.state
        self.state += ins.states
        self.out.append(ins)
    def emit(self, ins, lg_extra=0):
        vn, ln = self.need(ins)
        cost = 0
        if vn is not None or ln is not None:
            parts = []
            if vn is not None:
                assert vn <= 63
                parts.append(f"vmcnt({vn})"); self.vm = self.vm[len(self.vm) - vn:] if vn else []
            if ln is not None:
                if self.age:
                    young = sum(1 for op in self.lg if self.nm - op.born < self.age)
                    ln = min(ln, young)
                else:
                    ln = max(0, ln - lg_extra)
                ln = min(ln, 15)
                parts.append(f"lgkmcnt({ln})"); self.lg = self.lg[len(self.lg) - ln:] if ln else []
            self.raw(Ins("s_waitcnt " + " ".join(parts), "wait")); cost += COST["wait"]
        self.raw(ins); cost += COST[ins.kind]
        if ins.kind in ("vld", "vst", "dma"):
            self.vm.append(ins)
            assert len(self.vm) <= 63, "vmcnt overflow"
        if ins.kind in ("dsr", "dsw"):
            ins.born = self.nm
            self.lg.append(ins)
        if ins.kind == "mfma": self.nm += 1
        return cost
    def prewait(self, ins):
        vn, ln = self.need(ins)
        if vn is None and ln is None: return False
        probe = Ins("", "nop", ins.reads, ins.writes)
        self.emit(probe, 0)
        self.out.pop(); self.state -= 1
        return True
    def nop(self, n):
        n = int(n)
        while n > 0:
            k = min(n, 16)
            i = Ins(f"s_nop {k-1}", "nop"); i.states = k
            self.raw(i); n -= k

def schedule(base, em, budget=24, maxfill=5, lg_extra=0, maxlg=15, log=None, prefill=0, cooldown={}, padwin=0, maxbytes=40, latscale=1.0):
    build_dag(base)
    mf = [i for i in base if i.kind == "mfma" and i.pos is None]
    for k, m in enumerate(mf): m.dl = float(k)
    END = len(mf) + 50.0
    for i in reversed(base):
        if i.kind == "mfma": continue
        dl = END
        for s in i.succs:
            lat = (0.2 + s.preds[i] * 0.25) * latscale
            dl = min(dl, s.dl - lat)
        i.dl = dl - i.lead
    fill = [i for i in base if i.kind != "mfma" and i.pos is None]
    order = {id(i): k for k, i in enumerate(base)}
    def wait_states(i):
        miss = 0
        for p, d in i.preds.items():
            if p.pos is None: return None
            have = em.state - (p.pos + p.states)
            miss = max(miss, d - have)
        return miss
    cur = [0]; lastk = {}
    def cands(only=None):
        res = []
        for i in fill:
            if only is not None and id(i) not in only: continue
            w = wait_states(i)
            if w is None or w > 0: continue
            if i.kind in ("dsr", "dsw") and len(em.lg) >= maxlg: continue
            if only is None and i.kind in cooldown and cur[0] - lastk.get(i.kind, -99) < cooldown[i.kind]: continue
            res.append(((i.dl, order[id(i)]), i))
        res.sort(key=lambda x: x[0])
        return [i for _, i in res]
    def pick(only=None):
        c = cands(only)
        return c[0] if c else None
    def missing(m):
        seen = set(); st = [m]
        while st:
            x = st.pop()
            for p in x.preds:
                if p.pos is None and id(p) not in seen:
                    seen.add(id(p)); st.append(p)
        return seen
    stalls = 0
    for k, m in enumerate(mf):
        cur[0] = k
        while True:
            w = wait_states(m)
            if w is not None and w <= 0: break
            f = pick(missing(m)) if w is None else None
            if f is None:
                c = [i for i in cands() if i.kind not in ("dma", "bar")]
                f = c[0] if c else None
            if f is not None:
                em.emit(f, lg_extra); fill.remove(f); stalls += COST[f.kind]
                if log is not None: log.append((k, "forced", f.text))
            else:
                if w is None:
                    em.nop(1); stalls += 4
                else:
                    em.nop(w); stalls += 4 * w
                if log is not None: log.append((k, "nop", ""))
        if k == 0 and prefill:
            for _ in range(prefill):
                c = [i for i in cands() if i.kind == "dsr"]
                if not c: break
                em.emit(c[0], lg_extra); fill.remove(c[0])
        em.emit(m, 0)
        used = 0; nbytes = 0; free = True
        def charge(cost, size, scalar):
            nonlocal used, nbytes, free
            if scalar and free and used == 0:
                free = False; return
            free = False
            used += cost; nbytes += size
        def fits(cost, size, scalar):
            if scalar and free and used == 0: return True
            return used + cost <= budget and nbytes + size <= maxbytes
        if k + 1 < len(mf) and k >= 2:
            w = em.prewait(mf[k + 1])
            if w: charge(4, 4, True)
        tu, tb = used, nbytes; first = []
        for cnd in cands():
            c_, s_ = COST[cnd.kind], size(cnd)
            if cnd.kind in ("salu", "bar") and free and not any(x.kind in ("salu", "bar") for x in first):
                first.append(cnd); continue
            if tu + c_ > budget or tb + s_ > maxbytes: continue
            if cnd.kind in cooldown and any(x.kind == cnd.kind for x in first): continue
            if cnd.kind == "dsr" and len(em.lg) + sum(1 for x in first if x.kind == "dsr") >= maxlg: continue
            tu += c_; tb += s_
            if cnd.kind not in VALU: first.append(cnd)
        first.sort(key=lambda x: 0 if x.kind in ("salu", "bar") else 1)
        for f in first:
            n0 = len(em.out)
            em.emit(f, 0); fill.remove(f); lastk[f.kind] = k
            for e in em.out[n0:]:
                charge(COST[e.kind], size(e), e.kind in ("salu", "bar", "wait"))
        if first and first[0].kind == "bar":
            for cnd in cands():
                if cnd.kind == "dsr" and fits(4, 8, False) and len(em.lg) < maxlg:
                    em.emit(cnd, 0); fill.remove(cnd); charge(4, 8, False)
        while True:
            f = None
            for cnd in cands():
                if cnd.kind in VALU or cnd.kind == "salu":
                    if fits(COST[cnd.kind], size(cnd), cnd.kind == "salu"):
                        f = cnd; break
            if f is None:
                room = (budget - used) // 4 + (1 if free and used == 0 else 0)
                blocked = [w for w in (wait_states(i) for i in fill if i.dl < k + padwin) if w is not None and w > 0]
                if padwin and room >= 1 and blocked and nbytes + 4 <= maxbytes:
                    d = min(min(blocked), room)
                    em.nop(d)
                    used += 4 * (d - (1 if free and used == 0 else 0)); nbytes += 4; free = False
                    if used == 0: used = 0.01
                    continue
                break
            em.emit(f, 0); fill.remove(f)
            charge(COST[f.kind], size(f), f.kind == "salu")
    cur[0] = 10**6
    cooldown = {}
    while fill:
        f = pick()
        if f is None:
            em.nop(1); continue
        em.emit(f, lg_extra); fill.remove(f)
    return stalls

def verify(base, out):
    def trace(seq):
        lastw = {}; res = {}
        for i in seq:
            res[id(i)] = tuple(id(lastw.get(r)) for r in i.reads)
            for r in i.writes: lastw[r] = i
        return res, {r: id(w) for r, w in lastw.items()}
    a, fa = trace(base); b, fb = trace([i for i in out if i.kind not in ("wait", "nop")])
    for i in base:
        assert a[id(i)] == b[id(i)], f"dataflow changed at {i.text}"
    assert fa == fb
    lastw = {}; readers = {}
    for i in out:
        def chk(p, typ, r):
            d = hazard(p, i, typ, r)
            have = i.pos - (p.pos + p.states)
            assert have >= d, f"hazard {typ} {r}: {p.text} -> {i.text}: have {have} need {d}"
        for r in i.reads:
            if r in lastw: chk(lastw[r], "RAW", r)
        for r in i.writes:
            if r in lastw: chk(lastw[r], "WAW", r)
            for p in readers.get(r, []):
                if p is not i: chk(p, "WAR", r)
        for r in i.reads: readers.setdefault(r, []).append(i)
        for r in i.writes:
            lastw[r] = i; readers[r] = []
```

```python
import sys, struct, argparse, re
import sched
from sched import *

KN = "standalone__swin_window_attn__vision_kernel"
XBYTES = 19267584
SCALE = (192 ** -0.5) * 1.4426950408889634
def f32bits(x): return struct.unpack("<I", struct.pack("<f", x))[0]
HDR = open("standalone__swin_window_attn__vision.s.ref").read().split("; Override launch")[0]
WS_STAMP = 0x1000000
WS_FLAG = 0x40000
WS_EPOCH = 0x50000

def woff(mat, t):
    return 90112 + t * 12288 if mat == 0 else t * 12288

X = lambda tt, s: (tt * 6 + s) * 4
WR0 = 96
TA = lambda i: 16 + 4 * (i % 8)
TB = lambda q, s: 48 + (q * 6 + s) * 4
ST = lambda kt, qt: 96 + (qt * 4 + kt) * 4
PB = lambda qt, k: 160 + (qt * 2 + k) * 4
YB = lambda i, b, k: 192 + ((i % 3) * 4 + b * 2 + k) * 4
YB2 = lambda i, b, k: 48 + ((i % 3) * 4 + b * 2 + k) * 4
OB = lambda i: 240 + 4 * (i % 4)
VO = 1
VL = [3, 4, 5]
FA = 252
SO = [44, 45, 46, 47]
OSRD = ["s[12:15]", "s[72:75]"]

def mfma(d, ak, a, bk, b, first, tag=""):
    c = "0" if first else rng("v", d, 4)
    rd = R(ak, a, 4) + R(bk, b, 4) + ([] if first else R("v", d, 4))
    return Ins(f"v_mfma_f32_16x16x32_bf16 {rng('v', d, 4)}, {rng(ak, a, 4)}, {rng(bk, b, 4)}, {c}",
               "mfma", rd, R("v", d, 4), srcc=([] if first else R("v", d, 4)), tag=tag)

def valu(op, d, *src, kind="valu", lead=0.0):
    rd = [s for s in src if isinstance(s, str) and s[0] in "vs" and s[1:].isdigit()]
    return Ins(f"{op} {d}, " + ", ".join(str(s) for s in src), kind, rd, [d], lead=lead)

def cvt(d, s0, lead=0.0):
    return valu("v_cvt_pk_bf16_f32", f"v{d}", f"v{s0}", f"v{s0+1}", lead=lead)

def yb(c, b, k):
    return YB(c // 2, b, k) if c % 2 == 0 else YB2(c // 2, b, k)

class Body:
    def __init__(self, opt):
        self.opt = opt
        self.base = []
        self.nfrag = 0
        self.nob = 0
        self.nacc = 0
        self.mf = []
    def add(self, i):
        self.base.append(i); return i
    def acc(self):
        self.nacc += 1
        return TA(self.nacc)
    def wtile(self, mat, r):
        res = []
        for s in range(6):
            slot = self.nfrag % self.opt.ring; self.nfrag += 1
            reg = WR0 + 4 * slot
            off = woff(mat, 0) + r * 6144 + s * 1024
            self.add(Ins(f"ds_read_b128 {rng('a', reg, 4)}, v{VL[off >> 16]} offset:{off & 0xffff}", "dsr",
                         [f"v{VL[off >> 16]}", f"L:{mat}:{r // 2}"], R("a", reg, 4), lead=self.opt.dslead))
            res.append(reg)
        return res
    def allred(self, op, x, y):
        for sw in ("v_permlane32_swap_b32", "v_permlane16_swap_b32"):
            self.add(valu("v_mov_b32", y, x))
            self.add(Ins(f"{sw} {x}, {y}", "perm", [x, y], [x, y]))
            self.add(valu(op, x, x, y))
    def softmax(self, qt):
        vals = [ST(kt, qt) + r for kt in range(4) for r in range(4)]
        t0 = 7 + 4 * (qt % 2)
        m0, m1, l0, l1 = (f"v{t0+i}" for i in range(4))
        self.add(valu("v_max3_f32", m0, f"v{vals[0]}", f"v{vals[1]}", f"v{vals[2]}"))
        for k in range(3, 15, 2):
            self.add(valu("v_max3_f32", m0, m0, f"v{vals[k]}", f"v{vals[k+1]}"))
        self.add(valu("v_max_f32", m0, m0, f"v{vals[15]}"))
        self.allred("v_max_f32", m0, m1)
        for k, v in enumerate(vals):
            self.add(valu("v_sub_f32", f"v{v}", f"v{v}", m0))
            self.add(valu("v_exp_f32", f"v{v}", f"v{v}", kind="trans"))
            if k == 1: self.add(valu("v_add_f32", l0, f"v{vals[0]}", f"v{v}"))
            if k > 1: self.add(valu("v_add_f32", l0, l0, f"v{v}"))
        self.allred("v_add_f32", l0, l1)
        self.add(valu("v_rcp_f32", l0, l0, kind="trans"))
        for k in range(2):
            for d in range(4):
                s = ST(2 * k, qt) + 2 * d
                self.add(valu("v_mul_f32", f"v{s}", f"v{s}", l0))
                self.add(valu("v_mul_f32", f"v{s+1}", f"v{s+1}", l0))
                self.add(cvt(PB(qt, k) + d, s))
    def Tchain(self, r, w, g, q):
        acc = self.acc()
        for s in range(6):
            m = self.add(mfma(acc, "a", w[s], "a", X(2 * g + q, s), s == 0, tag=f"T{r}.{2*g+q}"))
            self.mf.append(m)
            if g == 1 and r == 0 and q == 0 and s == 0: self.join = m
        for d in range(2): self.add(cvt(TB(q, r // 2) + 2 * (r % 2) + d, acc + 2 * d))
    def Oblk(self, c, qt):
        ob = OB(self.nob); self.nob += 1
        L = self.opt.stlead; fl = self.opt.stflags
        for b in range(2):
            acc = self.acc()
            for k in range(2):
                self.add(mfma(acc, "v", yb(c, b, k), "v", PB(qt, k), k == 0, tag=f"O{c}.{qt}"))
            for d in range(2): self.add(cvt(ob + 2 * b + d, acc + 2 * d, lead=L))
        if not self.opt.nostore:
            self.add(Ins(f"buffer_store_dwordx4 {rng('v', ob, 4)}, v{VO}, {OSRD[qt // 2]}, s{SO[qt]} offen offset:{64*c}{fl}",
                         "vst", R("v", ob, 4) + [f"v{VO}"], [], lead=L))
    def bar(self, tiles, after, text="s_barrier", reads=()):
        return self.add(Ins(text, "bar", ["BAR"] + list(reads), ["BAR"] + [f"L:{m}:{t}" for m, t in tiles], after=after))

    def build(self, nq):
        opt = self.opt
        allN = [(1, tn) for tn in range(6)]
        for g in range(2):
            for c in range(6):
                if g == 0:
                    if c in (1, 2, 3): self.bar([(0, c)], self.mf[24 * c - opt.blead])
                    if c == 4:
                        self.add(Ins("s_waitcnt vmcnt(0)", "salu", [], ["XW"], after=self.mf[opt.xwat], lead=100))
                        for tt in (2, 3):
                            for s in range(6):
                                self.add(Ins(f"ds_read_b128 {rng('a', X(tt, s), 4)}, v{FA+s%2} offset:{(s//2)*128 + tt*6144}", "dsr",
                                             ["XW", f"v{FA+s%2}"], R("a", X(tt, s), 4), lead=100))
                        b5 = self.bar([(0, 4), (0, 5)], self.mf[96 - opt.blead], reads=[r for tt in (2, 3) for s in range(6) for r in R("a", X(tt, s), 4)])
                        b5.lead = 400
                if g == 1 and c == opt.b4c: self.bar(allN, self.mf[-1], "s_waitcnt vmcnt(0)\n  s_barrier")
                if c < 5:
                    for b in range(2):
                        w = self.wtile(0, 2 * c + b)
                        for q in range(2): self.Tchain(2 * c + b, w, g, q)
                else:
                    w = [self.wtile(0, 10), self.wtile(0, 11)]
                    for q in range(2):
                        for b in range(2): self.Tchain(10 + b, w[b], g, q)
            for q in range(2):
                for kt in range(4):
                    for s in range(6):
                        self.add(mfma(ST(kt, 2 * g + q), "a", X(kt, s), "v", TB(q, s), s == 0, tag=f"S{kt}.{2*g+q}"))
                self.softmax(2 * g + q)
        pos = {}
        def put(c, n, blk): pos.setdefault((c, n), []).append(blk)
        for c in range(5):
            put(c + 1, 2, (c, 0)); put(c + 1, 4, (c, 1))
        late = opt.olate
        sl = [(late + i // 4, (1, 3, 5, 7)[i % 4]) for i in range(40)]
        i = 0
        for c in range(5):
            for qt in (2, 3):
                while sl[i] < (c + 1, 2): i += 1
                put(*sl[i], (c, qt)); i += 1
        for c in range(6):
            n = 0
            for b in range(2):
                w = self.wtile(1, 2 * c + b)
                for kt in range(4):
                    for blk in pos.get((c, n), []): self.Oblk(*blk)
                    acc = self.acc()
                    for s in range(6):
                        self.add(mfma(acc, "a", X(kt, s), "a", w[s], s == 0, tag=f"Y{2*c+b}.{kt}"))
                    for d in range(2): self.add(cvt(yb(c, b, kt // 2) + 2 * (kt % 2) + d, acc + 2 * d))
                    n += 1
        for key in sorted(pos):
            if key[0] >= 6:
                for blk in pos[key]: self.Oblk(*blk)
        for qt in range(4): self.Oblk(5, qt)

_ph = [0]
ROLE = ["h"]
def stamp(A, opt, k):
    if opt.probe is not None:
        if (ROLE[0], k) == opt.probe or (k == 0 and opt.probe[1] == 0):
            A("  s_memrealtime s[56:57]")
            A("  s_waitcnt lgkmcnt(0)")
        return
    if opt.stamps:
        A(f"  s_memrealtime s[{56+2*k}:{57+2*k}]")
        A(f"  s_memtime s[{76+2*k}:{77+2*k}]")
        A(f"  s_waitcnt lgkmcnt(0)")

def stamp_out(A, opt):
    if opt.probe is not None:
        if ROLE[0] != opt.probe[0]: return
        _ph[0] += 1; n = _ph[0]
        A(f"  s_sub_u32 s60, s2, {opt.pwg[0]}")
        A(f"  s_cmp_ge_u32 s60, {opt.pwg[1] - opt.pwg[0]}")
        A(f"  s_cbranch_scc1 L_hx{n}")
        if ROLE[0] == "m":
            A("  s_cmp_eq_u32 s20, 3")
            A(f"  s_cbranch_scc1 L_hx{n}")
        A(f"L_hold{n}:")
        A("  s_memrealtime s[58:59]")
        A("  s_waitcnt lgkmcnt(0)")
        A("  s_sub_u32 s60, s58, s56")
        A("  s_cmp_lt_u32 s60, 1500")
        A(f"  s_cbranch_scc1 L_hold{n}")
        A(f"L_hx{n}:")
        return
    if not opt.stamps: return
    for k in range(8): A(f"  v_mov_b32 v{16+k}, s{56+2*k}")
    for k in range(8): A(f"  v_mov_b32 v{24+k}, s{76+2*k}")
    A(f"  s_lshl_b32 s26, s2, 2\n  s_add_u32 s26, s26, s20\n  s_lshl_b32 s26, s26, 5\n  s_add_u32 s26, s26, {WS_STAMP}")
    A("  s_mov_b32 s18, 0x10000000")
    A("  v_mov_b32 v7, 0")
    A("  buffer_store_dwordx4 v[16:19], v7, s[16:19], s26 offen")
    A("  buffer_store_dwordx4 v[20:23], v7, s[16:19], s26 offen offset:16")
    A("  s_add_u32 s26, s26, 0x10000")
    A("  buffer_store_dwordx4 v[24:27], v7, s[16:19], s26 offen")
    A("  buffer_store_dwordx4 v[28:31], v7, s[16:19], s26 offen offset:16")

def bound(A, label):
    A("  s_add_u32 s92, s92, 1")
    A("  s_cmp_gt_u32 s92, 50000")
    A(f"  s_cbranch_scc1 {label}_x")

def check_issue(A):
    A("  buffer_load_dwordx2 v[14:15], off, s[36:39], 0 sc1")
    A("  buffer_load_dwordx2 v[12:13], v2, s[16:19], s93 offen sc1")

def spin_first(A, opt):
    A("  s_branch L_pollA_0")
    A("L_pollA:")
    A(f"  s_sleep {opt.sleep}")
    check_issue(A)
    bound(A, "L_pollA")
    A("L_pollA_0:")
    A("  s_waitcnt vmcnt(0)")
    A("L_eval:")
    A("  v_cmp_ne_u64 vcc, v[12:13], v[14:15]")
    A("  v_cmp_eq_u32 s[26:27], 0, v14")
    A("  s_nop 1")
    A("  s_or_b64 vcc, vcc, s[26:27]")
    A("  s_and_b32 s26, vcc_lo, 0x3f")
    A("  s_cbranch_scc1 L_pollA")
    A("L_pollA_x:")

def spin_flags(A, label, sreg, sleep):
    A(f"  s_branch {label}_0")
    A(f"{label}:")
    A(f"  s_sleep {sleep}")
    A(f"{label}_0:")
    A(f"  buffer_load_dwordx2 v[12:13], v2, s[16:19], {sreg} offen sc1")
    bound(A, label)
    A("  s_waitcnt vmcnt(0)")
    A("  v_cmp_ne_u64 vcc, v[12:13], v[14:15]")
    A(f"  s_cbranch_vccnz {label}")
    A(f"{label}_x:")

def stage_offsets(A, rowx):
    for k in range(3):
        A(f"  v_add_u32 v9, {64*k}, v8")
        A("  v_mul_u32_u24 v9, 0xaab, v9")
        if rowx:
            A("  v_lshrrev_b32 v10, 16, v9")
            A(f"  v_mul_u32_u24 v10, {rowx}, v10")
        A("  v_lshrrev_b32 v9, 17, v9")
        A("  v_xor_b32 v9, v9, v8")
        if rowx:
            A("  v_xor_b32 v11, 4, v9")
            A(f"  v_lshl_add_u32 v{16+2*k}, v9, 4, v10")
            A(f"  v_lshl_add_u32 v{17+2*k}, v11, 4, v10")
        else:
            A(f"  v_lshlrev_b32 v{16+2*k}, 4, v9")
            A(f"  v_xor_b32 v{17+2*k}, 64, v{16+2*k}")

def frag_addrs(A, jreg, base, dst=24):
    A(f"  v_mul_u32_u24 v10, 384, {jreg}")
    A(f"  v_add_u32 v10, {base}, v10")
    A(f"  v_bfe_u32 v11, {jreg}, 1, 3")
    A("  v_lshrrev_b32 v12, 5, v8")
    A("  v_xor_b32 v11, v11, v12")
    for m in range(4):
        A(f"  v_xor_b32 v13, {2*m}, v11")
        A(f"  v_lshl_add_u32 v{dst+m}, v13, 4, v10")

def fold(A, opt):
    SC = 73728
    A("  s_cmp_ge_u32 s2, 36")
    A("  s_cselect_b32 s51, 36, 0")
    A("  s_cselect_b64 vcc, -1, 0")
    A("  s_cselect_b32 s50, 768, 0")
    A("  s_cselect_b32 s21, 64, 36864")
    A("  s_cselect_b32 s24, 0, 384")
    A("  s_cselect_b32 s25, 18432, s10")
    A("  s_cselect_b32 s34, 73728, s30")
    A("  s_sub_u32 s51, s2, s51")
    A("  s_mul_i32 s48, s51, 43")
    A("  s_lshr_b32 s48, s48, 8")
    A("  s_mul_i32 s49, s48, 6")
    A("  s_sub_u32 s49, s51, s49")
    A("  s_mul_i32 s22, s49, 36864")
    A("  s_add_u32 s22, s22, s50")
    A("  s_mul_i32 s23, s48, s21")
    A("  s_add_u32 s23, s23, s24")
    stage_offsets(A, 768)
    A("  v_lshrrev_b32 v14, 2, v8")
    A("  v_mul_u32_u24 v14, 384, v14")
    A("  v_and_b32 v13, 3, v8")
    A("  v_lshl_add_u32 v14, v13, 4, v14")
    for k in range(3):
        if k: A(f"  v_add_u32 v14, 5120, v14")
        A(f"  v_cndmask_b32 v{144+2*k}, v{16+2*k}, v14, vcc")
        A(f"  v_cndmask_b32 v{145+2*k}, v{17+2*k}, v14, vcc")
    A("  s_waitcnt lgkmcnt(0)")
    A("  s_cmp_ge_u32 s2, 36")
    A("  s_mov_b64 s[28:29], s[6:7]")
    A("  s_cselect_b64 s[32:33], s[40:41], s[6:7]")
    def panel(sreg, lds, v0, srd, step):
        for r in range(4):
            A(f"  s_mov_b32 m0, {lds + 3072*r}")
            if r: A(f"  s_add_u32 {sreg}, {sreg}, {step}")
            else: A("  s_nop 0")
            for k in range(3):
                A(f"  buffer_load_dwordx4 v{v0+2*k+(r%2)}, {srd}, {sreg} offen offset:{1024*k}{opt.wf} lds")
    panel("s23", SC + 12288, 144, "s[32:35]", "s25")
    panel("s22", SC, 16, "s[28:31]", 9216)
    srd_consts(A, opt, True)
    srd_bases(A, True)
    A(f"  s_mov_b32 s95, {WS_EPOCH}")
    A("  buffer_load_dwordx2 v[6:7], off, s[16:19], s95 sc1")
    stamp(A, opt, 7)
    if opt.bh: A("  s_barrier")
    helper_misc(A, opt)
    A("  v_and_b32 v9, 0x13, v8")
    A("  v_and_b32 v10, 4, v8")
    A("  v_lshl_or_b32 v9, v10, 1, v9")
    A("  v_and_b32 v10, 8, v8")
    A("  v_lshrrev_b32 v10, 1, v10")
    A("  v_or_b32 v9, v9, v10")
    frag_addrs(A, "v9", SC)
    A("  v_and_b32 v9, 3, v8")
    A("  v_bfe_u32 v10, v8, 2, 2")
    A("  v_lshl_or_b32 v9, v10, 3, v9")
    A("  v_bfe_u32 v10, v8, 4, 1")
    A("  v_lshl_or_b32 v9, v10, 2, v9")
    frag_addrs(A, "v9", SC, 150)
    A("  v_bfe_u32 v9, v8, 4, 1")
    A("  v_mul_u32_u24 v9, 6144, v9")
    A("  v_and_b32 v10, 15, v8")
    A("  v_lshl_add_u32 v9, v10, 4, v9")
    A("  v_lshl_add_u32 v154, v12, 8, v9")
    A("  v_bfe_u32 v14, v8, 2, 2")
    A("  v_lshl_add_u32 v14, v12, 3, v14")
    A("  v_lshlrev_b32 v14, 6, v14")
    A("  v_bfe_u32 v13, v8, 4, 1")
    A("  v_lshl_add_u32 v14, v13, 3, v14")
    A("  v_and_b32 v13, 3, v8")
    A("  v_lshl_add_u32 v14, v13, 4, v14")
    A(f"  v_add_u32 v14, {SC + 12288}, v14")
    A("  s_mul_i32 s26, s48, 12288")
    A(f"  s_add_u32 s27, s26, {woff(0,0)}")
    A("  s_lshl_b32 s54, s49, 10")
    A("  s_cmp_ge_u32 s2, 36")
    A("  s_cselect_b32 s26, s26, s27")
    A(f"  s_cselect_b32 s27, 1.0, {f32bits(SCALE):#x}")
    A("  s_add_u32 s26, s26, s54")
    A(f"  s_lshl_b32 s54, s2, {opt.fsh}")
    A(f"  s_add_u32 s54, s54, {WS_FLAG}")
    if opt.fstamp: stamp(A, opt, 5)
    A("  s_waitcnt vmcnt(13)")
    if opt.fstamp: stamp(A, opt, 3)
    A("  s_cbranch_vccnz L_fold_tr")
    for s in range(12):
        A(f"  ds_read_b128 v[{80+4*s}:{83+4*s}], v{150+s%4} offset:{(s//4)*128 + 12288}")
    A("  s_branch L_fold_a")
    A("L_fold_tr:")
    for s in range(12):
        for jj in range(2):
            A(f"  ds_read_b64_tr_b16 v[{80+4*s+2*jj}:{81+4*s+2*jj}], v14 offset:{1024*s + 256*jj}")
        if s == 6: A("  s_waitcnt lgkmcnt(0)")
    A("L_fold_a:")
    A("  s_waitcnt vmcnt(1) lgkmcnt(0)")
    if opt.fstamp: stamp(A, opt, 4)
    for s in range(12):
        A(f"  ds_read_b128 v[{32+4*s}:{35+4*s}], v{24+s%4} offset:{(s//4)*128}")
    for s in range(12):
        c = "0" if s == 0 else "v[128:143]"
        A(f"  s_waitcnt lgkmcnt({11-s})")
        A(f"  v_mfma_f32_32x32x16_bf16 v[128:143], v[{32+4*s}:{35+4*s}], v[{80+4*s}:{83+4*s}], {c}")
    stamp(A, opt, 1)
    A("  s_waitcnt vmcnt(0)")
    A("  v_add_co_u32 v6, vcc, 2, v6")
    A("  s_nop 1")
    A("  v_addc_co_u32 v7, vcc, 0, v7, vcc")
    A("  v_or_b32 v6, 1, v6")
    A("  s_nop 5")
    for d in range(8):
        A(f"  v_mul_f32 v{128+2*d}, s27, v{128+2*d}")
        A(f"  v_mul_f32 v{129+2*d}, s27, v{129+2*d}")
        A(f"  v_cvt_pk_bf16_f32 v{32+d}, v{128+2*d}, v{129+2*d}")
        if d == 3: A(f"  buffer_store_dwordx4 v[32:35], v154, s[16:19], s26 offen sc1")
    A(f"  buffer_store_dwordx4 v[36:39], v154, s[16:19], s26 offen offset:512 sc1")
    A("  s_mov_b64 exec, 1")
    A("  s_cmp_lg_u32 s2, 0")
    A("  s_cbranch_scc1 L_fold_pub")
    A("  buffer_store_dwordx2 v[6:7], off, s[36:39], 0 sc1")
    A("  s_waitcnt vmcnt(1)")
    A("  s_branch L_fold_pub2")
    A("L_fold_pub:")
    A("  s_waitcnt vmcnt(0)")
    A("L_fold_pub2:")
    stamp(A, opt, 2)
    A("  buffer_store_dwordx2 v[6:7], off, s[16:19], s54 sc1")
    A("  s_mov_b64 exec, -1")
    stamp(A, opt, 6)
    if opt.split:
        A("  v_mov_b32 v14, v6")
        A("  v_mov_b32 v15, v7")
        A("  s_cmp_ge_u32 s2, 36")
        A("  s_cbranch_scc1 L_nonce_x")
    A("  s_branch L_loader")

def helper_misc(A, opt):
    A("  s_mov_b32 s14, 0")
    A(f"  v_mov_b32 v{VO}, 0")
    A("  v_min_u32 v2, 35, v8")
    A(f"  v_lshlrev_b32 v2, {opt.fsh}, v2")
    A("  s_lshr_b32 s26, s2, 3")
    if opt.scout == 1:
        A("  s_mul_i32 s27, s26, 57")
        A("  s_lshr_b32 s27, s27, 9")
        A("  s_mul_i32 s27, s27, 9")
        A("  s_sub_u32 s26, s26, s27")
        A("  s_lshl_b32 s26, s26, 13")
        A("  v_lshl_add_u32 v28, v8, 7, s26")
    else:
        A("  s_cmp_ge_u32 s26, 18")
        A("  s_cselect_b32 s27, 14, 0")
        A("  s_sub_u32 s26, s26, s27")
        A("  s_lshl_b32 s26, s26, 12")
        A("  v_and_b32 v28, 31, v8")
        A("  v_lshl_add_u32 v28, v28, 7, s26")
    A(f"  s_mov_b32 s3, {woff(0, 0)}")

def srd_consts(A, opt, prod=False):
    A(f"  s_mov_b32 s10, {XBYTES}\n  s_mov_b32 s11, 0x00020000")
    A(f"  s_mov_b32 s15, 0x00020000")
    A("  s_mov_b32 s18, 0x60000\n  s_mov_b32 s19, 0x00020000")
    A("  s_mov_b32 s38, 256\n  s_mov_b32 s39, 0x00020000")
    A(f"  s_mov_b32 s74, {XBYTES}\n  s_mov_b32 s75, 0x00020000")
    A(f"  s_mov_b32 s93, {WS_FLAG}")
    A(f"  s_mov_b32 s94, {WS_FLAG + (36 << opt.fsh)}")
    A("  s_mov_b32 s92, 0")

def srd_bases(A, prod=False):
    if not prod: A("  s_waitcnt lgkmcnt(0)")
    A("  s_mov_b64 s[8:9], s[4:5]\n  s_mov_b64 s[16:17], s[54:55]\n  s_mov_b64 s[36:37], s[52:53]")
    A("  s_mov_b64 s[12:13], s[42:43]\n  s_mov_b64 s[72:73], s[42:43]")

def emit_body(A, opt, nq, em, pre, stmap, pre_lines):
    b = Body(opt); b.build(nq)
    em.age = opt.age
    log = []
    sched.COST["vst"] = opt.vstcost
    sched.COST["dsw"] = opt.dswcost
    stalls = schedule(pre + b.base, em, budget=opt.budget, maxfill=opt.maxfill, lg_extra=opt.lgextra, log=log,
                      prefill=7, cooldown={'vst': opt.stcool}, padwin=opt.padwin, maxbytes=opt.maxbytes, latscale=2.5)
    verify(pre + b.base, em.out)
    nm = sum(1 for i in em.out if i.kind == "mfma")
    sys.stderr.write(f"body{nq}: instrs {len(em.out)} mfma {nm} forced-cycles {stalls}\n")
    if opt.log:
        for l in log: sys.stderr.write(str(l) + "\n")
    ji = em.out.index(b.join)
    if em.out[ji - 1].kind == "wait": ji -= 1
    live = []
    for k, i in enumerate(em.out[:ji]):
        if i.kind != "dsr" or int(i.writes[0][1:]) < WR0: continue
        w = set(i.writes)
        later_w = any(j.kind == "dsr" and set(j.writes) & w for j in em.out[k + 1:ji])
        used_before = any(j.kind == "mfma" and set(j.reads) & w for j in em.out[k + 1:ji])
        if not later_w and not used_before: live.append(i.text)
    opt.join_reads = live
    lines = list(pre_lines)
    L = lines.append
    nb = 0
    for k, i in enumerate(em.out):
        if k == ji: L("L_join:")
        for t in i.text.split("\n"): L("  " + t.strip() + (f"   ; {i.tag}" if i.tag else ""))
        if opt.stamps and i.kind == "bar":
            if nb in stmap:
                if opt.probe is None: L("  s_waitcnt lgkmcnt(0)")
                stamp(L, opt, stmap[nb])
            nb += 1
    if opt.stamps:
        stamp(L, opt, 6)
        L("  s_waitcnt vmcnt(0)")
        stamp(L, opt, 7)
        stamp_out(L, opt)
    L("  s_endpgm")
    lines = [x for l in lines for x in l.split("\n")]
    sizes = insn_sizes([re.sub(r"L_h\w+", "L_pad1", l) for l in lines if not l.endswith(":")])
    total = sum(sizes)
    sys.stderr.write(f"body bytes {total}\n")
    npad = (total + 16) // 4096 if opt.pads else 0
    addr = 0; k = 0; placed = 0
    for l in lines:
        if l.endswith(":"):
            A(l); continue
        if placed < npad and addr >= 4096 * (placed + 1):
            placed += 1
            A(f"L_pad{placed}:")
            A(f"  s_cbranch_execz {'L_pad%d' % (placed + 1) if placed < npad else 'L_padret'}")
            addr += 4
        A(l); addr += sizes[k]; k += 1
    assert placed == npad

def insn_sizes(lines):
    import subprocess, tempfile, re, os
    src = '.amdgcn_target "amdgcn-amd-amdhsa--gfx950"\n.text\nL_pad1:\n' + "\n".join(lines) + "\n"
    open("_sz.s", "w").write(src)
    subprocess.check_call(["clang", "-x", "assembler", "-target", "amdgcn-amd-amdhsa", "-mcpu=gfx950", "-c", "_sz.s", "-o", "_sz.o"])
    out = subprocess.check_output(["llvm-objdump", "-d", "--mcpu=gfx950", "_sz.o"]).decode()
    res = []
    for l in out.splitlines():
        m = re.search(r"// [0-9A-F]{12}: ((?:[0-9A-F]{8} ?)+)", l)
        if m: res.append(4 * len(m.group(1).split()))
    assert len(res) == len(lines), (len(res), len(lines))
    return res

def win_base(A):
    A("  s_mul_hi_u32 s23, s21, 153391690")
    A("  s_mul_i32 s24, s23, 28")
    A("  s_sub_u32 s24, s21, s24")
    A("  s_mul_i32 s23, s23, 688128")
    A("  s_mul_i32 s24, s24, 3072")
    A(f"  s_add_u32 s{SO[0]}, s23, s24")

def x_row(A, r):
    A(f"  s_add_u32 m0, s24, {3072*r}")
    if r % 4: A("  s_add_u32 s25, s25, 86016")
    else: A(f"  s_mov_b32 s25, s{SO[r // 2]}")

def x_load(A, opt, r, k):
    A(f"  buffer_load_dwordx4 v{16+2*k+(r%2)}, s[8:11], s25 offen offset:{1024*k}{opt.xf} lds")

def x_frags(A, g, step=12288):
    for tt in range(2):
        for s in range(6):
            A(f"  ds_read_b128 {rng('a', X(2*g + tt, s), 4)}, v{FA+s%2} offset:{(s//2)*128 + tt*6144 + g*step}")

def win_addrs(A):
    A(f"  v_add_u32 v{VL[1]}, 0x10000, v{VL[0]}")
    A(f"  v_add_u32 v{VL[2]}, 0x20000, v{VL[0]}")
    A("  v_and_b32 v9, 15, v8")
    A("  v_mul_u32_u24 v10, 384, v9")
    A("  v_add_u32 v10, s24, v10")
    A("  v_bfe_u32 v11, v8, 1, 3")
    A("  v_lshrrev_b32 v12, 4, v8")
    A("  v_xor_b32 v11, v11, v12")
    A(f"  v_lshl_add_u32 v{FA}, v11, 4, v10")
    A("  v_xor_b32 v11, 4, v11")
    A(f"  v_lshl_add_u32 v{FA+1}, v11, 4, v10")
    A(f"  s_add_u32 s{SO[1]}, s{SO[0]}, 172032")
    A(f"  s_add_u32 s{SO[3]}, s{SO[2]}, 172032")

def out_addrs(A):
    A("  v_bfe_u32 v9, v8, 3, 1")
    A("  v_mul_u32_u24 v9, 86016, v9")
    A("  v_and_b32 v10, 7, v8")
    A("  v_mul_u32_u24 v10, 384, v10")
    A("  v_and_b32 v11, 48, v8")
    A(f"  v_add3_u32 v{VO}, v9, v10, v11")

def main_kernel(opt):
    o = []
    A = o.append
    A(f".globl {KN}\n.p2align 12\n.p2align 8\n.type {KN},@function\n{KN}:")
    stamp(A, opt, 0)
    A("  s_load_dwordx4 s[4:7], s[0:1], 0")
    A("  s_load_dwordx4 s[40:43], s[0:1], 16")
    A("  s_load_dwordx4 s[52:55], s[0:1], 32")
    A("  v_lshrrev_b32 v7, 6, v0")
    A("  s_cmp_ge_u32 s2, 256")
    A("  s_cbranch_scc1 L_end")
    A("  v_readfirstlane_b32 s20, v7")
    A("  v_and_b32 v8, 63, v0")
    A(f"  v_lshlrev_b32 v{VL[0]}, 4, v8")
    A("  s_cmp_lg_u32 s20, 3")
    A("  s_cbranch_scc1 L_window")
    A("  s_cmp_ge_u32 s2, 72")
    A("  s_cbranch_scc1 L_pref")
    A("  s_mov_b32 s30, 221184\n  s_mov_b32 s31, 0x00020000\n  s_mov_b32 s35, 0x00020000\n  s_mov_b32 s10, 9216")
    fold(A, opt)
    nl = [0]
    def hdma(mat, t, n=1):
        nl[0] += 1
        A(f"  s_mov_b32 m0, {woff(mat, t)}")
        A("  s_nop 0")
        A(f"L_fill{nl[0]}:")
        for k in range(4):
            A(f"  buffer_load_dwordx4 v{VL[0]}, s[16:19], m0 offen offset:{1024*k} sc1 lds")
        A("  s_add_u32 m0, m0, 4096")
        A(f"  s_cmp_lt_u32 m0, {woff(mat, t) + 12288*n}")
        A(f"  s_cbranch_scc1 L_fill{nl[0]}")
    ROLE[0] = "m"
    A(".p2align 6")
    A("L_window:")
    A("  s_mul_i32 s21, s2, 3")
    A("  s_add_u32 s21, s21, s20")
    win_base(A)
    A(f"  s_add_u32 s{SO[2]}, s{SO[0]}, 344064")
    A("  s_mul_i32 s24, s20, 24576")
    A(f"  s_mov_b32 s14, {XBYTES}")
    stage_offsets(A, 0)
    srd_consts(A, opt)
    srd_bases(A)
    if opt.fastp:
        A(f"  s_sub_u32 s26, s2, {opt.p0}")
        A(f"  s_cmp_lt_u32 s26, {opt.pn - opt.p0}")
        A("  s_cselect_b64 vcc, -1, 0")
    if opt.bh:
        A("  s_cmp_ge_u32 s2, 72")
        A("  s_cbranch_scc1 L_nobh")
        A("  s_barrier")
        A("L_nobh:")
    n = 0
    if opt.fstamp: stamp(A, opt, 1)
    for r in range(8):
        x_row(A, r)
        for k in range(3):
            w = opt.xwin if n < opt.xsw else opt.xwin2
            if n >= w:
                if opt.fastp > w: A(f"  s_cbranch_vccnz L_xs{n}")
                A(f"  s_waitcnt vmcnt({w-1})")
                if opt.fastp > w:
                    A(f"L_xs{n}:")
                    if n >= opt.fastp: A(f"  s_waitcnt vmcnt({opt.fastp-1})")
            if n == opt.bxn:
                if opt.split:
                    A("  s_sub_u32 s26, s2, 36")
                    A("  s_cmp_lt_u32 s26, 36")
                    A("  s_cbranch_scc1 L_nobx")
                A("  s_barrier")
                A("L_nobx:")
            x_load(A, opt, r, k)
            n += 1
        if r == 1:
            win_addrs(A)
            out_addrs(A)
    if not opt.fstamp: stamp(A, opt, 1)
    if opt.bxn >= 24:
        A(f"  s_waitcnt vmcnt({opt.pollat})")
        A("  s_barrier")
    A("  s_waitcnt vmcnt(12)")
    x_frags(A, 0)
    A("  s_mov_b32 vcc_lo, 0x55555555\\n  s_mov_b32 vcc_hi, 0x55555555".replace("\\n", "\n"))
    if opt.pads:
        A("  s_mov_b64 exec, 0")
        A("  s_branch L_pad1")
    else:
        A("  s_branch L_padret")
    ROLE[0] = "h"
    A(".p2align 6")
    A("L_pref:")
    srd_consts(A, opt)
    helper_misc(A, opt)
    srd_bases(A)
    if opt.pref:
        A("  s_getpc_b64 s[48:49]")
        A("L_pc:")
        A(f"  s_sub_u32 s48, s48, L_pc-{KN}")
        A("  s_subb_u32 s49, s49, 0")
        A("  s_lshr_b32 s26, s2, 3")
        A(f"  s_and_b32 s26, s26, {opt.prefn - 1}")
        A("  s_lshl_b32 s26, s26, 13")
        A("  s_add_u32 s26, s26, 1024")
        A("  v_lshl_add_u32 v9, v8, 7, s26")
        A(f"  v_min_u32 v9, L_last-{KN}, v9")
        A("  global_load_dword v29, v9, s[48:49]")
    A("  s_add_u32 s21, s2, 1312")
    A("  s_and_b32 s22, s21, 1")
    A("  s_lshr_b32 s21, s21, 1")
    win_base(A)
    A("  s_mul_i32 s22, s22, 344064")
    A(f"  s_add_u32 s{SO[2]}, s{SO[0]}, 344064")
    A(f"  s_sub_u32 s{SO[2]}, s{SO[2]}, s22")
    A(f"  s_add_u32 s{SO[0]}, s{SO[0]}, s22")
    A("  s_mov_b32 s24, 49152")
    stage_offsets(A, 0)
    A("  s_cmp_lt_u32 s2, 224")
    A("  s_cbranch_scc1 L_loader")
    n = 0
    for r in range(4, 8):
        A(f"  s_mov_b32 m0, {73728 + 3072*(r-4)}")
        A(f"  s_add_u32 s25, s{SO[2]}, {86016*(r%4)}")
        for k in range(3):
            if n >= opt.cwin: A(f"  s_waitcnt vmcnt({opt.cwin-1})")
            x_load(A, opt, r, k); n += 1
    win_addrs(A)
    out_addrs(A)
    A("  s_branch L_loader")
    ROLE[0] = "m"
    A(".p2align 12")
    pl = []
    P = pl.append
    P("L_padret:")
    if opt.pads: P("  s_mov_b64 exec, -1")
    P("  s_waitcnt lgkmcnt(0)")
    stamp(P, opt, 2)
    P("  s_barrier")
    stamp(P, opt, 3)
    emit_body(A, opt, 2, Emitter(), [], {3: 4, 4: 5}, pl)
    A(".p2align 6")
    ROLE[0] = "h"
    A("L_loader:")
    A("  s_barrier")
    if opt.split:
        A("L_nonce:")
        A("  buffer_load_dwordx2 v[14:15], off, s[36:39], 0 sc1")
        bound(A, "L_nonce")
        A("  s_waitcnt vmcnt(0)")
        A("  v_cmp_eq_u32 vcc, 0, v14")
        A("  s_cbranch_vccnz L_nonce")
        A("L_nonce_x:")
        A("  buffer_load_dwordx2 v[12:13], v2, s[16:19], s93 offen sc1")
    else:
        check_issue(A)
    if opt.escout:
        A("  buffer_load_dword v29, v28, s[16:19], s3 offen sc1")
        A("  s_waitcnt vmcnt(1)")
        A("  s_branch L_eval")
    spin_first(A, opt)
    if not opt.fstamp: stamp(A, opt, 3)
    hdma(0, 0)
    A("  s_cmp_eq_u64 vcc, 0")
    A("  s_cbranch_scc1 L_pollB_x")
    spin_flags(A, "L_pollB", "s93", opt.sleep)
    e = 0
    if opt.scout and not opt.escout:
        A("  buffer_load_dword v29, v28, s[16:19], s3 offen sc1"); e = 1
    hdma(0, 1)
    A(f"  s_waitcnt vmcnt({12+e}) lgkmcnt(0)")
    if not opt.fstamp: stamp(A, opt, 4)
    A("  s_barrier")
    A("  buffer_load_dwordx2 v[12:13], v2, s[16:19], s94 offen sc1")
    hdma(0, 2)
    A("  s_waitcnt vmcnt(13)")
    A("  s_barrier")
    hdma(0, 3, 2)
    A("  s_waitcnt vmcnt(24)")
    A("  s_barrier")
    hdma(0, 5)
    A("  v_cmp_ne_u64 vcc, v[12:13], v[14:15]")
    A("  s_waitcnt vmcnt(24)")
    A("  s_barrier")
    A("  s_cmp_lt_u32 s2, 224")
    A("  s_cbranch_scc1 L_nox")
    A("  s_waitcnt vmcnt(0)")
    for r in range(4):
        x_row(A, r)
        for k in range(3): x_load(A, opt, r, k)
    A("L_nox:")
    A("  s_cbranch_vccnz L_nlate")
    A("  buffer_load_dword v29, v28, s[16:19], 0 offen sc1")
    hdma(1, 0)
    A("  s_cmp_ge_u32 s2, 224")
    A("  s_cbranch_scc1 L_b5")
    hdma(1, 4)
    A("  s_waitcnt vmcnt(25)")
    A("L_b5:")
    A("  s_barrier")
    A("L_nback:")
    A("  s_cmp_lg_u32 s2, 0")
    A("  s_cbranch_scc1 L_noep")
    A("  s_mov_b64 exec, 1")
    A("  buffer_store_dwordx2 v[6:7], off, s[16:19], s95 sc1")
    A("  s_mov_b64 exec, -1")
    A("L_noep:")
    hdma(1, 1, 3)
    A("  s_cmp_ge_u32 s2, 224")
    A("  s_cbranch_scc1 L_late")
    A("  s_waitcnt vmcnt(48)")
    hdma(1, 5)
    if not opt.fstamp: stamp(A, opt, 5)
    A("  s_waitcnt vmcnt(0)")
    A("  s_barrier")
    stamp_out(A, opt)
    A("L_end:")
    A("  s_endpgm")
    A("L_nlate:")
    A("  s_waitcnt vmcnt(0)")
    A("  s_barrier")
    spin_flags(A, "L_pollN", "s94", opt.sleep)
    A("  buffer_load_dword v29, v28, s[16:19], 0 offen sc1")
    hdma(1, 0)
    A("  s_cmp_ge_u32 s2, 224")
    A("  s_cbranch_scc1 L_nback")
    hdma(1, 4)
    A("  s_branch L_nback")
    A("L_late:")
    x_frags(A, 1, 24576)
    A("  s_waitcnt vmcnt(36) lgkmcnt(0)")
    x_frags(A, 0)
    hdma(1, 5)
    A("  s_waitcnt lgkmcnt(0)")
    for n, t in enumerate(opt.join_reads):
        if n == 12: A("  s_waitcnt lgkmcnt(0)")
        A("  " + t)
    hdma(1, 4)
    if not opt.fstamp: stamp(A, opt, 5)
    A("  s_mov_b32 vcc_lo, 0x55555555\n  s_mov_b32 vcc_hi, 0x55555555")
    A("  s_waitcnt lgkmcnt(0)")
    A("  s_branch L_join")
    A("L_last:")
    A("  s_endpgm")
    return "\n".join(o)

def main():
    ap = argparse.ArgumentParser()
    ap.add_argument("--ring", type=int, default=12)
    ap.add_argument("--dslead", type=float, default=12.0)
    ap.add_argument("--split", type=int, default=0)
    ap.add_argument("--escout", type=int, default=1)
    ap.add_argument("--blead", type=int, default=12)
    ap.add_argument("--b4c", type=int, default=4)
    ap.add_argument("--olate", type=int, default=2)
    ap.add_argument("--stlead", type=float, default=80.0)
    ap.add_argument("--vstcost", type=int, default=8)
    ap.add_argument("--stcool", type=int, default=6)
    ap.add_argument("--sins", type=int, default=6)
    ap.add_argument("--b4blk", type=int, default=9)
    ap.add_argument("--b1at", type=int, default=5)
    ap.add_argument("--b2at", type=int, default=17)
    ap.add_argument("--b3at", type=int, default=29)
    ap.add_argument("--fastp", type=int, default=10)
    ap.add_argument("--pollat", type=int, default=4)
    ap.add_argument("--fsh", type=int, default=5)
    ap.add_argument("--wf", default="")
    ap.add_argument("--bh", type=int, default=1)
    ap.add_argument("--pads", type=int, default=1)
    ap.add_argument("--maxbytes", type=int, default=16)
    ap.add_argument("--age", type=int, default=10)
    ap.add_argument("--padwin", type=int, default=8)
    ap.add_argument("--ndefer", type=int, default=3)
    ap.add_argument("--xwat", type=int, default=60)
    ap.add_argument("--b5at", type=int, default=42)
    ap.add_argument("--xsw", type=int, default=24)
    ap.add_argument("--xwin2", type=int, default=8)
    ap.add_argument("--cwin", type=int, default=4)
    ap.add_argument("--o41", type=int, default=68)
    ap.add_argument("--dswcost", type=int, default=8)
    ap.add_argument("--bxn", type=int, default=24)
    ap.add_argument("--slowp", type=int, default=0)
    ap.add_argument("--slown", type=int, default=10)
    ap.add_argument("--pn", type=int, default=72)
    ap.add_argument("--p0", type=int, default=36)
    ap.add_argument("--fstamp", type=int, default=0)
    ap.add_argument("--swapmn", type=int, default=0)
    ap.add_argument("--scout", type=int, default=1)
    ap.add_argument("--prefn", type=int, default=4)
    ap.add_argument("--presleep", type=int, default=0)
    ap.add_argument("--pausen", type=int, default=0)
    ap.add_argument("--budget", type=int, default=8)
    ap.add_argument("--maxfill", type=int, default=5)
    ap.add_argument("--lgextra", type=int, default=1)
    ap.add_argument("--xwin", type=int, default=7)
    ap.add_argument("--xearly", type=int, default=24)
    ap.add_argument("--sleep", type=int, default=2)
    ap.add_argument("--pref", type=int, default=1)
    ap.add_argument("--stflags", default="sc1")
    ap.add_argument("--xf", default="")
    ap.add_argument("--log", action="store_true")
    ap.add_argument("--nostore", action="store_true")
    ap.add_argument("--stamps", action="store_true")
    ap.add_argument("--probe", default=None)
    ap.add_argument("--pwg", default="0,256")
    opt = ap.parse_args()
    if opt.probe:
        opt.probe = (opt.probe[0], int(opt.probe[1:])); opt.stamps = True
        opt.pwg = [int(x) for x in opt.pwg.split(",")]
    if opt.stflags: opt.stflags = " " + opt.stflags.replace(",", " ")
    if opt.wf: opt.wf = " " + opt.wf.replace(",", " ")
    if opt.stamps and not opt.probe: opt.prefn = 4
    if opt.xf: opt.xf = " " + opt.xf.replace(",", " ")
    print(HDR.rstrip())
    print(f"; @launch grid=(256,1,1) block=(256,1,1) lds=163840")
    print('.amdgcn_target "amdgcn-amd-amdhsa--gfx950"\n.text')
    print(main_kernel(opt))
    print('.section .rodata,"a"')
    print(f""".p2align 6
.amdhsa_kernel {KN}
  .amdhsa_next_free_vgpr {256 + 96 + 4 * opt.ring}
  .amdhsa_next_free_sgpr 96
  .amdhsa_accum_offset 256
  .amdhsa_group_segment_fixed_size 0
  .amdhsa_kernarg_size 48
  .amdhsa_user_sgpr_count 2
  .amdhsa_user_sgpr_kernarg_segment_ptr 1
  .amdhsa_system_sgpr_workgroup_id_x 1
.end_amdhsa_kernel""")

main()
```

```python
import re

def R(kind, lo, n=1):
    return [f"{kind}{i}" for i in range(lo, lo + n)]

def rng(kind, lo, n):
    return f"{kind}[{lo}:{lo+n-1}]" if n > 1 else f"{kind}{lo}"

VALU = ("valu", "trans", "perm")
COST = {"mfma": 8, "valu": 4, "trans": 8, "perm": 4, "dsr": 4, "dsw": 4, "vld": 4, "vst": 4, "dma": 4,
        "salu": 4, "bar": 4, "nop": 4, "wait": 4}

def cost(i):
    if "permlane" in i.text: return 8
    if i.kind == "bar": return 8
    return COST[i.kind]

def size(i):
    t = i.text
    if i.kind in ("dsr", "dsw", "vld", "vst", "dma", "mfma"): return 8
    if i.kind in ("salu", "bar", "wait", "nop"): return 4 * len(t.split("\n"))
    op = t.split()[0]
    if op in ("v_cvt_pk_bf16_f32", "v_max3_f32") or "dpp" in op: return 8
    return 4

class Ins:
    def __init__(self, text, kind, reads=(), writes=(), srcc=(), after=None, lead=0.0, tag=""):
        self.text = text; self.kind = kind
        self.reads = list(reads); self.writes = list(writes); self.srcc = list(srcc)
        self.after = after
        self.lead = lead
        self.tag = tag
        self.preds = {}
        self.succs = []
        self.pos = None
        self.states = 1
        self.mindist = 0
    def __repr__(self):
        return self.text

def hazard(p, c, typ, reg):
    isv = reg[0] in "va" and reg[1:].isdigit()
    if not isv:
        if reg[0] == "s" and reg[1:].isdigit() or reg in ("vcc", "m0"):
            if typ == "RAW":
                if p.kind in VALU and c.kind in ("vld", "vst", "dma"): return 5
                if p.kind in VALU and c.kind in VALU: return 2
                if reg == "m0" and c.kind == "dma": return 1
        return 0
    if typ == "RAW":
        if p.kind in VALU and c.kind == "mfma": return 2
        if p.kind == "mfma":
            big = len(p.writes) == 16
            if c.kind == "mfma" and reg in c.srcc:
                return 0 if c.srcc == p.writes else (10 if big else 6)
            return 12 if big else 8
        d = 0
        if p.kind == "trans" and c.kind != "trans": d = 1
        if p.kind in VALU and c.kind == "perm": d = 2
        return d
    if typ == "WAW":
        if p.kind == "mfma" and c.kind != "mfma": return 12 if len(p.writes) == 16 else 8
        return 0
    if typ == "WAR":
        if p.kind == "mfma" and reg in p.srcc and c.kind in VALU: return 7 if len(p.writes) == 16 else 3
        if p.kind in ("vst", "dsw"):
            return 2
        return 0
    return 0

def build_dag(base):
    lastw = {}; readers = {}
    for i in base:
        def edge(p, typ, r):
            if p is i: return
            d = hazard(p, i, typ, r)
            if typ == "RAW" and p.kind == "dsr": d = max(d, i.mindist)
            if p not in i.preds:
                i.preds[p] = d; p.succs.append(i)
            else:
                i.preds[p] = max(i.preds[p], d)
        for r in i.reads:
            if r in lastw: edge(lastw[r], "RAW", r)
        for r in i.writes:
            if r in lastw: edge(lastw[r], "WAW", r)
            for p in readers.get(r, []): edge(p, "WAR", r)
        if i.after is not None:
            if i.after not in i.preds:
                i.preds[i.after] = 0; i.after.succs.append(i)
        for r in i.reads:
            readers.setdefault(r, []).append(i)
        for r in i.writes:
            lastw[r] = i; readers[r] = []

class Emitter:
    def __init__(self):
        self.out = []
        self.state = 0
        self.vm = []
        self.lg = []
        self.nm = 0
        self.age = 0
    def need(self, ins):
        regs = set(ins.reads) | set(ins.writes)
        vn = ln = None
        for k, op in enumerate(self.vm):
            if op.kind in ("vld", "dma") and regs & set(op.writes): vn = len(self.vm) - 1 - k
        for k, op in enumerate(self.lg):
            if op.kind == "dsw": continue
            if regs & set(op.writes): ln = len(self.lg) - 1 - k
        return vn, ln
    def raw(self, ins):
        ins.pos = self.state
        self.state += ins.states
        self.out.append(ins)
    def emit(self, ins, lg_extra=0):
        vn, ln = self.need(ins)
        cost = 0
        if vn is not None or ln is not None:
            parts = []
            if vn is not None:
                assert vn <= 63
                parts.append(f"vmcnt({vn})"); self.vm = self.vm[len(self.vm) - vn:] if vn else []
            if ln is not None:
                if self.age:
                    young = sum(1 for op in self.lg if self.nm - op.born < self.age)
                    ln = min(ln, young)
                else:
                    ln = max(0, ln - lg_extra)
                ln = min(ln, 15)
                parts.append(f"lgkmcnt({ln})"); self.lg = self.lg[len(self.lg) - ln:] if ln else []
            self.raw(Ins("s_waitcnt " + " ".join(parts), "wait")); cost += COST["wait"]
        self.raw(ins); cost += COST[ins.kind]
        if ins.kind in ("vld", "vst", "dma"):
            self.vm.append(ins)
            assert len(self.vm) <= 63, "vmcnt overflow"
        if ins.kind in ("dsr", "dsw"):
            ins.born = self.nm
            self.lg.append(ins)
        if ins.kind == "mfma": self.nm += 1
        return cost
    def prewait(self, ins):
        vn, ln = self.need(ins)
        if vn is None and ln is None: return False
        probe = Ins("", "nop", ins.reads, ins.writes)
        self.emit(probe, 0)
        self.out.pop(); self.state -= 1
        return True
    def nop(self, n):
        n = int(n)
        while n > 0:
            k = min(n, 16)
            i = Ins(f"s_nop {k-1}", "nop"); i.states = k
            self.raw(i); n -= k

def schedule(base, em, budget=24, maxfill=5, lg_extra=0, maxlg=15, log=None, prefill=0, cooldown={}, padwin=0, maxbytes=40, latscale=1.0):
    build_dag(base)
    mf = [i for i in base if i.kind == "mfma" and i.pos is None]
    for k, m in enumerate(mf): m.dl = float(k)
    END = len(mf) + 50.0
    for i in reversed(base):
        if i.kind == "mfma": continue
        dl = END
        for s in i.succs:
            lat = (0.2 + s.preds[i] * 0.25) * latscale
            dl = min(dl, s.dl - lat)
        i.dl = dl - i.lead
    fill = [i for i in base if i.kind != "mfma" and i.pos is None]
    order = {id(i): k for k, i in enumerate(base)}
    def wait_states(i):
        miss = 0
        for p, d in i.preds.items():
            if p.pos is None: return None
            have = em.state - (p.pos + p.states)
            miss = max(miss, d - have)
        return miss
    cur = [0]; lastk = {}
    def cands(only=None):
        res = []
        for i in fill:
            if only is not None and id(i) not in only: continue
            w = wait_states(i)
            if w is None or w > 0: continue
            if i.kind in ("dsr", "dsw") and len(em.lg) >= maxlg: continue
            if only is None and i.kind in cooldown and cur[0] - lastk.get(i.kind, -99) < cooldown[i.kind]: continue
            res.append(((i.dl, order[id(i)]), i))
        res.sort(key=lambda x: x[0])
        return [i for _, i in res]
    def pick(only=None):
        c = cands(only)
        return c[0] if c else None
    def missing(m):
        seen = set(); st = [m]
        while st:
            x = st.pop()
            for p in x.preds:
                if p.pos is None and id(p) not in seen:
                    seen.add(id(p)); st.append(p)
        return seen
    stalls = 0
    for k, m in enumerate(mf):
        cur[0] = k
        while True:
            w = wait_states(m)
            if w is not None and w <= 0: break
            f = pick(missing(m)) if w is None else None
            if f is None:
                c = [i for i in cands() if i.kind not in ("dma", "bar")]
                f = c[0] if c else None
            if f is not None:
                em.emit(f, lg_extra); fill.remove(f); stalls += COST[f.kind]
                if log is not None: log.append((k, "forced", f.text))
            else:
                if w is None:
                    em.nop(1); stalls += 4
                else:
                    em.nop(w); stalls += 4 * w
                if log is not None: log.append((k, "nop", ""))
        if k == 0 and prefill:
            for _ in range(prefill):
                c = [i for i in cands() if i.kind == "dsr"]
                if not c: break
                em.emit(c[0], lg_extra); fill.remove(c[0])
        em.emit(m, 0)
        used = 0; nbytes = 0; free = True
        def charge(cost, size, scalar):
            nonlocal used, nbytes, free
            if scalar and free and used == 0:
                free = False; return
            free = False
            used += cost; nbytes += size
        def fits(cost, size, scalar):
            if scalar and free and used == 0: return True
            return used + cost <= budget and nbytes + size <= maxbytes
        if k + 1 < len(mf) and k >= 2:
            w = em.prewait(mf[k + 1])
            if w: charge(4, 4, True)
        tu, tb = used, nbytes; first = []
        for cnd in cands():
            c_, s_ = cost(cnd), size(cnd)
            if cnd.kind == "salu" and free and not any(x.kind in ("salu", "bar") for x in first):
                first.append(cnd); continue
            if tu + c_ > budget or tb + s_ > maxbytes: continue
            if cnd.kind in cooldown and any(x.kind == cnd.kind for x in first): continue
            if cnd.kind == "dsr" and len(em.lg) + sum(1 for x in first if x.kind == "dsr") >= maxlg: continue
            tu += c_; tb += s_
            if cnd.kind not in VALU: first.append(cnd)
        first.sort(key=lambda x: 0 if x.kind in ("salu", "bar") else 1)
        for f in first:
            n0 = len(em.out)
            em.emit(f, 0); fill.remove(f); lastk[f.kind] = k
            for e in em.out[n0:]:
                charge(cost(e), size(e), e.kind in ("salu", "wait"))
        if any(x.kind == "bar" for x in first):
            for cnd in cands():
                if cnd.kind == "dsr" and fits(4, 8, False) and len(em.lg) < maxlg:
                    em.emit(cnd, 0); fill.remove(cnd); charge(4, 8, False)
        while True:
            f = None
            for cnd in cands():
                if cnd.kind in VALU or cnd.kind == "salu":
                    if fits(cost(cnd), size(cnd), cnd.kind == "salu"):
                        f = cnd; break
            if f is None:
                room = (budget - used) // 4 + (1 if free and used == 0 else 0)
                blocked = [w for w in (wait_states(i) for i in fill if i.dl < k + padwin) if w is not None and w > 0]
                if padwin and room >= 1 and blocked and nbytes + 4 <= maxbytes:
                    d = min(min(blocked), room)
                    em.nop(d)
                    used += 4 * (d - (1 if free and used == 0 else 0)); nbytes += 4; free = False
                    if used == 0: used = 0.01
                    continue
                break
            em.emit(f, 0); fill.remove(f)
            charge(cost(f), size(f), f.kind == "salu")
    cur[0] = 10**6
    cooldown = {}
    while fill:
        f = pick()
        if f is None:
            em.nop(1); continue
        em.emit(f, lg_extra); fill.remove(f)
    return stalls

def verify(base, out):
    def trace(seq):
        lastw = {}; res = {}
        for i in seq:
            res[id(i)] = tuple(id(lastw.get(r)) for r in i.reads)
            for r in i.writes: lastw[r] = i
        return res, {r: id(w) for r, w in lastw.items()}
    a, fa = trace(base); b, fb = trace([i for i in out if i.kind not in ("wait", "nop")])
    for i in base:
        assert a[id(i)] == b[id(i)], f"dataflow changed at {i.text}"
    assert fa == fb
    lastw = {}; readers = {}
    for i in out:
        def chk(p, typ, r):
            d = hazard(p, i, typ, r)
            have = i.pos - (p.pos + p.states)
            assert have >= d, f"hazard {typ} {r}: {p.text} -> {i.text}: have {have} need {d}"
        for r in i.reads:
            if r in lastw: chk(lastw[r], "RAW", r)
        for r in i.writes:
            if r in lastw: chk(lastw[r], "WAW", r)
            for p in readers.get(r, []):
                if p is not i: chk(p, "WAR", r)
        for r in i.reads: readers.setdefault(r, []).append(i)
        for r in i.writes:
            lastw[r] = i; readers[r] = []
```

```python
import sys, struct, argparse, re
import sched
from sched import *

KN = "standalone__swin_window_attn__vision_kernel"
XBYTES = 19267584
SCALE = (192 ** -0.5) * 1.4426950408889634
def f32bits(x): return struct.unpack("<I", struct.pack("<f", x))[0]
HDR = open("standalone__swin_window_attn__vision.s.ref").read().split("; Override launch")[0]
WS_STAMP = 0x1000000
WS_FLAG = 0x40000
WS_EPOCH = 0x50000

def woff(mat, t):
    return 90112 + t * 12288 if mat == 0 else t * 12288

X = lambda tt, s: (tt * 6 + s) * 4
WR0 = 96
TA = lambda i: 16 + 4 * (i % 8)
TB = lambda q, s: 48 + (q * 6 + s) * 4
ST = lambda kt, qt: 96 + (qt * 4 + kt) * 4
PB = lambda qt, k: 160 + (qt * 2 + k) * 4
YB = lambda i, b, k: 192 + ((i % 3) * 4 + b * 2 + k) * 4
YB2 = lambda i, b, k: 48 + ((i % 3) * 4 + b * 2 + k) * 4
OB = lambda i: 240 + 4 * (i % 4)
VO = 1
VO2 = 0
VL = [3, 4, 5]
FA = 252
SO = [44, 45, 46, 47]
OSRD = ["s[12:15]", "s[72:75]"]

def mfma(d, ak, a, bk, b, first, tag=""):
    c = "0" if first else rng("v", d, 4)
    rd = R(ak, a, 4) + R(bk, b, 4) + ([] if first else R("v", d, 4))
    return Ins(f"v_mfma_f32_16x16x32_bf16 {rng('v', d, 4)}, {rng(ak, a, 4)}, {rng(bk, b, 4)}, {c}",
               "mfma", rd, R("v", d, 4), srcc=([] if first else R("v", d, 4)), tag=tag)

def valu(op, d, *src, kind="valu", lead=0.0):
    rd = [s for s in src if isinstance(s, str) and s[0] in "vs" and s[1:].isdigit()]
    return Ins(f"{op} {d}, " + ", ".join(str(s) for s in src), kind, rd, [d], lead=lead)

def cvt(d, s0, lead=0.0):
    return valu("v_cvt_pk_bf16_f32", f"v{d}", f"v{s0}", f"v{s0+1}", lead=lead)

def yb(c, b, k):
    return YB(c // 2, b, k) if c % 2 == 0 else YB2(c // 2, b, k)

class Body:
    def __init__(self, opt):
        self.opt = opt
        self.base = []
        self.nfrag = 0
        self.nob = 0
        self.nacc = 0
        self.npair = 0
        self.mf = []
    def add(self, i):
        self.base.append(i); return i
    def acc(self):
        self.nacc += 1
        return TA(self.nacc)
    def wtile(self, mat, r):
        res = []
        for s in range(6):
            slot = self.nfrag % self.opt.ring; self.nfrag += 1
            reg = WR0 + 4 * slot
            off = woff(mat, 0) + r * 6144 + s * 1024
            self.add(Ins(f"ds_read_b128 {rng('a', reg, 4)}, v{VL[off >> 16]} offset:{off & 0xffff}", "dsr",
                         [f"v{VL[off >> 16]}", f"L:{mat}:{r // 2}"], R("a", reg, 4), lead=self.opt.dslead))
            res.append(reg)
        return res
    def allred(self, op, x, y):
        for sw in ("v_permlane32_swap_b32", "v_permlane16_swap_b32"):
            self.add(valu("v_mov_b32", y, x))
            self.add(Ins(f"{sw} {x}, {y}", "perm", [x, y], [x, y]))
            self.add(valu(op, x, x, y))
    def softmax(self, qt):
        vals = [ST(kt, qt) + r for kt in range(4) for r in range(4)]
        t0 = 7 + 4 * (qt % 2)
        m0, m1, l0, l1 = (f"v{t0+i}" for i in range(4))
        self.add(valu("v_max3_f32", m0, f"v{vals[0]}", f"v{vals[1]}", f"v{vals[2]}"))
        for k in range(3, 15, 2):
            self.add(valu("v_max3_f32", m0, m0, f"v{vals[k]}", f"v{vals[k+1]}"))
        self.add(valu("v_max_f32", m0, m0, f"v{vals[15]}"))
        self.allred("v_max_f32", m0, m1)
        for k, v in enumerate(vals):
            self.add(valu("v_sub_f32", f"v{v}", f"v{v}", m0))
            self.add(valu("v_exp_f32", f"v{v}", f"v{v}", kind="trans"))
            if k == 1: self.add(valu("v_add_f32", l0, f"v{vals[0]}", f"v{v}"))
            if k > 1: self.add(valu("v_add_f32", l0, l0, f"v{v}"))
        self.allred("v_add_f32", l0, l1)
        self.add(valu("v_rcp_f32", l0, l0, kind="trans"))
        for k in range(2):
            for d in range(4):
                s = ST(2 * k, qt) + 2 * d
                self.add(valu("v_mul_f32", f"v{s}", f"v{s}", l0))
                self.add(valu("v_mul_f32", f"v{s+1}", f"v{s+1}", l0))
                self.add(cvt(PB(qt, k) + d, s))
    def Tchain(self, r, w, g, q):
        acc = self.acc()
        for s in range(6):
            m = self.add(mfma(acc, "a", w[s], "a", X(2 * g + q, s), s == 0, tag=f"T{r}.{2*g+q}"))
            self.mf.append(m)
            if g == 1 and r == 0 and q == 0 and s == 0: self.join = m
        for d in range(2): self.add(cvt(TB(q, r // 2) + 2 * (r % 2) + d, acc + 2 * d))
    def Oblk(self, c, qt):
        ob = OB(self.nob); self.nob += 1
        L = self.opt.stlead; fl = self.opt.stflags
        for b in range(2):
            acc = self.acc()
            for k in range(2):
                self.add(mfma(acc, "v", yb(c, b, k), "v", PB(qt, k), k == 0, tag=f"O{c}.{qt}"))
            for d in range(2): self.add(cvt(ob + 2 * b + d, acc + 2 * d, lead=L))
        if not self.opt.nostore:
            self.add(Ins(f"buffer_store_dwordx4 {rng('v', ob, 4)}, v{VO}, {OSRD[qt // 2]}, s{SO[qt]} offen offset:{64*c}{fl}",
                         "vst", R("v", ob, 4) + [f"v{VO}"], [], lead=L))
    def Opair(self, c, g):
        par = self.npair % 2; self.npair += 1
        ob = 240 + 8 * par if not self.opt.mixed else 240 + 8 * par
        L = self.opt.stlead; fl = self.opt.stflags
        accs = []
        for q in range(2):
            for b in range(2):
                acc = self.acc(); accs.append(acc)
                for k in range(2):
                    self.add(mfma(acc, "v", yb(c, b, k), "v", PB(2 * g + q, k), k == 0, tag=f"O{c}.{2*g+q}"))
                for d in range(2): self.add(cvt(ob + 4 * q + 2 * b + d, acc + 2 * d, lead=L))
        for d in range(4):
            x, y = f"v{ob+d}", f"v{ob+4+d}"
            self.add(Ins(f"v_permlane16_swap_b32 {x}, {y}", "perm", [x, y], [x, y], lead=L))
        tmp = ST(par, 2 * g)
        def s1(dst):
            for d in range(4):
                self.add(Ins(f"v_cndmask_b32_dpp v{dst+d}, v{ob+4+d}, v{ob+d}, vcc quad_perm:[0,0,2,2] row_mask:0xf bank_mask:0xf",
                             "perm", [f"v{ob+4+d}", f"v{ob+d}", "vcc"], [f"v{dst+d}"], lead=L))
        def s2(dst):
            for d in range(4):
                self.add(Ins(f"v_cndmask_b32_dpp v{dst+d}, v{ob+d}, v{ob+4+d}, vcc quad_perm:[1,1,3,3] row_mask:0xf bank_mask:0xf",
                             "perm", [f"v{ob+4+d}", f"v{ob+d}", "vcc"], [f"v{dst+d}"], lead=L))
        def st(reg, odd):
            if self.opt.nostore: return
            self.add(Ins(f"buffer_store_dwordx4 {rng('v', reg, 4)}, v{VO2}, {OSRD[g]}, s{SO[2*g]} offen offset:{64*c + 384*odd}{fl}",
                         "vst", R("v", reg, 4) + [f"v{VO2}"], [], lead=L))
        flip = Ins("s_not_b64 vcc, vcc", "salu", ["vcc"], ["vcc"], lead=L)
        if par == 0:
            s1(tmp); st(tmp, 0); self.add(flip); s2(ob + 4); st(ob + 4, 1)
        else:
            s2(tmp); st(tmp, 1); self.add(flip); s1(ob); st(ob, 0)
    def Oany(self, c, qt):
        if c >= self.opt.pairc:
            if qt % 2 == 1: self.Opair(c, qt // 2)
        else:
            self.Oblk(c, qt)
    def bar(self, tiles, after, text="s_barrier", reads=()):
        return self.add(Ins(text, "bar", ["BAR"] + list(reads), ["BAR"] + [f"L:{m}:{t}" for m, t in tiles], after=after))

    def build(self, nq):
        opt = self.opt
        allN = [(1, tn) for tn in range(6)]
        for g in range(2):
            for c in range(6):
                if g == 0:
                    if c in (1, 2, 3): self.bar([(0, c)], self.mf[24 * c - opt.blead])
                    if c == 4:
                        self.add(Ins("s_waitcnt vmcnt(0)", "salu", [], ["XW"], after=self.mf[opt.xwat], lead=100))
                        for tt in (2, 3):
                            for s in range(6):
                                self.add(Ins(f"ds_read_b128 {rng('a', X(tt, s), 4)}, v{FA+s%2} offset:{(s//2)*128 + tt*6144}", "dsr",
                                             ["XW", f"v{FA+s%2}"], R("a", X(tt, s), 4), lead=100))
                        b5 = self.bar([(0, 4), (0, 5)], self.mf[96 - opt.blead], reads=[r for tt in (2, 3) for s in range(6) for r in R("a", X(tt, s), 4)])
                        b5.lead = 400
                if g == 1 and c == opt.b4c: self.bar(allN, self.mf[-1], "s_waitcnt vmcnt(0)\n  s_barrier")
                if c < 5:
                    for b in range(2):
                        w = self.wtile(0, 2 * c + b)
                        for q in range(2): self.Tchain(2 * c + b, w, g, q)
                else:
                    w = [self.wtile(0, 10), self.wtile(0, 11)]
                    for q in range(2):
                        for b in range(2): self.Tchain(10 + b, w[b], g, q)
            for q in range(2):
                for kt in range(4):
                    for s in range(6):
                        self.add(mfma(ST(kt, 2 * g + q), "a", X(kt, s), "v", TB(q, s), s == 0, tag=f"S{kt}.{2*g+q}"))
                self.softmax(2 * g + q)
        pos = {}
        def put(c, n, blk): pos.setdefault((c, n), []).append(blk)
        for c in range(5):
            put(c + 1, 2, (c, 0)); put(c + 1, 4, (c, 1))
        late = opt.olate
        sl = [(late + i // 4, (1, 3, 5, 7)[i % 4]) for i in range(40)]
        i = 0
        for c in range(5):
            for qt in (2, 3):
                while sl[i] < (c + 1, 2): i += 1
                put(*sl[i], (c, qt)); i += 1
        for c in range(6):
            n = 0
            for b in range(2):
                w = self.wtile(1, 2 * c + b)
                for kt in range(4):
                    for blk in pos.get((c, n), []): self.Oany(*blk)
                    acc = self.acc()
                    for s in range(6):
                        self.add(mfma(acc, "a", X(kt, s), "a", w[s], s == 0, tag=f"Y{2*c+b}.{kt}"))
                    for d in range(2): self.add(cvt(yb(c, b, kt // 2) + 2 * (kt % 2) + d, acc + 2 * d))
                    n += 1
        for key in sorted(pos):
            if key[0] >= 6:
                for blk in pos[key]: self.Oany(*blk)
        for qt in range(4): self.Oany(5, qt)

_ph = [0]
ROLE = ["h"]
def stamp(A, opt, k):
    if opt.probe is not None:
        if (ROLE[0], k) == opt.probe or (k == 0 and opt.probe[1] == 0):
            A("  s_memrealtime s[56:57]")
            A("  s_waitcnt lgkmcnt(0)")
        return
    if opt.stamps:
        A(f"  s_memrealtime s[{56+2*k}:{57+2*k}]")
        A(f"  s_memtime s[{76+2*k}:{77+2*k}]")
        A(f"  s_waitcnt lgkmcnt(0)")

def stamp_out(A, opt):
    if opt.probe is not None:
        if ROLE[0] != opt.probe[0]: return
        _ph[0] += 1; n = _ph[0]
        A(f"  s_sub_u32 s60, s2, {opt.pwg[0]}")
        A(f"  s_cmp_ge_u32 s60, {opt.pwg[1] - opt.pwg[0]}")
        A(f"  s_cbranch_scc1 L_hx{n}")
        if ROLE[0] == "m":
            A("  s_cmp_eq_u32 s20, 3")
            A(f"  s_cbranch_scc1 L_hx{n}")
        A(f"L_hold{n}:")
        A("  s_memrealtime s[58:59]")
        A("  s_waitcnt lgkmcnt(0)")
        A("  s_sub_u32 s60, s58, s56")
        A("  s_cmp_lt_u32 s60, 1500")
        A(f"  s_cbranch_scc1 L_hold{n}")
        A(f"L_hx{n}:")
        return
    if not opt.stamps: return
    for k in range(8): A(f"  v_mov_b32 v{16+k}, s{56+2*k}")
    for k in range(8): A(f"  v_mov_b32 v{24+k}, s{76+2*k}")
    A(f"  s_lshl_b32 s26, s2, 2\n  s_add_u32 s26, s26, s20\n  s_lshl_b32 s26, s26, 5\n  s_add_u32 s26, s26, {WS_STAMP}")
    A("  s_mov_b32 s18, 0x10000000")
    A("  v_mov_b32 v7, 0")
    A("  buffer_store_dwordx4 v[16:19], v7, s[16:19], s26 offen")
    A("  buffer_store_dwordx4 v[20:23], v7, s[16:19], s26 offen offset:16")
    A("  s_add_u32 s26, s26, 0x10000")
    A("  buffer_store_dwordx4 v[24:27], v7, s[16:19], s26 offen")
    A("  buffer_store_dwordx4 v[28:31], v7, s[16:19], s26 offen offset:16")

def bound(A, label):
    A("  s_add_u32 s92, s92, 1")
    A("  s_cmp_gt_u32 s92, 50000")
    A(f"  s_cbranch_scc1 {label}_x")

def check_issue(A):
    A("  buffer_load_dwordx2 v[14:15], off, s[36:39], 0 sc1")
    A("  buffer_load_dwordx2 v[12:13], v2, s[16:19], s93 offen sc1")

def spin_first(A, opt):
    A("  s_branch L_pollA_0")
    A("L_pollA:")
    A(f"  s_sleep {opt.sleep}")
    check_issue(A)
    bound(A, "L_pollA")
    A("L_pollA_0:")
    A("  s_waitcnt vmcnt(0)")
    A("L_eval:")
    A("  v_cmp_ne_u64 vcc, v[12:13], v[14:15]")
    A("  v_cmp_eq_u32 s[26:27], 0, v14")
    A("  s_nop 1")
    A("  s_or_b64 vcc, vcc, s[26:27]")
    A("  s_and_b32 s26, vcc_lo, 0x3f")
    A("  s_cbranch_scc1 L_pollA")
    A("L_pollA_x:")

def spin_flags(A, label, sreg, sleep):
    A(f"  s_branch {label}_0")
    A(f"{label}:")
    A(f"  s_sleep {sleep}")
    A(f"{label}_0:")
    A(f"  buffer_load_dwordx2 v[12:13], v2, s[16:19], {sreg} offen sc1")
    bound(A, label)
    A("  s_waitcnt vmcnt(0)")
    A("  v_cmp_ne_u64 vcc, v[12:13], v[14:15]")
    A(f"  s_cbranch_vccnz {label}")
    A(f"{label}_x:")

def stage_offsets(A, rowx):
    for k in range(3):
        A(f"  v_add_u32 v9, {64*k}, v8")
        A("  v_mul_u32_u24 v9, 0xaab, v9")
        if rowx:
            A("  v_lshrrev_b32 v10, 16, v9")
            A(f"  v_mul_u32_u24 v10, {rowx}, v10")
        A("  v_lshrrev_b32 v9, 17, v9")
        A("  v_xor_b32 v9, v9, v8")
        if rowx:
            A("  v_xor_b32 v11, 4, v9")
            A(f"  v_lshl_add_u32 v{16+2*k}, v9, 4, v10")
            A(f"  v_lshl_add_u32 v{17+2*k}, v11, 4, v10")
        else:
            A(f"  v_lshlrev_b32 v{16+2*k}, 4, v9")
            A(f"  v_xor_b32 v{17+2*k}, 64, v{16+2*k}")

def frag_addrs(A, jreg, base, dst=24):
    A(f"  v_mul_u32_u24 v10, 384, {jreg}")
    A(f"  v_add_u32 v10, {base}, v10")
    A(f"  v_bfe_u32 v11, {jreg}, 1, 3")
    A("  v_lshrrev_b32 v12, 5, v8")
    A("  v_xor_b32 v11, v11, v12")
    for m in range(4):
        A(f"  v_xor_b32 v13, {2*m}, v11")
        A(f"  v_lshl_add_u32 v{dst+m}, v13, 4, v10")

def fold(A, opt):
    SC = 73728
    A("  s_cmp_ge_u32 s2, 36")
    A("  s_cselect_b32 s51, 36, 0")
    A("  s_cselect_b64 vcc, -1, 0")
    A("  s_cselect_b32 s50, 768, 0")
    A("  s_cselect_b32 s21, 64, 36864")
    A("  s_cselect_b32 s24, 0, 384")
    A("  s_cselect_b32 s25, 18432, s10")
    A("  s_cselect_b32 s34, 73728, s30")
    A("  s_sub_u32 s51, s2, s51")
    A("  s_mul_i32 s48, s51, 43")
    A("  s_lshr_b32 s48, s48, 8")
    A("  s_mul_i32 s49, s48, 6")
    A("  s_sub_u32 s49, s51, s49")
    A("  s_mul_i32 s22, s49, 36864")
    A("  s_add_u32 s22, s22, s50")
    A("  s_mul_i32 s23, s48, s21")
    A("  s_add_u32 s23, s23, s24")
    stage_offsets(A, 768)
    A("  v_lshrrev_b32 v14, 2, v8")
    A("  v_mul_u32_u24 v14, 384, v14")
    A("  v_and_b32 v13, 3, v8")
    A("  v_lshl_add_u32 v14, v13, 4, v14")
    for k in range(3):
        if k: A(f"  v_add_u32 v14, 5120, v14")
        A(f"  v_cndmask_b32 v{144+2*k}, v{16+2*k}, v14, vcc")
        A(f"  v_cndmask_b32 v{145+2*k}, v{17+2*k}, v14, vcc")
    A("  s_waitcnt lgkmcnt(0)")
    A("  s_cmp_ge_u32 s2, 36")
    A("  s_mov_b64 s[28:29], s[6:7]")
    A("  s_cselect_b64 s[32:33], s[40:41], s[6:7]")
    def panel(sreg, lds, v0, srd, step):
        for r in range(4):
            A(f"  s_mov_b32 m0, {lds + 3072*r}")
            if r: A(f"  s_add_u32 {sreg}, {sreg}, {step}")
            else: A("  s_nop 0")
            for k in range(3):
                A(f"  buffer_load_dwordx4 v{v0+2*k+(r%2)}, {srd}, {sreg} offen offset:{1024*k}{opt.wf} lds")
    panel("s23", SC + 12288, 144, "s[32:35]", "s25")
    panel("s22", SC, 16, "s[28:31]", 9216)
    srd_consts(A, opt, True)
    srd_bases(A, True)
    A(f"  s_mov_b32 s95, {WS_EPOCH}")
    A("  buffer_load_dwordx2 v[6:7], off, s[16:19], s95 sc1")
    stamp(A, opt, 7)
    if opt.bh: A("  s_barrier")
    helper_misc(A, opt)
    A("  v_and_b32 v9, 0x13, v8")
    A("  v_and_b32 v10, 4, v8")
    A("  v_lshl_or_b32 v9, v10, 1, v9")
    A("  v_and_b32 v10, 8, v8")
    A("  v_lshrrev_b32 v10, 1, v10")
    A("  v_or_b32 v9, v9, v10")
    frag_addrs(A, "v9", SC)
    A("  v_and_b32 v9, 3, v8")
    A("  v_bfe_u32 v10, v8, 2, 2")
    A("  v_lshl_or_b32 v9, v10, 3, v9")
    A("  v_bfe_u32 v10, v8, 4, 1")
    A("  v_lshl_or_b32 v9, v10, 2, v9")
    frag_addrs(A, "v9", SC, 150)
    A("  v_bfe_u32 v9, v8, 4, 1")
    A("  v_mul_u32_u24 v9, 6144, v9")
    A("  v_and_b32 v10, 15, v8")
    A("  v_lshl_add_u32 v9, v10, 4, v9")
    A("  v_lshl_add_u32 v154, v12, 8, v9")
    A("  v_bfe_u32 v14, v8, 2, 2")
    A("  v_lshl_add_u32 v14, v12, 3, v14")
    A("  v_lshlrev_b32 v14, 6, v14")
    A("  v_bfe_u32 v13, v8, 4, 1")
    A("  v_lshl_add_u32 v14, v13, 3, v14")
    A("  v_and_b32 v13, 3, v8")
    A("  v_lshl_add_u32 v14, v13, 4, v14")
    A(f"  v_add_u32 v14, {SC + 12288}, v14")
    A("  s_mul_i32 s26, s48, 12288")
    A(f"  s_add_u32 s27, s26, {woff(0,0)}")
    A("  s_lshl_b32 s54, s49, 10")
    A("  s_cmp_ge_u32 s2, 36")
    A("  s_cselect_b32 s26, s26, s27")
    A(f"  s_cselect_b32 s27, 1.0, {f32bits(SCALE):#x}")
    A("  s_add_u32 s26, s26, s54")
    A(f"  s_lshl_b32 s54, s2, {opt.fsh}")
    A(f"  s_add_u32 s54, s54, {WS_FLAG}")
    if opt.fstamp: stamp(A, opt, 5)
    A("  s_waitcnt vmcnt(13)")
    if opt.fstamp: stamp(A, opt, 3)
    A("  s_cbranch_vccnz L_fold_tr")
    for s in range(12):
        A(f"  ds_read_b128 v[{80+4*s}:{83+4*s}], v{150+s%4} offset:{(s//4)*128 + 12288}")
    A("  s_branch L_fold_a")
    A("L_fold_tr:")
    for s in range(12):
        for jj in range(2):
            A(f"  ds_read_b64_tr_b16 v[{80+4*s+2*jj}:{81+4*s+2*jj}], v14 offset:{1024*s + 256*jj}")
        if s == 6: A("  s_waitcnt lgkmcnt(0)")
    A("L_fold_a:")
    A("  s_waitcnt vmcnt(1) lgkmcnt(0)")
    if opt.fstamp: stamp(A, opt, 4)
    for s in range(12):
        A(f"  ds_read_b128 v[{32+4*s}:{35+4*s}], v{24+s%4} offset:{(s//4)*128}")
    for s in range(12):
        c = "0" if s == 0 else "v[128:143]"
        A(f"  s_waitcnt lgkmcnt({11-s})")
        A(f"  v_mfma_f32_32x32x16_bf16 v[128:143], v[{32+4*s}:{35+4*s}], v[{80+4*s}:{83+4*s}], {c}")
    stamp(A, opt, 1)
    A("  s_waitcnt vmcnt(0)")
    A("  v_add_co_u32 v6, vcc, 2, v6")
    A("  s_nop 1")
    A("  v_addc_co_u32 v7, vcc, 0, v7, vcc")
    A("  v_or_b32 v6, 1, v6")
    A("  s_nop 5")
    for d in range(8):
        A(f"  v_mul_f32 v{128+2*d}, s27, v{128+2*d}")
        A(f"  v_mul_f32 v{129+2*d}, s27, v{129+2*d}")
        A(f"  v_cvt_pk_bf16_f32 v{32+d}, v{128+2*d}, v{129+2*d}")
        if d == 3: A(f"  buffer_store_dwordx4 v[32:35], v154, s[16:19], s26 offen sc1")
    A(f"  buffer_store_dwordx4 v[36:39], v154, s[16:19], s26 offen offset:512 sc1")
    A("  s_mov_b64 exec, 1")
    A("  s_cmp_lg_u32 s2, 0")
    A("  s_cbranch_scc1 L_fold_pub")
    A("  buffer_store_dwordx2 v[6:7], off, s[36:39], 0 sc1")
    A("  s_waitcnt vmcnt(1)")
    A("  s_branch L_fold_pub2")
    A("L_fold_pub:")
    A("  s_waitcnt vmcnt(0)")
    A("L_fold_pub2:")
    stamp(A, opt, 2)
    A("  buffer_store_dwordx2 v[6:7], off, s[16:19], s54 sc1")
    A("  s_mov_b64 exec, -1")
    stamp(A, opt, 6)
    if opt.split:
        A("  v_mov_b32 v14, v6")
        A("  v_mov_b32 v15, v7")
        A("  s_cmp_ge_u32 s2, 36")
        A("  s_cbranch_scc1 L_nonce_x")
    A("  s_branch L_loader")

def helper_misc(A, opt):
    A("  s_mov_b32 s14, 0")
    A(f"  v_mov_b32 v{VO}, 0")
    A("  v_min_u32 v2, 35, v8")
    A(f"  v_lshlrev_b32 v2, {opt.fsh}, v2")
    A("  s_lshr_b32 s26, s2, 3")
    if opt.scout == 1:
        A("  s_mul_i32 s27, s26, 57")
        A("  s_lshr_b32 s27, s27, 9")
        A("  s_mul_i32 s27, s27, 9")
        A("  s_sub_u32 s26, s26, s27")
        A("  s_lshl_b32 s26, s26, 13")
        A("  v_lshl_add_u32 v28, v8, 7, s26")
    else:
        A("  s_cmp_ge_u32 s26, 18")
        A("  s_cselect_b32 s27, 14, 0")
        A("  s_sub_u32 s26, s26, s27")
        A("  s_lshl_b32 s26, s26, 12")
        A("  v_and_b32 v28, 31, v8")
        A("  v_lshl_add_u32 v28, v28, 7, s26")
    A(f"  s_mov_b32 s3, {woff(0, 0)}")

def srd_consts(A, opt, prod=False):
    A(f"  s_mov_b32 s10, {XBYTES}\n  s_mov_b32 s11, 0x00020000")
    A(f"  s_mov_b32 s15, 0x00020000")
    A("  s_mov_b32 s18, 0x60000\n  s_mov_b32 s19, 0x00020000")
    A("  s_mov_b32 s38, 256\n  s_mov_b32 s39, 0x00020000")
    A(f"  s_mov_b32 s74, {XBYTES}\n  s_mov_b32 s75, 0x00020000")
    A(f"  s_mov_b32 s93, {WS_FLAG}")
    A(f"  s_mov_b32 s94, {WS_FLAG + (36 << opt.fsh)}")
    A("  s_mov_b32 s92, 0")

def srd_bases(A, prod=False):
    if not prod: A("  s_waitcnt lgkmcnt(0)")
    A("  s_mov_b64 s[8:9], s[4:5]\n  s_mov_b64 s[16:17], s[54:55]\n  s_mov_b64 s[36:37], s[52:53]")
    A("  s_mov_b64 s[12:13], s[42:43]\n  s_mov_b64 s[72:73], s[42:43]")

def emit_body(A, opt, nq, em, pre, stmap, pre_lines):
    b = Body(opt); b.build(nq)
    em.age = opt.age
    log = []
    sched.COST["vst"] = opt.vstcost
    sched.COST["dsw"] = opt.dswcost
    stalls = schedule(pre + b.base, em, budget=opt.budget, maxfill=opt.maxfill, lg_extra=opt.lgextra, log=log,
                      prefill=7, cooldown={'vst': opt.stcool}, padwin=opt.padwin, maxbytes=opt.maxbytes, latscale=2.5)
    verify(pre + b.base, em.out)
    nm = sum(1 for i in em.out if i.kind == "mfma")
    sys.stderr.write(f"body{nq}: instrs {len(em.out)} mfma {nm} forced-cycles {stalls}\n")
    if opt.log:
        for l in log: sys.stderr.write(str(l) + "\n")
    ji = em.out.index(b.join)
    if em.out[ji - 1].kind == "wait": ji -= 1
    live = []
    for k, i in enumerate(em.out[:ji]):
        if i.kind != "dsr" or int(i.writes[0][1:]) < WR0: continue
        w = set(i.writes)
        later_w = any(j.kind == "dsr" and set(j.writes) & w for j in em.out[k + 1:ji])
        used_before = any(j.kind == "mfma" and set(j.reads) & w for j in em.out[k + 1:ji])
        if not later_w and not used_before: live.append(i.text)
    opt.join_reads = live
    lines = list(pre_lines)
    L = lines.append
    nb = 0
    for k, i in enumerate(em.out):
        if k == ji: L("L_join:")
        for t in i.text.split("\n"): L("  " + t.strip() + (f"   ; {i.tag}" if i.tag else ""))
        if opt.stamps and i.kind == "bar":
            if nb in stmap:
                if opt.probe is None: L("  s_waitcnt lgkmcnt(0)")
                stamp(L, opt, stmap[nb])
            nb += 1
    if opt.stamps:
        stamp(L, opt, 6)
        L("  s_waitcnt vmcnt(0)")
        stamp(L, opt, 7)
        stamp_out(L, opt)
    L("  s_endpgm")
    lines = [x for l in lines for x in l.split("\n")]
    sizes = insn_sizes([re.sub(r"L_h\w+", "L_pad1", l) for l in lines if not l.endswith(":")])
    total = sum(sizes)
    sys.stderr.write(f"body bytes {total}\n")
    npad = (total + 16) // 4096 if opt.pads else 0
    addr = 0; k = 0; placed = 0
    for l in lines:
        if l.endswith(":"):
            A(l); continue
        if placed < npad and addr >= 4096 * (placed + 1):
            placed += 1
            A(f"L_pad{placed}:")
            A(f"  s_cbranch_execz {'L_pad%d' % (placed + 1) if placed < npad else 'L_padret'}")
            addr += 4
        A(l); addr += sizes[k]; k += 1
    assert placed == npad

def insn_sizes(lines):
    import subprocess, tempfile, re, os
    src = '.amdgcn_target "amdgcn-amd-amdhsa--gfx950"\n.text\nL_pad1:\n' + "\n".join(lines) + "\n"
    open("_sz.s", "w").write(src)
    subprocess.check_call(["clang", "-x", "assembler", "-target", "amdgcn-amd-amdhsa", "-mcpu=gfx950", "-c", "_sz.s", "-o", "_sz.o"])
    out = subprocess.check_output(["llvm-objdump", "-d", "--mcpu=gfx950", "_sz.o"]).decode()
    res = []
    for l in out.splitlines():
        m = re.search(r"// [0-9A-F]{12}: ((?:[0-9A-F]{8} ?)+)", l)
        if m: res.append(4 * len(m.group(1).split()))
    assert len(res) == len(lines), (len(res), len(lines))
    return res

def win_base(A):
    A("  s_mul_hi_u32 s23, s21, 153391690")
    A("  s_mul_i32 s24, s23, 28")
    A("  s_sub_u32 s24, s21, s24")
    A("  s_mul_i32 s23, s23, 688128")
    A("  s_mul_i32 s24, s24, 3072")
    A(f"  s_add_u32 s{SO[0]}, s23, s24")

def x_row(A, r):
    A(f"  s_add_u32 m0, s24, {3072*r}")
    if r % 4: A("  s_add_u32 s25, s25, 86016")
    else: A(f"  s_mov_b32 s25, s{SO[r // 2]}")

def x_load(A, opt, r, k):
    A(f"  buffer_load_dwordx4 v{16+2*k+(r%2)}, s[8:11], s25 offen offset:{1024*k}{opt.xf} lds")

def x_frags(A, g, step=12288):
    for tt in range(2):
        for s in range(6):
            A(f"  ds_read_b128 {rng('a', X(2*g + tt, s), 4)}, v{FA+s%2} offset:{(s//2)*128 + tt*6144 + g*step}")

def win_addrs(A):
    A(f"  v_add_u32 v{VL[1]}, 0x10000, v{VL[0]}")
    A(f"  v_add_u32 v{VL[2]}, 0x20000, v{VL[0]}")
    A("  v_and_b32 v9, 15, v8")
    A("  v_mul_u32_u24 v10, 384, v9")
    A("  v_add_u32 v10, s24, v10")
    A("  v_bfe_u32 v11, v8, 1, 3")
    A("  v_lshrrev_b32 v12, 4, v8")
    A("  v_xor_b32 v11, v11, v12")
    A(f"  v_lshl_add_u32 v{FA}, v11, 4, v10")
    A("  v_xor_b32 v11, 4, v11")
    A(f"  v_lshl_add_u32 v{FA+1}, v11, 4, v10")
    A(f"  s_add_u32 s{SO[1]}, s{SO[0]}, 172032")
    A(f"  s_add_u32 s{SO[3]}, s{SO[2]}, 172032")

def out_addrs(A):
    A("  v_bfe_u32 v9, v8, 3, 1")
    A("  v_mul_u32_u24 v9, 86016, v9")
    A("  v_and_b32 v10, 7, v8")
    A("  v_mul_u32_u24 v10, 384, v10")
    A("  v_and_b32 v11, 48, v8")
    A(f"  v_add3_u32 v{VO}, v9, v10, v11")
    A("  v_bfe_u32 v9, v8, 3, 2")
    A("  v_mul_u32_u24 v9, 86016, v9")
    A("  v_and_b32 v10, 6, v8")
    A("  v_mul_u32_u24 v10, 384, v10")
    A("  v_and_b32 v11, 1, v8")
    A("  v_lshlrev_b32 v11, 4, v11")
    A("  v_and_b32 v12, 32, v8")
    A("  v_or_b32 v11, v11, v12")
    A(f"  v_add3_u32 v{VO2}, v9, v10, v11")

def main_kernel(opt):
    o = []
    A = o.append
    A(f".globl {KN}\n.p2align 12\n.p2align 8\n.type {KN},@function\n{KN}:")
    stamp(A, opt, 0)
    A("  s_load_dwordx4 s[4:7], s[0:1], 0")
    A("  s_load_dwordx4 s[40:43], s[0:1], 16")
    A("  s_load_dwordx4 s[52:55], s[0:1], 32")
    A("  v_lshrrev_b32 v7, 6, v0")
    A("  s_cmp_ge_u32 s2, 256")
    A("  s_cbranch_scc1 L_end")
    A("  v_readfirstlane_b32 s20, v7")
    A("  v_and_b32 v8, 63, v0")
    A(f"  v_lshlrev_b32 v{VL[0]}, 4, v8")
    A("  s_cmp_lg_u32 s20, 3")
    A("  s_cbranch_scc1 L_window")
    A("  s_cmp_ge_u32 s2, 72")
    A("  s_cbranch_scc1 L_pref")
    A("  s_mov_b32 s30, 221184\n  s_mov_b32 s31, 0x00020000\n  s_mov_b32 s35, 0x00020000\n  s_mov_b32 s10, 9216")
    fold(A, opt)
    nl = [0]
    def hdma(mat, t, n=1):
        nl[0] += 1
        A(f"  s_mov_b32 m0, {woff(mat, t)}")
        A("  s_nop 0")
        A(f"L_fill{nl[0]}:")
        for k in range(4):
            A(f"  buffer_load_dwordx4 v{VL[0]}, s[16:19], m0 offen offset:{1024*k} sc1 lds")
        A("  s_add_u32 m0, m0, 4096")
        A(f"  s_cmp_lt_u32 m0, {woff(mat, t) + 12288*n}")
        A(f"  s_cbranch_scc1 L_fill{nl[0]}")
    ROLE[0] = "m"
    A(".p2align 6")
    A("L_window:")
    A("  s_mul_i32 s21, s2, 3")
    A("  s_add_u32 s21, s21, s20")
    win_base(A)
    A(f"  s_add_u32 s{SO[2]}, s{SO[0]}, 344064")
    A("  s_mul_i32 s24, s20, 24576")
    A(f"  s_mov_b32 s14, {XBYTES}")
    stage_offsets(A, 0)
    srd_consts(A, opt)
    srd_bases(A)
    if opt.fastp:
        A(f"  s_sub_u32 s26, s2, {opt.p0}")
        A(f"  s_cmp_lt_u32 s26, {opt.pn - opt.p0}")
        A("  s_cselect_b64 vcc, -1, 0")
    if opt.bh:
        A("  s_cmp_ge_u32 s2, 72")
        A("  s_cbranch_scc1 L_nobh")
        A("  s_barrier")
        A("L_nobh:")
    n = 0
    if opt.fstamp: stamp(A, opt, 1)
    for r in range(8):
        x_row(A, r)
        for k in range(3):
            w = opt.xwin if n < opt.xsw else opt.xwin2
            if n >= w:
                if opt.fastp > w: A(f"  s_cbranch_vccnz L_xs{n}")
                A(f"  s_waitcnt vmcnt({w-1})")
                if opt.fastp > w:
                    A(f"L_xs{n}:")
                    if n >= opt.fastp: A(f"  s_waitcnt vmcnt({opt.fastp-1})")
            if n == opt.bxn:
                if opt.split:
                    A("  s_sub_u32 s26, s2, 36")
                    A("  s_cmp_lt_u32 s26, 36")
                    A("  s_cbranch_scc1 L_nobx")
                A("  s_barrier")
                A("L_nobx:")
            x_load(A, opt, r, k)
            n += 1
        if r == 1:
            win_addrs(A)
            out_addrs(A)
    if not opt.fstamp: stamp(A, opt, 1)
    if opt.bxn >= 24:
        A(f"  s_waitcnt vmcnt({opt.pollat})")
        A("  s_barrier")
    A("  s_waitcnt vmcnt(12)")
    x_frags(A, 0)
    A("  s_mov_b32 vcc_lo, 0x55555555\\n  s_mov_b32 vcc_hi, 0x55555555".replace("\\n", "\n"))
    if opt.pads:
        A("  s_mov_b64 exec, 0")
        A("  s_branch L_pad1")
    else:
        A("  s_branch L_padret")
    ROLE[0] = "h"
    A(".p2align 6")
    A("L_pref:")
    srd_consts(A, opt)
    helper_misc(A, opt)
    srd_bases(A)
    if opt.pref:
        A("  s_getpc_b64 s[48:49]")
        A("L_pc:")
        A(f"  s_sub_u32 s48, s48, L_pc-{KN}")
        A("  s_subb_u32 s49, s49, 0")
        A("  s_lshr_b32 s26, s2, 3")
        A(f"  s_and_b32 s26, s26, {opt.prefn - 1}")
        A("  s_lshl_b32 s26, s26, 13")
        A("  s_add_u32 s26, s26, 1024")
        A("  v_lshl_add_u32 v9, v8, 7, s26")
        A(f"  v_min_u32 v9, L_last-{KN}, v9")
        A("  global_load_dword v29, v9, s[48:49]")
    A("  s_add_u32 s21, s2, 1312")
    A("  s_and_b32 s22, s21, 1")
    A("  s_lshr_b32 s21, s21, 1")
    win_base(A)
    A("  s_mul_i32 s22, s22, 344064")
    A(f"  s_add_u32 s{SO[2]}, s{SO[0]}, 344064")
    A(f"  s_sub_u32 s{SO[2]}, s{SO[2]}, s22")
    A(f"  s_add_u32 s{SO[0]}, s{SO[0]}, s22")
    A("  s_mov_b32 s24, 49152")
    stage_offsets(A, 0)
    A("  s_cmp_lt_u32 s2, 224")
    A("  s_cbranch_scc1 L_loader")
    n = 0
    for r in range(4, 8):
        A(f"  s_mov_b32 m0, {73728 + 3072*(r-4)}")
        A(f"  s_add_u32 s25, s{SO[2]}, {86016*(r%4)}")
        for k in range(3):
            if n >= opt.cwin: A(f"  s_waitcnt vmcnt({opt.cwin-1})")
            x_load(A, opt, r, k); n += 1
    win_addrs(A)
    out_addrs(A)
    A("  s_branch L_loader")
    ROLE[0] = "m"
    A(".p2align 12")
    pl = []
    P = pl.append
    P("L_padret:")
    if opt.pads: P("  s_mov_b64 exec, -1")
    P("  s_waitcnt lgkmcnt(0)")
    stamp(P, opt, 2)
    P("  s_barrier")
    stamp(P, opt, 3)
    emit_body(A, opt, 2, Emitter(), [], {3: 4, 4: 5}, pl)
    A(".p2align 6")
    ROLE[0] = "h"
    A("L_loader:")
    A("  s_barrier")
    if opt.split:
        A("L_nonce:")
        A("  buffer_load_dwordx2 v[14:15], off, s[36:39], 0 sc1")
        bound(A, "L_nonce")
        A("  s_waitcnt vmcnt(0)")
        A("  v_cmp_eq_u32 vcc, 0, v14")
        A("  s_cbranch_vccnz L_nonce")
        A("L_nonce_x:")
        A("  buffer_load_dwordx2 v[12:13], v2, s[16:19], s93 offen sc1")
    else:
        check_issue(A)
    if opt.escout:
        A("  buffer_load_dword v29, v28, s[16:19], s3 offen sc1")
        A("  s_waitcnt vmcnt(1)")
        A("  s_branch L_eval")
    spin_first(A, opt)
    if not opt.fstamp: stamp(A, opt, 3)
    hdma(0, 0)
    A("  s_cmp_eq_u64 vcc, 0")
    A("  s_cbranch_scc1 L_pollB_x")
    spin_flags(A, "L_pollB", "s93", opt.sleep)
    e = 0
    if opt.scout and not opt.escout:
        A("  buffer_load_dword v29, v28, s[16:19], s3 offen sc1"); e = 1
    hdma(0, 1)
    A(f"  s_waitcnt vmcnt({12+e}) lgkmcnt(0)")
    if not opt.fstamp: stamp(A, opt, 4)
    A("  s_barrier")
    A("  buffer_load_dwordx2 v[12:13], v2, s[16:19], s94 offen sc1")
    hdma(0, 2)
    A("  s_waitcnt vmcnt(13)")
    A("  s_barrier")
    hdma(0, 3, 2)
    A("  s_waitcnt vmcnt(24)")
    A("  s_barrier")
    hdma(0, 5)
    A("  v_cmp_ne_u64 vcc, v[12:13], v[14:15]")
    A("  s_waitcnt vmcnt(24)")
    A("  s_barrier")
    A("  s_cmp_lt_u32 s2, 224")
    A("  s_cbranch_scc1 L_nox")
    A("  s_waitcnt vmcnt(0)")
    for r in range(4):
        x_row(A, r)
        for k in range(3): x_load(A, opt, r, k)
    A("L_nox:")
    A("  s_cbranch_vccnz L_nlate")
    A("  buffer_load_dword v29, v28, s[16:19], 0 offen sc1")
    hdma(1, 0)
    A("  s_cmp_ge_u32 s2, 224")
    A("  s_cbranch_scc1 L_b5")
    hdma(1, 4)
    A("  s_waitcnt vmcnt(25)")
    A("L_b5:")
    A("  s_barrier")
    A("L_nback:")
    A("  s_cmp_lg_u32 s2, 0")
    A("  s_cbranch_scc1 L_noep")
    A("  s_mov_b64 exec, 1")
    A("  buffer_store_dwordx2 v[6:7], off, s[16:19], s95 sc1")
    A("  s_mov_b64 exec, -1")
    A("L_noep:")
    hdma(1, 1, 3)
    A("  s_cmp_ge_u32 s2, 224")
    A("  s_cbranch_scc1 L_late")
    A("  s_waitcnt vmcnt(48)")
    hdma(1, 5)
    if not opt.fstamp: stamp(A, opt, 5)
    A("  s_waitcnt vmcnt(0)")
    A("  s_barrier")
    stamp_out(A, opt)
    A("L_end:")
    A("  s_endpgm")
    A("L_nlate:")
    A("  s_waitcnt vmcnt(0)")
    A("  s_barrier")
    spin_flags(A, "L_pollN", "s94", opt.sleep)
    A("  buffer_load_dword v29, v28, s[16:19], 0 offen sc1")
    hdma(1, 0)
    A("  s_cmp_ge_u32 s2, 224")
    A("  s_cbranch_scc1 L_nback")
    hdma(1, 4)
    A("  s_branch L_nback")
    A("L_late:")
    x_frags(A, 1, 24576)
    A("  s_waitcnt vmcnt(36) lgkmcnt(0)")
    x_frags(A, 0)
    hdma(1, 5)
    A("  s_waitcnt lgkmcnt(0)")
    for n, t in enumerate(opt.join_reads):
        if n == 12: A("  s_waitcnt lgkmcnt(0)")
        A("  " + t)
    hdma(1, 4)
    if not opt.fstamp: stamp(A, opt, 5)
    A("  s_mov_b32 vcc_lo, 0x55555555\n  s_mov_b32 vcc_hi, 0x55555555")
    A("  s_waitcnt lgkmcnt(0)")
    A("  s_branch L_join")
    A("L_last:")
    A("  s_endpgm")
    return "\n".join(o)

def main():
    ap = argparse.ArgumentParser()
    ap.add_argument("--ring", type=int, default=12)
    ap.add_argument("--dslead", type=float, default=12.0)
    ap.add_argument("--split", type=int, default=0)
    ap.add_argument("--pairc", type=int, default=6)
    ap.add_argument("--mixed", type=int, default=1)
    ap.add_argument("--escout", type=int, default=1)
    ap.add_argument("--blead", type=int, default=14)
    ap.add_argument("--b4c", type=int, default=4)
    ap.add_argument("--olate", type=int, default=2)
    ap.add_argument("--stlead", type=float, default=80.0)
    ap.add_argument("--vstcost", type=int, default=8)
    ap.add_argument("--stcool", type=int, default=6)
    ap.add_argument("--sins", type=int, default=6)
    ap.add_argument("--b4blk", type=int, default=9)
    ap.add_argument("--b1at", type=int, default=5)
    ap.add_argument("--b2at", type=int, default=17)
    ap.add_argument("--b3at", type=int, default=29)
    ap.add_argument("--fastp", type=int, default=10)
    ap.add_argument("--pollat", type=int, default=4)
    ap.add_argument("--fsh", type=int, default=5)
    ap.add_argument("--wf", default="")
    ap.add_argument("--bh", type=int, default=1)
    ap.add_argument("--pads", type=int, default=1)
    ap.add_argument("--maxbytes", type=int, default=16)
    ap.add_argument("--age", type=int, default=10)
    ap.add_argument("--padwin", type=int, default=8)
    ap.add_argument("--ndefer", type=int, default=3)
    ap.add_argument("--xwat", type=int, default=60)
    ap.add_argument("--b5at", type=int, default=42)
    ap.add_argument("--xsw", type=int, default=24)
    ap.add_argument("--xwin2", type=int, default=8)
    ap.add_argument("--cwin", type=int, default=4)
    ap.add_argument("--o41", type=int, default=68)
    ap.add_argument("--dswcost", type=int, default=8)
    ap.add_argument("--bxn", type=int, default=24)
    ap.add_argument("--slowp", type=int, default=0)
    ap.add_argument("--slown", type=int, default=10)
    ap.add_argument("--pn", type=int, default=72)
    ap.add_argument("--p0", type=int, default=36)
    ap.add_argument("--fstamp", type=int, default=0)
    ap.add_argument("--swapmn", type=int, default=0)
    ap.add_argument("--scout", type=int, default=1)
    ap.add_argument("--prefn", type=int, default=4)
    ap.add_argument("--presleep", type=int, default=0)
    ap.add_argument("--pausen", type=int, default=0)
    ap.add_argument("--budget", type=int, default=8)
    ap.add_argument("--maxfill", type=int, default=5)
    ap.add_argument("--lgextra", type=int, default=1)
    ap.add_argument("--xwin", type=int, default=7)
    ap.add_argument("--xearly", type=int, default=24)
    ap.add_argument("--sleep", type=int, default=2)
    ap.add_argument("--pref", type=int, default=1)
    ap.add_argument("--stflags", default="sc1")
    ap.add_argument("--xf", default="")
    ap.add_argument("--log", action="store_true")
    ap.add_argument("--nostore", action="store_true")
    ap.add_argument("--stamps", action="store_true")
    ap.add_argument("--probe", default=None)
    ap.add_argument("--pwg", default="0,256")
    opt = ap.parse_args()
    if opt.probe:
        opt.probe = (opt.probe[0], int(opt.probe[1:])); opt.stamps = True
        opt.pwg = [int(x) for x in opt.pwg.split(",")]
    if opt.stflags: opt.stflags = " " + opt.stflags.replace(",", " ")
    if opt.wf: opt.wf = " " + opt.wf.replace(",", " ")
    if opt.stamps and not opt.probe: opt.prefn = 4
    if opt.xf: opt.xf = " " + opt.xf.replace(",", " ")
    print(HDR.rstrip())
    print(f"; @launch grid=(256,1,1) block=(256,1,1) lds=163840")
    print('.amdgcn_target "amdgcn-amd-amdhsa--gfx950"\n.text')
    print(main_kernel(opt))
    print('.section .rodata,"a"')
    print(f""".p2align 6
.amdhsa_kernel {KN}
  .amdhsa_next_free_vgpr {256 + 96 + 4 * opt.ring}
  .amdhsa_next_free_sgpr 96
  .amdhsa_accum_offset 256
  .amdhsa_group_segment_fixed_size 0
  .amdhsa_kernarg_size 48
  .amdhsa_user_sgpr_count 2
  .amdhsa_user_sgpr_kernarg_segment_ptr 1
  .amdhsa_system_sgpr_workgroup_id_x 1
.end_amdhsa_kernel""")

main()
```

```python
import re

def R(kind, lo, n=1):
    return [f"{kind}{i}" for i in range(lo, lo + n)]

def rng(kind, lo, n):
    return f"{kind}[{lo}:{lo+n-1}]" if n > 1 else f"{kind}{lo}"

VALU = ("valu", "trans", "perm")
COST = {"mfma": 8, "valu": 4, "trans": 8, "perm": 4, "dsr": 4, "dsw": 4, "vld": 4, "vst": 4, "dma": 4,
        "salu": 4, "bar": 4, "nop": 4, "wait": 4}

def cost(i):
    if "permlane" in i.text: return 8
    if i.kind == "bar": return 8
    return COST[i.kind]

def size(i):
    t = i.text
    if i.kind in ("dsr", "dsw", "vld", "vst", "dma", "mfma"): return 8
    if i.kind in ("salu", "bar", "wait", "nop"): return 4 * len(t.split("\n"))
    op = t.split()[0]
    if op in ("v_cvt_pk_bf16_f32", "v_max3_f32") or "dpp" in op: return 8
    return 4

class Ins:
    def __init__(self, text, kind, reads=(), writes=(), srcc=(), after=None, lead=0.0, tag=""):
        self.text = text; self.kind = kind
        self.reads = list(reads); self.writes = list(writes); self.srcc = list(srcc)
        self.after = after
        self.lead = lead
        self.tag = tag
        self.preds = {}
        self.succs = []
        self.pos = None
        self.states = 1
        self.mindist = 0
    def __repr__(self):
        return self.text

def hazard(p, c, typ, reg):
    isv = reg[0] in "va" and reg[1:].isdigit()
    if not isv:
        if reg[0] == "s" and reg[1:].isdigit() or reg in ("vcc", "m0"):
            if typ == "RAW":
                if p.kind in VALU and c.kind in ("vld", "vst", "dma"): return 5
                if p.kind in VALU and c.kind in VALU: return 2
                if reg == "m0" and c.kind == "dma": return 1
        return 0
    if typ == "RAW":
        if p.kind in VALU and c.kind == "mfma": return 2
        if p.kind == "mfma":
            big = len(p.writes) == 16
            if c.kind == "mfma" and reg in c.srcc:
                return 0 if c.srcc == p.writes else (10 if big else 6)
            return 12 if big else 8
        d = 0
        if p.kind == "trans" and c.kind != "trans": d = 1
        if p.kind in VALU and c.kind == "perm": d = 2
        return d
    if typ == "WAW":
        if p.kind == "mfma" and c.kind != "mfma": return 12 if len(p.writes) == 16 else 8
        return 0
    if typ == "WAR":
        if p.kind == "mfma" and reg in p.srcc and c.kind in VALU: return 7 if len(p.writes) == 16 else 3
        if p.kind in ("vst", "dsw"):
            return 2
        return 0
    return 0

def build_dag(base):
    lastw = {}; readers = {}
    for i in base:
        def edge(p, typ, r):
            if p is i: return
            d = hazard(p, i, typ, r)
            if typ == "RAW" and p.kind == "dsr": d = max(d, i.mindist)
            if p not in i.preds:
                i.preds[p] = d; p.succs.append(i)
            else:
                i.preds[p] = max(i.preds[p], d)
        for r in i.reads:
            if r in lastw: edge(lastw[r], "RAW", r)
        for r in i.writes:
            if r in lastw: edge(lastw[r], "WAW", r)
            for p in readers.get(r, []): edge(p, "WAR", r)
        if i.after is not None:
            if i.after not in i.preds:
                i.preds[i.after] = 0; i.after.succs.append(i)
        for r in i.reads:
            readers.setdefault(r, []).append(i)
        for r in i.writes:
            lastw[r] = i; readers[r] = []

class Emitter:
    def __init__(self):
        self.out = []
        self.state = 0
        self.vm = []
        self.lg = []
        self.nm = 0
        self.age = 0
    def need(self, ins):
        regs = set(ins.reads) | set(ins.writes)
        vn = ln = None
        for k, op in enumerate(self.vm):
            if op.kind in ("vld", "dma") and regs & set(op.writes): vn = len(self.vm) - 1 - k
        for k, op in enumerate(self.lg):
            if op.kind == "dsw": continue
            if regs & set(op.writes): ln = len(self.lg) - 1 - k
        return vn, ln
    def raw(self, ins):
        ins.pos = self.state
        self.state += ins.states
        self.out.append(ins)
    def emit(self, ins, lg_extra=0):
        vn, ln = self.need(ins)
        cost = 0
        if vn is not None or ln is not None:
            parts = []
            if vn is not None:
                assert vn <= 63
                parts.append(f"vmcnt({vn})"); self.vm = self.vm[len(self.vm) - vn:] if vn else []
            if ln is not None:
                if self.age:
                    young = sum(1 for op in self.lg if self.nm - op.born < self.age)
                    ln = min(ln, young)
                else:
                    ln = max(0, ln - lg_extra)
                ln = min(ln, 15)
                parts.append(f"lgkmcnt({ln})"); self.lg = self.lg[len(self.lg) - ln:] if ln else []
            self.raw(Ins("s_waitcnt " + " ".join(parts), "wait")); cost += COST["wait"]
        self.raw(ins); cost += COST[ins.kind]
        if ins.kind in ("vld", "vst", "dma"):
            self.vm.append(ins)
            assert len(self.vm) <= 63, "vmcnt overflow"
        if ins.kind in ("dsr", "dsw"):
            ins.born = self.nm
            self.lg.append(ins)
        if ins.kind == "mfma": self.nm += 1
        return cost
    def prewait(self, ins):
        vn, ln = self.need(ins)
        if vn is None and ln is None: return False
        probe = Ins("", "nop", ins.reads, ins.writes)
        self.emit(probe, 0)
        self.out.pop(); self.state -= 1
        return True
    def retire(self):
        young = sum(1 for op in self.lg if self.nm - op.born < self.age)
        if young >= len(self.lg): return False
        self.lg = self.lg[len(self.lg) - young:] if young else []
        self.raw(Ins(f"s_waitcnt lgkmcnt({young})", "wait"))
        return True
    def nop(self, n):
        n = int(n)
        while n > 0:
            k = min(n, 16)
            i = Ins(f"s_nop {k-1}", "nop"); i.states = k
            self.raw(i); n -= k

def schedule(base, em, budget=24, maxfill=5, lg_extra=0, maxlg=15, log=None, prefill=0, cooldown={}, padwin=0, maxbytes=40, latscale=1.0):
    build_dag(base)
    mf = [i for i in base if i.kind == "mfma" and i.pos is None]
    for k, m in enumerate(mf): m.dl = float(k)
    END = len(mf) + 50.0
    for i in reversed(base):
        if i.kind == "mfma": continue
        dl = END
        for s in i.succs:
            lat = (0.2 + s.preds[i] * 0.25) * latscale
            dl = min(dl, s.dl - lat)
        i.dl = dl - i.lead
    fill = [i for i in base if i.kind != "mfma" and i.pos is None]
    order = {id(i): k for k, i in enumerate(base)}
    def wait_states(i):
        miss = 0
        for p, d in i.preds.items():
            if p.pos is None: return None
            have = em.state - (p.pos + p.states)
            miss = max(miss, d - have)
        return miss
    cur = [0]; lastk = {}
    def cands(only=None):
        res = []
        for i in fill:
            if only is not None and id(i) not in only: continue
            w = wait_states(i)
            if w is None or w > 0: continue
            if i.kind in ("dsr", "dsw") and len(em.lg) >= maxlg: continue
            if only is None and i.kind in cooldown and cur[0] - lastk.get(i.kind, -99) < cooldown[i.kind]: continue
            res.append(((i.dl, order[id(i)]), i))
        res.sort(key=lambda x: x[0])
        return [i for _, i in res]
    def pick(only=None):
        c = cands(only)
        return c[0] if c else None
    def missing(m):
        seen = set(); st = [m]
        while st:
            x = st.pop()
            for p in x.preds:
                if p.pos is None and id(p) not in seen:
                    seen.add(id(p)); st.append(p)
        return seen
    stalls = 0
    for k, m in enumerate(mf):
        cur[0] = k
        while True:
            w = wait_states(m)
            if w is not None and w <= 0: break
            f = pick(missing(m)) if w is None else None
            if f is None:
                c = [i for i in cands() if i.kind not in ("dma", "bar")]
                f = c[0] if c else None
            if f is not None:
                em.emit(f, lg_extra); fill.remove(f); stalls += COST[f.kind]
                if log is not None: log.append((k, "forced", f.text))
            else:
                if w is None:
                    em.nop(1); stalls += 4
                else:
                    em.nop(w); stalls += 4 * w
                if log is not None: log.append((k, "nop", ""))
        if k == 0 and prefill:
            for _ in range(prefill):
                c = [i for i in cands() if i.kind == "dsr"]
                if not c: break
                em.emit(c[0], lg_extra); fill.remove(c[0])
        em.emit(m, 0)
        used = 0; nbytes = 0; free = True
        def charge(cost, size, scalar):
            nonlocal used, nbytes, free
            if scalar and free and used == 0:
                free = False; return
            free = False
            used += cost; nbytes += size
        def fits(cost, size, scalar):
            if scalar and free and used == 0: return True
            return used + cost <= budget and nbytes + size <= maxbytes
        if k + 1 < len(mf) and k >= 2:
            w = em.prewait(mf[k + 1])
            if w: charge(4, 4, True)
            elif len(em.lg) >= maxlg - 1 and em.age and any(i.kind == "dsr" and wait_states(i) == 0 for i in fill):
                if em.retire(): charge(4, 4, True)
        tu, tb = used, nbytes; first = []
        for cnd in cands():
            c_, s_ = cost(cnd), size(cnd)
            if cnd.kind == "salu" and free and not any(x.kind in ("salu", "bar") for x in first):
                first.append(cnd); continue
            if tu + c_ > budget or tb + s_ > maxbytes: continue
            if cnd.kind in cooldown and any(x.kind == cnd.kind for x in first): continue
            if cnd.kind == "dsr" and len(em.lg) + sum(1 for x in first if x.kind == "dsr") >= maxlg: continue
            tu += c_; tb += s_
            if cnd.kind not in VALU: first.append(cnd)
        first.sort(key=lambda x: 0 if x.kind in ("salu", "bar") else 1)
        for f in first:
            n0 = len(em.out)
            em.emit(f, 0); fill.remove(f); lastk[f.kind] = k
            for e in em.out[n0:]:
                charge(cost(e), size(e), e.kind in ("salu", "wait"))
        if any(x.kind == "bar" for x in first):
            for cnd in cands():
                if cnd.kind == "dsr" and fits(4, 8, False) and len(em.lg) < maxlg:
                    em.emit(cnd, 0); fill.remove(cnd); charge(4, 8, False)
        while True:
            f = None
            for cnd in cands():
                if cnd.kind in VALU or cnd.kind == "salu":
                    if fits(cost(cnd), size(cnd), cnd.kind == "salu"):
                        f = cnd; break
            if f is None:
                room = (budget - used) // 4 + (1 if free and used == 0 else 0)
                blocked = [w for w in (wait_states(i) for i in fill if i.dl < k + padwin) if w is not None and w > 0]
                if padwin and room >= 1 and blocked and nbytes + 4 <= maxbytes:
                    d = min(min(blocked), room)
                    em.nop(d)
                    used += 4 * (d - (1 if free and used == 0 else 0)); nbytes += 4; free = False
                    if used == 0: used = 0.01
                    continue
                break
            em.emit(f, 0); fill.remove(f)
            charge(cost(f), size(f), f.kind == "salu")
    cur[0] = 10**6
    cooldown = {}
    while fill:
        f = pick()
        if f is None:
            em.nop(1); continue
        em.emit(f, lg_extra); fill.remove(f)
    return stalls

def verify(base, out):
    def trace(seq):
        lastw = {}; res = {}
        for i in seq:
            res[id(i)] = tuple(id(lastw.get(r)) for r in i.reads)
            for r in i.writes: lastw[r] = i
        return res, {r: id(w) for r, w in lastw.items()}
    a, fa = trace(base); b, fb = trace([i for i in out if i.kind not in ("wait", "nop")])
    for i in base:
        assert a[id(i)] == b[id(i)], f"dataflow changed at {i.text}"
    assert fa == fb
    lastw = {}; readers = {}
    for i in out:
        def chk(p, typ, r):
            d = hazard(p, i, typ, r)
            have = i.pos - (p.pos + p.states)
            assert have >= d, f"hazard {typ} {r}: {p.text} -> {i.text}: have {have} need {d}"
        for r in i.reads:
            if r in lastw: chk(lastw[r], "RAW", r)
        for r in i.writes:
            if r in lastw: chk(lastw[r], "WAW", r)
            for p in readers.get(r, []):
                if p is not i: chk(p, "WAR", r)
        for r in i.reads: readers.setdefault(r, []).append(i)
        for r in i.writes:
            lastw[r] = i; readers[r] = []
```

```python
import sys, struct, argparse, re
import sched
from sched import *

KN = "standalone__swin_window_attn__vision_kernel"
XBYTES = 19267584
SCALE = (192 ** -0.5) * 1.4426950408889634
def f32bits(x): return struct.unpack("<I", struct.pack("<f", x))[0]
HDR = open("standalone__swin_window_attn__vision.s.ref").read().split("; Override launch")[0]
WS_STAMP = 0x1000000
WS_FLAG = 0x40000
WS_EPOCH = 0x50000

def woff(mat, t):
    return 90112 + t * 12288 if mat == 0 else t * 12288

X = lambda tt, s: (tt * 6 + s) * 4
WR0 = 96
TA = lambda i: 16 + 4 * (i % 8)
TB = lambda q, s: 48 + (q * 6 + s) * 4
ST = lambda kt, qt: 96 + (qt * 4 + kt) * 4
PB = lambda qt, k: 160 + (qt * 2 + k) * 4
YB = lambda i, b, k: 192 + ((i % 3) * 4 + b * 2 + k) * 4
YB2 = lambda i, b, k: 48 + ((i % 3) * 4 + b * 2 + k) * 4
OB = lambda i: 240 + 4 * (i % 4)
VO = 1
VO2 = 0
VL = [3, 4, 5]
XO = 240
FA = 252
SO = [44, 45, 46, 47]
OSRD = ["s[12:15]", "s[72:75]"]

def mfma(d, ak, a, bk, b, first, tag=""):
    c = "0" if first else rng("v", d, 4)
    rd = R(ak, a, 4) + R(bk, b, 4) + ([] if first else R("v", d, 4))
    return Ins(f"v_mfma_f32_16x16x32_bf16 {rng('v', d, 4)}, {rng(ak, a, 4)}, {rng(bk, b, 4)}, {c}",
               "mfma", rd, R("v", d, 4), srcc=([] if first else R("v", d, 4)), tag=tag)

def valu(op, d, *src, kind="valu", lead=0.0):
    rd = [s for s in src if isinstance(s, str) and s[0] in "vs" and s[1:].isdigit()]
    return Ins(f"{op} {d}, " + ", ".join(str(s) for s in src), kind, rd, [d], lead=lead)

def cvt(d, s0, lead=0.0):
    return valu("v_cvt_pk_bf16_f32", f"v{d}", f"v{s0}", f"v{s0+1}", lead=lead)

def yb(c, b, k):
    return YB(c // 2, b, k) if c % 2 == 0 else YB2(c // 2, b, k)

class Body:
    def __init__(self, opt):
        self.opt = opt
        self.base = []
        self.nfrag = 0
        self.nob = 0
        self.nacc = 0
        self.npair = 0
        self.nd = []
        self.mf = []
    def add(self, i):
        self.base.append(i); return i
    def acc(self):
        self.nacc += 1
        return TA(self.nacc)
    def wtile(self, mat, r):
        res = []
        for s in range(6):
            slot = self.nfrag % self.opt.ring; self.nfrag += 1
            reg = WR0 + 4 * slot
            off = woff(mat, 0) + r * 6144 + s * 1024
            self.add(Ins(f"ds_read_b128 {rng('a', reg, 4)}, v{VL[off >> 16]} offset:{off & 0xffff}", "dsr",
                         [f"v{VL[off >> 16]}", f"L:{mat}:{r // 2}"], R("a", reg, 4), lead=self.opt.dslead))
            res.append(reg)
        return res
    def allred(self, op, x, y):
        for sw in ("v_permlane32_swap_b32", "v_permlane16_swap_b32"):
            self.add(valu("v_mov_b32", y, x))
            self.add(Ins(f"{sw} {x}, {y}", "perm", [x, y], [x, y]))
            self.add(valu(op, x, x, y))
    def softmax(self, qt):
        vals = [ST(kt, qt) + r for kt in range(4) for r in range(4)]
        t0 = 7 + 4 * (qt % 2)
        m0, m1, l0, l1 = (f"v{t0+i}" for i in range(4))
        self.add(valu("v_max3_f32", m0, f"v{vals[0]}", f"v{vals[1]}", f"v{vals[2]}"))
        for k in range(3, 15, 2):
            self.add(valu("v_max3_f32", m0, m0, f"v{vals[k]}", f"v{vals[k+1]}"))
        self.add(valu("v_max_f32", m0, m0, f"v{vals[15]}"))
        self.allred("v_max_f32", m0, m1)
        for k, v in enumerate(vals):
            self.add(valu("v_sub_f32", f"v{v}", f"v{v}", m0))
            self.add(valu("v_exp_f32", f"v{v}", f"v{v}", kind="trans"))
            if k == 1: self.add(valu("v_add_f32", l0, f"v{vals[0]}", f"v{v}"))
            if k > 1: self.add(valu("v_add_f32", l0, l0, f"v{v}"))
        self.allred("v_add_f32", l0, l1)
        self.add(valu("v_rcp_f32", l0, l0, kind="trans"))
        for k in range(2):
            for d in range(4):
                s = ST(2 * k, qt) + 2 * d
                self.add(valu("v_mul_f32", f"v{s}", f"v{s}", l0))
                self.add(valu("v_mul_f32", f"v{s+1}", f"v{s+1}", l0))
                self.add(cvt(PB(qt, k) + d, s))
    def Tchain(self, r, w, g, q):
        acc = self.acc()
        for s in range(6):
            m = self.add(mfma(acc, "a", w[s], "a", X(2 * g + q, s), s == 0, tag=f"T{r}.{2*g+q}"))
            self.mf.append(m)
            if g == 1 and r == 0 and q == 0 and s == 0:
                self.join = m; m.after = self.nd[-1]; m.reads = m.reads + ["m0J"]
                for i in self.nd: i.writes = i.writes
        for d in range(2): self.add(cvt(TB(q, r // 2) + 2 * (r % 2) + d, acc + 2 * d))
    def Oblk(self, c, qt):
        ob = OB(self.nob); self.nob += 1
        L = self.opt.stlead; fl = self.opt.stflags
        for b in range(2):
            acc = self.acc()
            for k in range(2):
                self.add(mfma(acc, "v", yb(c, b, k), "v", PB(qt, k), k == 0, tag=f"O{c}.{qt}"))
            for d in range(2): self.add(cvt(ob + 2 * b + d, acc + 2 * d, lead=L))
        if not self.opt.nostore:
            self.add(Ins(f"buffer_store_dwordx4 {rng('v', ob, 4)}, v{VO}, {OSRD[qt // 2]}, s{SO[qt]} offen offset:{64*c}{fl}",
                         "vst", R("v", ob, 4) + [f"v{VO}"], [], lead=L))
    def Opair(self, c, g):
        par = self.npair % 2; self.npair += 1
        ob = 240 + 8 * par if not self.opt.mixed else 240 + 8 * par
        L = self.opt.stlead; fl = self.opt.stflags
        accs = []
        for q in range(2):
            for b in range(2):
                acc = self.acc(); accs.append(acc)
                for k in range(2):
                    self.add(mfma(acc, "v", yb(c, b, k), "v", PB(2 * g + q, k), k == 0, tag=f"O{c}.{2*g+q}"))
                for d in range(2): self.add(cvt(ob + 4 * q + 2 * b + d, acc + 2 * d, lead=L))
        for d in range(4):
            x, y = f"v{ob+d}", f"v{ob+4+d}"
            self.add(Ins(f"v_permlane16_swap_b32 {x}, {y}", "perm", [x, y], [x, y], lead=L))
        tmp = ST(par, 2 * g)
        def s1(dst):
            for d in range(4):
                self.add(Ins(f"v_cndmask_b32_dpp v{dst+d}, v{ob+4+d}, v{ob+d}, vcc quad_perm:[0,0,2,2] row_mask:0xf bank_mask:0xf",
                             "perm", [f"v{ob+4+d}", f"v{ob+d}", "vcc"], [f"v{dst+d}"], lead=L))
        def s2(dst):
            for d in range(4):
                self.add(Ins(f"v_cndmask_b32_dpp v{dst+d}, v{ob+d}, v{ob+4+d}, vcc quad_perm:[1,1,3,3] row_mask:0xf bank_mask:0xf",
                             "perm", [f"v{ob+4+d}", f"v{ob+d}", "vcc"], [f"v{dst+d}"], lead=L))
        def st(reg, odd):
            if self.opt.nostore: return
            self.add(Ins(f"buffer_store_dwordx4 {rng('v', reg, 4)}, v{VO2}, {OSRD[g]}, s{SO[2*g]} offen offset:{64*c + 384*odd}{fl}",
                         "vst", R("v", reg, 4) + [f"v{VO2}"], [], lead=L))
        flip = Ins("s_not_b64 vcc, vcc", "salu", ["vcc"], ["vcc"], lead=L)
        if par == 0:
            s1(tmp); st(tmp, 0); self.add(flip); s2(ob + 4); st(ob + 4, 1)
        else:
            s2(tmp); st(tmp, 1); self.add(flip); s1(ob); st(ob, 0)
    def Oany(self, c, qt):
        if c >= self.opt.pairc:
            if qt % 2 == 1: self.Opair(c, qt // 2)
        else:
            self.Oblk(c, qt)
    def bar(self, tiles, after, text="s_barrier", reads=()):
        return self.add(Ins(text, "bar", ["BAR"] + list(reads), ["BAR"] + [f"L:{m}:{t}" for m, t in tiles], after=after))

    def build(self, nq):
        opt = self.opt
        allN = [(1, tn) for tn in range(6)]
        for g in range(2):
            for c in range(6):
                if g == 0:
                    if c in (1, 2, 3): self.bar([(0, c)], self.mf[24 * c - opt.blead])
                    if c == 4:
                        self.bar([(0, 4), (0, 5)], self.mf[96 - opt.blead])
                        for r in range(8 - opt.hold, 8):
                            self.add(Ins(f"s_add_u32 m0, s24, {3072*r}", "salu", [], ["m0"], after=self.mf[opt.holdat], lead=200))
                            self.add(Ins("s_add_u32 s25, s25, 86016", "salu", ["s25"], ["s25"], after=self.mf[opt.holdat], lead=200))
                            for k in range(3):
                                self.add(Ins(f"buffer_load_dwordx4 v{XO+2*k+(r%2)}, s[8:11], s25 offen offset:{1024*k}{opt.xf} lds", "dma",
                                             ["m0", "s25", f"v{XO+2*k+(r%2)}"], [f"XD{r}{k}"], lead=200))
                if g == 1 and c == opt.b4c: self.bar(allN, self.mf[-1], "s_waitcnt vmcnt(0)\n  s_barrier")
                if c < 5:
                    for b in range(2):
                        w = self.wtile(0, 2 * c + b)
                        for q in range(2): self.Tchain(2 * c + b, w, g, q)
                else:
                    w = [self.wtile(0, 10), self.wtile(0, 11)]
                    for q in range(2):
                        for b in range(2): self.Tchain(10 + b, w[b], g, q)
            def schain(kt, q):
                for s in range(6):
                    m = self.add(mfma(ST(kt, 2 * g + q), "a", X(kt, s), "v", TB(q, s), s == 0, tag=f"S{kt}.{2*g+q}"))
                    if g == 0: self.mf.append(m)
            if g == 0:
                for q in range(2):
                    for kt in range(3): schain(kt, q)
                self.add(Ins("s_waitcnt vmcnt(0)", "salu", [], ["XW", "m0"], after=self.mf[opt.xwat], lead=100))
                for s in range(6):
                    self.add(Ins(f"ds_read_b128 {rng('a', X(3, s), 4)}, v{FA+s%2} offset:{(s//2)*128 + 3*6144}", "dsr",
                                 ["XW", f"v{FA+s%2}"], R("a", X(3, s), 4), lead=100))
                x3 = [r for s in range(6) for r in R("a", X(3, s), 4)]
                for hh in range(2):
                    self.add(Ins(f"s_add_u32 m0, s24, {18432 + 3072*hh}", "salu", x3, ["m0"], after=self.mf[opt.b5at], lead=400))
                    for k in range(3):
                        self.nd.append(self.add(Ins(f"buffer_load_dwordx4 v{VL[0]}, s[16:19], m0 offen offset:{1024*k} sc1 lds", "dma",
                                     ["m0"], [f"ND{hh}{k}"], lead=400)))
                for q in range(2):
                    schain(3, q); self.softmax(q)
            else:
                for q in range(2):
                    for kt in range(4): schain(kt, q)
                    self.softmax(2 + q)
        pos = {}
        def put(c, n, blk): pos.setdefault((c, n), []).append(blk)
        for c in range(5):
            put(c + 1, 2, (c, 0)); put(c + 1, 4, (c, 1))
        late = opt.olate
        sl = [(late + i // 4, (1, 3, 5, 7)[i % 4]) for i in range(40)]
        i = 0
        for c in range(5):
            for qt in (2, 3):
                while sl[i] < (c + 1, 2): i += 1
                put(*sl[i], (c, qt)); i += 1
        for c in range(6):
            n = 0
            for b in range(2):
                w = self.wtile(1, 2 * c + b)
                for kt in range(4):
                    for blk in pos.get((c, n), []): self.Oany(*blk)
                    acc = self.acc()
                    for s in range(6):
                        self.add(mfma(acc, "a", X(kt, s), "a", w[s], s == 0, tag=f"Y{2*c+b}.{kt}"))
                    for d in range(2): self.add(cvt(yb(c, b, kt // 2) + 2 * (kt % 2) + d, acc + 2 * d))
                    n += 1
        for key in sorted(pos):
            if key[0] >= 6:
                for blk in pos[key]: self.Oany(*blk)
        for qt in range(4): self.Oany(5, qt)

_ph = [0]
ROLE = ["h"]
def stamp(A, opt, k):
    if opt.probe is not None:
        if (ROLE[0], k) == opt.probe or (k == 0 and opt.probe[1] == 0):
            A("  s_memrealtime s[56:57]")
            A("  s_waitcnt lgkmcnt(0)")
        return
    if opt.stamps:
        A(f"  s_memrealtime s[{56+2*k}:{57+2*k}]")
        A(f"  s_memtime s[{76+2*k}:{77+2*k}]")
        A(f"  s_waitcnt lgkmcnt(0)")

def stamp_out(A, opt):
    if opt.probe is not None:
        if ROLE[0] != opt.probe[0]: return
        _ph[0] += 1; n = _ph[0]
        A(f"  s_sub_u32 s60, s2, {opt.pwg[0]}")
        A(f"  s_cmp_ge_u32 s60, {opt.pwg[1] - opt.pwg[0]}")
        A(f"  s_cbranch_scc1 L_hx{n}")
        if ROLE[0] == "m":
            A("  s_cmp_eq_u32 s20, 3")
            A(f"  s_cbranch_scc1 L_hx{n}")
        A(f"L_hold{n}:")
        A("  s_memrealtime s[58:59]")
        A("  s_waitcnt lgkmcnt(0)")
        A("  s_sub_u32 s60, s58, s56")
        A("  s_cmp_lt_u32 s60, 1500")
        A(f"  s_cbranch_scc1 L_hold{n}")
        A(f"L_hx{n}:")
        return
    if not opt.stamps: return
    for k in range(8): A(f"  v_mov_b32 v{16+k}, s{56+2*k}")
    for k in range(8): A(f"  v_mov_b32 v{24+k}, s{76+2*k}")
    A(f"  s_lshl_b32 s26, s2, 2\n  s_add_u32 s26, s26, s20\n  s_lshl_b32 s26, s26, 5\n  s_add_u32 s26, s26, {WS_STAMP}")
    A("  s_mov_b32 s18, 0x10000000")
    A("  v_mov_b32 v7, 0")
    A("  buffer_store_dwordx4 v[16:19], v7, s[16:19], s26 offen")
    A("  buffer_store_dwordx4 v[20:23], v7, s[16:19], s26 offen offset:16")
    A("  s_add_u32 s26, s26, 0x10000")
    A("  buffer_store_dwordx4 v[24:27], v7, s[16:19], s26 offen")
    A("  buffer_store_dwordx4 v[28:31], v7, s[16:19], s26 offen offset:16")

def bound(A, label):
    A("  s_add_u32 s92, s92, 1")
    A("  s_cmp_gt_u32 s92, 50000")
    A(f"  s_cbranch_scc1 {label}_x")

def check_issue(A):
    A("  buffer_load_dwordx2 v[14:15], off, s[36:39], 0 sc1")
    A("  buffer_load_dwordx2 v[12:13], v2, s[16:19], s93 offen sc1")

def spin_first(A, opt):
    A("  s_branch L_pollA_0")
    A("L_pollA:")
    A(f"  s_sleep {opt.sleep}")
    check_issue(A)
    bound(A, "L_pollA")
    A("L_pollA_0:")
    A("  s_waitcnt vmcnt(0)")
    A("L_eval:")
    A("  v_cmp_ne_u64 vcc, v[12:13], v[14:15]")
    A("  v_cmp_eq_u32 s[26:27], 0, v14")
    A("  s_nop 1")
    A("  s_or_b64 vcc, vcc, s[26:27]")
    A("  s_and_b32 s26, vcc_lo, 0x3f")
    A("  s_cbranch_scc1 L_pollA")
    A("L_pollA_x:")

def spin_flags(A, label, sreg, sleep):
    A(f"  s_branch {label}_0")
    A(f"{label}:")
    A(f"  s_sleep {sleep}")
    A(f"{label}_0:")
    A(f"  buffer_load_dwordx2 v[12:13], v2, s[16:19], {sreg} offen sc1")
    bound(A, label)
    A("  s_waitcnt vmcnt(0)")
    A("  v_cmp_ne_u64 vcc, v[12:13], v[14:15]")
    A(f"  s_cbranch_vccnz {label}")
    A(f"{label}_x:")

def stage_offsets(A, rowx, d0=16):
    for k in range(3):
        A(f"  v_add_u32 v9, {64*k}, v8")
        A("  v_mul_u32_u24 v9, 0xaab, v9")
        if rowx:
            A("  v_lshrrev_b32 v10, 16, v9")
            A(f"  v_mul_u32_u24 v10, {rowx}, v10")
        A("  v_lshrrev_b32 v9, 17, v9")
        A("  v_xor_b32 v9, v9, v8")
        if rowx:
            A("  v_xor_b32 v11, 4, v9")
            A(f"  v_lshl_add_u32 v{d0+2*k}, v9, 4, v10")
            A(f"  v_lshl_add_u32 v{d0+1+2*k}, v11, 4, v10")
        else:
            A(f"  v_lshlrev_b32 v{d0+2*k}, 4, v9")
            A(f"  v_xor_b32 v{d0+1+2*k}, 64, v{d0+2*k}")

def frag_addrs(A, jreg, base, dst=24):
    A(f"  v_mul_u32_u24 v10, 384, {jreg}")
    A(f"  v_add_u32 v10, {base}, v10")
    A(f"  v_bfe_u32 v11, {jreg}, 1, 3")
    A("  v_lshrrev_b32 v12, 5, v8")
    A("  v_xor_b32 v11, v11, v12")
    for m in range(4):
        A(f"  v_xor_b32 v13, {2*m}, v11")
        A(f"  v_lshl_add_u32 v{dst+m}, v13, 4, v10")

def fold(A, opt):
    SC = 73728
    A("  s_cmp_ge_u32 s2, 36")
    A("  s_cselect_b32 s51, 36, 0")
    A("  s_cselect_b64 vcc, -1, 0")
    A("  s_cselect_b32 s50, 768, 0")
    A("  s_cselect_b32 s21, 64, 36864")
    A("  s_cselect_b32 s24, 0, 384")
    A("  s_cselect_b32 s25, 18432, s10")
    A("  s_cselect_b32 s34, 73728, s30")
    A("  s_sub_u32 s51, s2, s51")
    A("  s_mul_i32 s48, s51, 43")
    A("  s_lshr_b32 s48, s48, 8")
    A("  s_mul_i32 s49, s48, 6")
    A("  s_sub_u32 s49, s51, s49")
    A("  s_mul_i32 s22, s49, 36864")
    A("  s_add_u32 s22, s22, s50")
    A("  s_mul_i32 s23, s48, s21")
    A("  s_add_u32 s23, s23, s24")
    stage_offsets(A, 768)
    A("  v_lshrrev_b32 v14, 2, v8")
    A("  v_mul_u32_u24 v14, 384, v14")
    A("  v_and_b32 v13, 3, v8")
    A("  v_lshl_add_u32 v14, v13, 4, v14")
    for k in range(3):
        if k: A(f"  v_add_u32 v14, 5120, v14")
        A(f"  v_cndmask_b32 v{144+2*k}, v{16+2*k}, v14, vcc")
        A(f"  v_cndmask_b32 v{145+2*k}, v{17+2*k}, v14, vcc")
    A("  s_waitcnt lgkmcnt(0)")
    A("  s_cmp_ge_u32 s2, 36")
    A("  s_mov_b64 s[28:29], s[6:7]")
    A("  s_cselect_b64 s[32:33], s[40:41], s[6:7]")
    def panel(sreg, lds, v0, srd, step):
        for r in range(4):
            A(f"  s_mov_b32 m0, {lds + 3072*r}")
            if r: A(f"  s_add_u32 {sreg}, {sreg}, {step}")
            else: A("  s_nop 0")
            for k in range(3):
                A(f"  buffer_load_dwordx4 v{v0+2*k+(r%2)}, {srd}, {sreg} offen offset:{1024*k}{opt.wf} lds")
    panel("s23", SC + 12288, 144, "s[32:35]", "s25")
    panel("s22", SC, 16, "s[28:31]", 9216)
    srd_consts(A, opt, True)
    srd_bases(A, True)
    A(f"  s_mov_b32 s95, {WS_EPOCH}")
    A("  buffer_load_dwordx2 v[6:7], off, s[16:19], s95 sc1")
    stamp(A, opt, 7)
    if opt.bh: A("  s_barrier")
    helper_misc(A, opt, True)
    A("  v_and_b32 v9, 0x13, v8")
    A("  v_and_b32 v10, 4, v8")
    A("  v_lshl_or_b32 v9, v10, 1, v9")
    A("  v_and_b32 v10, 8, v8")
    A("  v_lshrrev_b32 v10, 1, v10")
    A("  v_or_b32 v9, v9, v10")
    frag_addrs(A, "v9", SC)
    A("  v_and_b32 v9, 3, v8")
    A("  v_bfe_u32 v10, v8, 2, 2")
    A("  v_lshl_or_b32 v9, v10, 3, v9")
    A("  v_bfe_u32 v10, v8, 4, 1")
    A("  v_lshl_or_b32 v9, v10, 2, v9")
    frag_addrs(A, "v9", SC, 150)
    A("  v_bfe_u32 v9, v8, 4, 1")
    A("  v_mul_u32_u24 v9, 6144, v9")
    A("  v_and_b32 v10, 15, v8")
    A("  v_lshl_add_u32 v9, v10, 4, v9")
    A("  v_lshl_add_u32 v154, v12, 8, v9")
    A("  v_bfe_u32 v14, v8, 2, 2")
    A("  v_lshl_add_u32 v14, v12, 3, v14")
    A("  v_lshlrev_b32 v14, 6, v14")
    A("  v_bfe_u32 v13, v8, 4, 1")
    A("  v_lshl_add_u32 v14, v13, 3, v14")
    A("  v_and_b32 v13, 3, v8")
    A("  v_lshl_add_u32 v14, v13, 4, v14")
    A(f"  v_add_u32 v14, {SC + 12288}, v14")
    A("  s_mul_i32 s26, s48, 12288")
    A(f"  s_add_u32 s27, s26, {woff(0,0)}")
    A("  s_lshl_b32 s54, s49, 10")
    A("  s_cmp_ge_u32 s2, 36")
    A("  s_cselect_b32 s26, s26, s27")
    A(f"  s_cselect_b32 s27, 1.0, {f32bits(SCALE):#x}")
    A("  s_add_u32 s26, s26, s54")
    A(f"  s_lshl_b32 s54, s2, {opt.fsh}")
    A(f"  s_add_u32 s54, s54, {WS_FLAG}")
    if opt.fstamp: stamp(A, opt, 5)
    A("  s_waitcnt vmcnt(13)")
    if opt.fstamp: stamp(A, opt, 3)
    A("  s_cbranch_vccnz L_fold_tr")
    for s in range(12):
        A(f"  ds_read_b128 v[{80+4*s}:{83+4*s}], v{150+s%4} offset:{(s//4)*128 + 12288}")
    A("  s_branch L_fold_a")
    A("L_fold_tr:")
    for s in range(12):
        for jj in range(2):
            A(f"  ds_read_b64_tr_b16 v[{80+4*s+2*jj}:{81+4*s+2*jj}], v14 offset:{1024*s + 256*jj}")
        if s == 6: A("  s_waitcnt lgkmcnt(0)")
    A("L_fold_a:")
    A("  s_waitcnt vmcnt(1) lgkmcnt(0)")
    if opt.fstamp: stamp(A, opt, 4)
    for s in range(12):
        A(f"  ds_read_b128 v[{32+4*s}:{35+4*s}], v{24+s%4} offset:{(s//4)*128}")
    for s in range(12):
        c = "0" if s == 0 else "v[128:143]"
        A(f"  s_waitcnt lgkmcnt({11-s})")
        A(f"  v_mfma_f32_32x32x16_bf16 v[128:143], v[{32+4*s}:{35+4*s}], v[{80+4*s}:{83+4*s}], {c}")
    stamp(A, opt, 1)
    A("  s_waitcnt vmcnt(0)")
    A("  v_add_co_u32 v6, vcc, 2, v6")
    A("  s_nop 1")
    A("  v_addc_co_u32 v7, vcc, 0, v7, vcc")
    A("  v_or_b32 v6, 1, v6")
    A("  s_nop 5")
    for d in range(8):
        A(f"  v_mul_f32 v{128+2*d}, s27, v{128+2*d}")
        A(f"  v_mul_f32 v{129+2*d}, s27, v{129+2*d}")
        A(f"  v_cvt_pk_bf16_f32 v{32+d}, v{128+2*d}, v{129+2*d}")
        if d == 3: A(f"  buffer_store_dwordx4 v[32:35], v154, s[16:19], s26 offen sc1")
    A(f"  buffer_store_dwordx4 v[36:39], v154, s[16:19], s26 offen offset:512 sc1")
    A("  s_mov_b64 exec, 1")
    A("  s_cmp_lg_u32 s2, 0")
    A("  s_cbranch_scc1 L_fold_pub")
    A("  buffer_store_dwordx2 v[6:7], off, s[36:39], 0 sc1")
    A("  s_waitcnt vmcnt(1)")
    A("  s_branch L_fold_pub2")
    A("L_fold_pub:")
    A("  s_waitcnt vmcnt(0)")
    A("L_fold_pub2:")
    stamp(A, opt, 2)
    A("  buffer_store_dwordx2 v[6:7], off, s[16:19], s54 sc1")
    A("  s_mov_b64 exec, -1")
    stamp(A, opt, 6)
    if opt.split:
        A("  v_mov_b32 v14, v6")
        A("  v_mov_b32 v15, v7")
        A("  s_cmp_ge_u32 s2, 36")
        A("  s_cbranch_scc1 L_nonce_x")
    A("  s_branch L_loader")

def helper_misc(A, opt, prod=False):
    A("  s_mov_b32 s14, 0")
    A(f"  v_mov_b32 v{VO}, 0")
    if prod:
        for k in range(6): A(f"  v_mov_b32 v{XO+k}, 0")
    A("  v_min_u32 v2, 35, v8")
    A(f"  v_lshlrev_b32 v2, {opt.fsh}, v2")
    A("  s_lshr_b32 s26, s2, 3")
    if opt.scout == 1:
        A("  s_mul_i32 s27, s26, 57")
        A("  s_lshr_b32 s27, s27, 9")
        A("  s_mul_i32 s27, s27, 9")
        A("  s_sub_u32 s26, s26, s27")
        A("  s_lshl_b32 s26, s26, 13")
        A("  v_lshl_add_u32 v28, v8, 7, s26")
    else:
        A("  s_cmp_ge_u32 s26, 18")
        A("  s_cselect_b32 s27, 14, 0")
        A("  s_sub_u32 s26, s26, s27")
        A("  s_lshl_b32 s26, s26, 12")
        A("  v_and_b32 v28, 31, v8")
        A("  v_lshl_add_u32 v28, v28, 7, s26")
    A(f"  s_mov_b32 s3, {woff(0, 0)}")

def srd_consts(A, opt, prod=False):
    A(f"  s_mov_b32 s10, {XBYTES}\n  s_mov_b32 s11, 0x00020000")
    A(f"  s_mov_b32 s15, 0x00020000")
    A("  s_mov_b32 s18, 0x60000\n  s_mov_b32 s19, 0x00020000")
    A("  s_mov_b32 s38, 256\n  s_mov_b32 s39, 0x00020000")
    A(f"  s_mov_b32 s74, {XBYTES}\n  s_mov_b32 s75, 0x00020000")
    A(f"  s_mov_b32 s93, {WS_FLAG}")
    A(f"  s_mov_b32 s94, {WS_FLAG + (36 << opt.fsh)}")
    A("  s_mov_b32 s92, 0")

def srd_bases(A, prod=False):
    if not prod: A("  s_waitcnt lgkmcnt(0)")
    A("  s_mov_b64 s[8:9], s[4:5]\n  s_mov_b64 s[16:17], s[54:55]\n  s_mov_b64 s[36:37], s[52:53]")
    A("  s_mov_b64 s[12:13], s[42:43]\n  s_mov_b64 s[72:73], s[42:43]")

def emit_body(A, opt, nq, em, pre, stmap, pre_lines):
    b = Body(opt); b.build(nq)
    em.age = opt.age
    log = []
    sched.COST["vst"] = opt.vstcost
    sched.COST["dma"] = 8
    sched.COST["dsw"] = opt.dswcost
    stalls = schedule(pre + b.base, em, budget=opt.budget, maxfill=opt.maxfill, lg_extra=opt.lgextra, log=log,
                      prefill=7, cooldown={'vst': opt.stcool, 'dma': 2}, padwin=opt.padwin, maxbytes=opt.maxbytes, latscale=2.5)
    verify(pre + b.base, em.out)
    nm = sum(1 for i in em.out if i.kind == "mfma")
    sys.stderr.write(f"body{nq}: instrs {len(em.out)} mfma {nm} forced-cycles {stalls}\n")
    if opt.log:
        for l in log: sys.stderr.write(str(l) + "\n")
    ji = em.out.index(b.join)
    if em.out[ji - 1].kind == "wait": ji -= 1
    live = []
    for k, i in enumerate(em.out[:ji]):
        if i.kind != "dsr" or int(i.writes[0][1:]) < WR0: continue
        w = set(i.writes)
        later_w = any(j.kind == "dsr" and set(j.writes) & w for j in em.out[k + 1:ji])
        used_before = any(j.kind == "mfma" and set(j.reads) & w for j in em.out[k + 1:ji])
        if not later_w and not used_before: live.append(i.text)
    opt.join_reads = live
    assert all(k < ji for k, i in enumerate(em.out) if i.kind == "dma")
    lines = list(pre_lines)
    L = lines.append
    nb = 0
    for k, i in enumerate(em.out):
        if k == ji: L("L_join:")
        for t in i.text.split("\n"): L("  " + t.strip() + (f"   ; {i.tag}" if i.tag else ""))
        if opt.stamps and i.kind == "bar":
            if nb in stmap:
                if opt.probe is None: L("  s_waitcnt lgkmcnt(0)")
                stamp(L, opt, stmap[nb])
            nb += 1
    if opt.stamps:
        stamp(L, opt, 6)
        L("  s_waitcnt vmcnt(0)")
        stamp(L, opt, 7)
        stamp_out(L, opt)
    L("  s_endpgm")
    lines = [x for l in lines for x in l.split("\n")]
    sizes = insn_sizes([re.sub(r"L_h\w+", "L_pad1", l) for l in lines if not l.endswith(":")])
    total = sum(sizes)
    sys.stderr.write(f"body bytes {total}\n")
    npad = (total + 16) // 4096 if opt.pads else 0
    addr = 0; k = 0; placed = 0
    for l in lines:
        if l.endswith(":"):
            A(l); continue
        if placed < npad and addr >= 4096 * (placed + 1):
            placed += 1
            A(f"L_pad{placed}:")
            A(f"  s_cbranch_execz {'L_pad%d' % (placed + 1) if placed < npad else 'L_padret'}")
            addr += 4
        A(l); addr += sizes[k]; k += 1
    assert placed == npad

def insn_sizes(lines):
    import subprocess, tempfile, re, os
    src = '.amdgcn_target "amdgcn-amd-amdhsa--gfx950"\n.text\nL_pad1:\n' + "\n".join(lines) + "\n"
    open("_sz.s", "w").write(src)
    subprocess.check_call(["clang", "-x", "assembler", "-target", "amdgcn-amd-amdhsa", "-mcpu=gfx950", "-c", "_sz.s", "-o", "_sz.o"])
    out = subprocess.check_output(["llvm-objdump", "-d", "--mcpu=gfx950", "_sz.o"]).decode()
    res = []
    for l in out.splitlines():
        m = re.search(r"// [0-9A-F]{12}: ((?:[0-9A-F]{8} ?)+)", l)
        if m: res.append(4 * len(m.group(1).split()))
    assert len(res) == len(lines), (len(res), len(lines))
    return res

def win_base(A):
    A("  s_mul_hi_u32 s23, s21, 153391690")
    A("  s_mul_i32 s24, s23, 28")
    A("  s_sub_u32 s24, s21, s24")
    A("  s_mul_i32 s23, s23, 688128")
    A("  s_mul_i32 s24, s24, 3072")
    A(f"  s_add_u32 s{SO[0]}, s23, s24")

def x_row(A, r):
    A(f"  s_add_u32 m0, s24, {3072*r}")
    if r % 4: A("  s_add_u32 s25, s25, 86016")
    else: A(f"  s_mov_b32 s25, s{SO[r // 2]}")

def x_load(A, opt, r, k):
    A(f"  buffer_load_dwordx4 v{XO+2*k+(r%2)}, s[8:11], s25 offen offset:{1024*k}{opt.xf} lds")

def x_frags(A, g, step=12288):
    for tt in range(2):
        for s in range(6):
            A(f"  ds_read_b128 {rng('a', X(2*g + tt, s), 4)}, v{FA+s%2} offset:{(s//2)*128 + tt*6144 + g*step}")

def win_addrs(A):
    A(f"  v_add_u32 v{VL[1]}, 0x10000, v{VL[0]}")
    A(f"  v_add_u32 v{VL[2]}, 0x20000, v{VL[0]}")
    A("  v_and_b32 v9, 15, v8")
    A("  v_mul_u32_u24 v10, 384, v9")
    A("  v_add_u32 v10, s24, v10")
    A("  v_bfe_u32 v11, v8, 1, 3")
    A("  v_lshrrev_b32 v12, 4, v8")
    A("  v_xor_b32 v11, v11, v12")
    A(f"  v_lshl_add_u32 v{FA}, v11, 4, v10")
    A("  v_xor_b32 v11, 4, v11")
    A(f"  v_lshl_add_u32 v{FA+1}, v11, 4, v10")
    A(f"  s_add_u32 s{SO[1]}, s{SO[0]}, 172032")
    A(f"  s_add_u32 s{SO[3]}, s{SO[2]}, 172032")

def out_addrs(A):
    A("  v_bfe_u32 v9, v8, 3, 1")
    A("  v_mul_u32_u24 v9, 86016, v9")
    A("  v_and_b32 v10, 7, v8")
    A("  v_mul_u32_u24 v10, 384, v10")
    A("  v_and_b32 v11, 48, v8")
    A(f"  v_add3_u32 v{VO}, v9, v10, v11")
    A("  v_bfe_u32 v9, v8, 3, 2")
    A("  v_mul_u32_u24 v9, 86016, v9")
    A("  v_and_b32 v10, 6, v8")
    A("  v_mul_u32_u24 v10, 384, v10")
    A("  v_and_b32 v11, 1, v8")
    A("  v_lshlrev_b32 v11, 4, v11")
    A("  v_and_b32 v12, 32, v8")
    A("  v_or_b32 v11, v11, v12")
    A(f"  v_add3_u32 v{VO2}, v9, v10, v11")

def main_kernel(opt):
    o = []
    A = o.append
    A(f".globl {KN}\n.p2align 12\n.p2align 8\n.type {KN},@function\n{KN}:")
    stamp(A, opt, 0)
    A("  s_load_dwordx4 s[4:7], s[0:1], 0")
    A("  s_load_dwordx4 s[40:43], s[0:1], 16")
    A("  s_load_dwordx4 s[52:55], s[0:1], 32")
    A("  v_lshrrev_b32 v7, 6, v0")
    A("  s_cmp_ge_u32 s2, 256")
    A("  s_cbranch_scc1 L_end")
    A("  v_readfirstlane_b32 s20, v7")
    A("  v_and_b32 v8, 63, v0")
    A(f"  v_lshlrev_b32 v{VL[0]}, 4, v8")
    A("  s_cmp_lg_u32 s20, 3")
    A("  s_cbranch_scc1 L_window")
    A("  s_cmp_ge_u32 s2, 72")
    A("  s_cbranch_scc1 L_pref")
    A("  s_mov_b32 s30, 221184\n  s_mov_b32 s31, 0x00020000\n  s_mov_b32 s35, 0x00020000\n  s_mov_b32 s10, 9216")
    fold(A, opt)
    nl = [0]
    def fill(lo, nbytes):
        nl[0] += 1
        A(f"  s_mov_b32 m0, {lo}")
        A("  s_nop 0")
        A(f"L_fill{nl[0]}:")
        for k in range(3):
            A(f"  buffer_load_dwordx4 v{VL[0]}, s[16:19], m0 offen offset:{1024*k} sc1 lds")
        A("  s_add_u32 m0, m0, 3072")
        A(f"  s_cmp_lt_u32 m0, {lo + nbytes}")
        A(f"  s_cbranch_scc1 L_fill{nl[0]}")
    def hdma(mat, t, n=1):
        fill(woff(mat, t), 12288 * n)
    ROLE[0] = "m"
    A(".p2align 6")
    A("L_window:")
    A("  s_mul_i32 s21, s2, 3")
    A("  s_add_u32 s21, s21, s20")
    win_base(A)
    A(f"  s_add_u32 s{SO[2]}, s{SO[0]}, 344064")
    A("  s_mul_i32 s24, s20, 24576")
    A(f"  s_mov_b32 s14, {XBYTES}")
    stage_offsets(A, 0, XO)
    srd_consts(A, opt)
    srd_bases(A)
    if opt.fastp:
        A(f"  s_sub_u32 s26, s2, {opt.p0}")
        A(f"  s_cmp_lt_u32 s26, {opt.pn - opt.p0}")
        A("  s_cselect_b64 vcc, -1, 0")
    if opt.bh:
        A("  s_cmp_ge_u32 s2, 72")
        A("  s_cbranch_scc1 L_nobh")
        A("  s_barrier")
        A("L_nobh:")
    n = 0
    if opt.fstamp: stamp(A, opt, 1)
    for r in range(8 - opt.hold):
        x_row(A, r)
        for k in range(3):
            w = opt.xwin if n < opt.xsw else opt.xwin2
            if n >= w:
                if opt.fastp > w: A(f"  s_cbranch_vccnz L_xs{n}")
                A(f"  s_waitcnt vmcnt({w-1})")
                if opt.fastp > w:
                    A(f"L_xs{n}:")
                    if n >= opt.fastp: A(f"  s_waitcnt vmcnt({opt.fastp-1})")
            if n == opt.bxn:
                if opt.split:
                    A("  s_sub_u32 s26, s2, 36")
                    A("  s_cmp_lt_u32 s26, 36")
                    A("  s_cbranch_scc1 L_nobx")
                A("  s_barrier")
                A("L_nobx:")
            x_load(A, opt, r, k)
            n += 1
        if r == 1:
            win_addrs(A)
            out_addrs(A)
    if not opt.fstamp: stamp(A, opt, 1)
    if opt.bxn >= 24:
        A(f"  s_waitcnt vmcnt({opt.pollat})")
        A("  s_barrier")
    A(f"  s_waitcnt vmcnt({6 - 3*opt.hold})")
    x_frags(A, 0)
    A("  s_waitcnt lgkmcnt(6)")
    for s in range(6):
        A(f"  ds_read_b128 {rng('a', X(2, s), 4)}, v{FA+s%2} offset:{(s//2)*128 + 2*6144}")
    A("  s_mov_b32 vcc_lo, 0x55555555\\n  s_mov_b32 vcc_hi, 0x55555555".replace("\\n", "\n"))
    if opt.pads:
        A("  s_mov_b64 exec, 0")
        A("  s_branch L_pad1")
    else:
        A("  s_branch L_padret")
    ROLE[0] = "h"
    A(".p2align 6")
    A("L_pref:")
    srd_consts(A, opt)
    helper_misc(A, opt)
    srd_bases(A)
    if opt.pref:
        A("  s_getpc_b64 s[48:49]")
        A("L_pc:")
        A(f"  s_sub_u32 s48, s48, L_pc-{KN}")
        A("  s_subb_u32 s49, s49, 0")
        A("  s_lshr_b32 s26, s2, 3")
        A(f"  s_and_b32 s26, s26, {opt.prefn - 1}")
        A("  s_lshl_b32 s26, s26, 13")
        A("  s_add_u32 s26, s26, 1024")
        A("  v_lshl_add_u32 v9, v8, 7, s26")
        A(f"  v_min_u32 v9, L_last-{KN}, v9")
        A("  global_load_dword v29, v9, s[48:49]")
    A("  s_add_u32 s21, s2, 1312")
    A("  s_and_b32 s22, s21, 1")
    A("  s_lshr_b32 s21, s21, 1")
    win_base(A)
    A("  s_mul_i32 s22, s22, 344064")
    A(f"  s_add_u32 s{SO[2]}, s{SO[0]}, 344064")
    A(f"  s_sub_u32 s{SO[2]}, s{SO[2]}, s22")
    A(f"  s_add_u32 s{SO[0]}, s{SO[0]}, s22")
    A("  s_mov_b32 s24, 49152")
    stage_offsets(A, 0, XO)
    A("  s_cmp_lt_u32 s2, 224")
    A("  s_cbranch_scc1 L_loader")
    n = 0
    for r in range(4, 8):
        A(f"  s_mov_b32 m0, {73728 + 3072*(r-4)}")
        A(f"  s_add_u32 s25, s{SO[2]}, {86016*(r%4)}")
        for k in range(3):
            if n >= opt.cwin: A(f"  s_waitcnt vmcnt({opt.cwin-1})")
            x_load(A, opt, r, k); n += 1
    win_addrs(A)
    out_addrs(A)
    A("  s_branch L_loader")
    ROLE[0] = "m"
    A(".p2align 12")
    pl = []
    P = pl.append
    P("L_padret:")
    if opt.pads: P("  s_mov_b64 exec, -1")
    P("  s_waitcnt lgkmcnt(0)")
    stamp(P, opt, 2)
    P("  s_barrier")
    stamp(P, opt, 3)
    emit_body(A, opt, 2, Emitter(), [], {3: 4, 4: 5}, pl)
    A(".p2align 6")
    ROLE[0] = "h"
    A("L_loader:")
    A("  s_barrier")
    if opt.split:
        A("L_nonce:")
        A("  buffer_load_dwordx2 v[14:15], off, s[36:39], 0 sc1")
        bound(A, "L_nonce")
        A("  s_waitcnt vmcnt(0)")
        A("  v_cmp_eq_u32 vcc, 0, v14")
        A("  s_cbranch_vccnz L_nonce")
        A("L_nonce_x:")
        A("  buffer_load_dwordx2 v[12:13], v2, s[16:19], s93 offen sc1")
    else:
        check_issue(A)
    if opt.escout:
        A("  buffer_load_dword v29, v28, s[16:19], s3 offen sc1")
        A("  s_waitcnt vmcnt(1)")
        A("  s_branch L_eval")
    spin_first(A, opt)
    if not opt.fstamp: stamp(A, opt, 3)
    hdma(0, 0)
    A("  s_cmp_eq_u64 vcc, 0")
    A("  s_cbranch_scc1 L_pollB_x")
    spin_flags(A, "L_pollB", "s93", opt.sleep)
    e = 0
    if opt.scout and not opt.escout:
        A("  buffer_load_dword v29, v28, s[16:19], s3 offen sc1"); e = 1
    if opt.ahead:
        hdma(0, 1, 2)
        A("  s_waitcnt vmcnt(24) lgkmcnt(0)")
        if not opt.fstamp: stamp(A, opt, 4)
        A("  s_barrier")
        hdma(0, 3)
        A("  s_waitcnt vmcnt(24)")
        A("  s_barrier")
        hdma(0, 4, 2)
        A("  buffer_load_dwordx2 v[12:13], v2, s[16:19], s94 offen sc1")
        A("  buffer_load_dword v29, v28, s[16:19], 0 offen sc1")
        A("  s_waitcnt vmcnt(38)")
        A("  s_barrier")
        A("  s_waitcnt vmcnt(26)")
        A("  s_barrier")
        A("  s_waitcnt vmcnt(1)")
        A("  v_cmp_ne_u64 vcc, v[12:13], v[14:15]")
        A("  s_cbranch_vccz L_pollN_x")
        spin_flags(A, "L_pollN", "s94", opt.sleep)
    else:
        hdma(0, 1)
        A(f"  s_waitcnt vmcnt({12+e}) lgkmcnt(0)")
        if not opt.fstamp: stamp(A, opt, 4)
        A("  s_barrier")
        hdma(0, 2)
        A("  s_waitcnt vmcnt(12)")
        A("  s_barrier")
        hdma(0, 3, 2)
        A("  s_waitcnt vmcnt(24)")
        A("  s_barrier")
        hdma(0, 5)
        if opt.nearly:
            A("  buffer_load_dwordx2 v[12:13], v2, s[16:19], s94 offen sc1")
            A("  buffer_load_dword v29, v28, s[16:19], 0 offen sc1")
            A("  s_waitcnt vmcnt(26)")
            A("  s_barrier")
            A("  s_waitcnt vmcnt(1)")
            A("  v_cmp_ne_u64 vcc, v[12:13], v[14:15]")
            A("  s_cbranch_vccz L_pollN_x")
            spin_flags(A, "L_pollN", "s94", opt.sleep)
        else:
            A("  s_waitcnt vmcnt(24)")
            A("  s_barrier")
            A("  buffer_load_dword v29, v28, s[16:19], 0 offen sc1")
            spin_flags(A, "L_pollN", "s94", opt.sleep)
            A("  s_waitcnt vmcnt(0)")
    A("  s_cmp_lt_u32 s2, 224")
    A("  s_cbranch_scc1 L_nox")
    for r in range(4):
        x_row(A, r)
        for k in range(3): x_load(A, opt, r, k)
    A("L_nox:")
    A("  s_barrier")
    A("  s_cmp_lg_u32 s2, 0")
    A("  s_cbranch_scc1 L_noep")
    A("  s_mov_b64 exec, 1")
    A("  buffer_store_dwordx2 v[6:7], off, s[16:19], s95 sc1")
    A("  s_mov_b64 exec, -1")
    A("L_noep:")
    fill(0, 18432)
    fill(24576, 18432)
    A("  s_cmp_lt_u32 s2, 224")
    A("  s_cbranch_scc1 L_nofr")
    x_frags(A, 1, 24576)
    A("  s_waitcnt vmcnt(36) lgkmcnt(0)")
    x_frags(A, 0)
    A("  s_waitcnt lgkmcnt(0)")
    for n, t in enumerate(opt.join_reads):
        if n == 12: A("  s_waitcnt lgkmcnt(0)")
        A("  " + t)
    A("L_nofr:")
    fill(49152, 18432)
    A("  s_cmp_ge_u32 s2, 224")
    A("  s_cbranch_scc1 L_late")
    if not opt.fstamp: stamp(A, opt, 5)
    A("  s_waitcnt vmcnt(0)")
    A("  s_barrier")
    stamp_out(A, opt)
    A("L_end:")
    A("  s_endpgm")
    A("L_late:")
    if not opt.fstamp: stamp(A, opt, 5)
    A("  s_mov_b32 vcc_lo, 0x55555555\n  s_mov_b32 vcc_hi, 0x55555555")
    A("  s_waitcnt lgkmcnt(0)")
    A("  s_branch L_join")
    A("L_last:")
    A("  s_endpgm")
    return "\n".join(o)

def main():
    ap = argparse.ArgumentParser()
    ap.add_argument("--ring", type=int, default=12)
    ap.add_argument("--dslead", type=float, default=12.0)
    ap.add_argument("--split", type=int, default=0)
    ap.add_argument("--ahead", type=int, default=1)
    ap.add_argument("--nearly", type=int, default=1)
    ap.add_argument("--hold", type=int, default=2)
    ap.add_argument("--holdat", type=int, default=60)
    ap.add_argument("--pairc", type=int, default=6)
    ap.add_argument("--mixed", type=int, default=1)
    ap.add_argument("--escout", type=int, default=1)
    ap.add_argument("--blead", type=int, default=14)
    ap.add_argument("--b4c", type=int, default=4)
    ap.add_argument("--olate", type=int, default=2)
    ap.add_argument("--stlead", type=float, default=80.0)
    ap.add_argument("--vstcost", type=int, default=8)
    ap.add_argument("--stcool", type=int, default=6)
    ap.add_argument("--sins", type=int, default=6)
    ap.add_argument("--b4blk", type=int, default=9)
    ap.add_argument("--b1at", type=int, default=5)
    ap.add_argument("--b2at", type=int, default=17)
    ap.add_argument("--b3at", type=int, default=29)
    ap.add_argument("--fastp", type=int, default=10)
    ap.add_argument("--pollat", type=int, default=0)
    ap.add_argument("--fsh", type=int, default=5)
    ap.add_argument("--wf", default="")
    ap.add_argument("--bh", type=int, default=1)
    ap.add_argument("--pads", type=int, default=1)
    ap.add_argument("--maxbytes", type=int, default=16)
    ap.add_argument("--age", type=int, default=10)
    ap.add_argument("--padwin", type=int, default=8)
    ap.add_argument("--ndefer", type=int, default=3)
    ap.add_argument("--xwat", type=int, default=150)
    ap.add_argument("--b5at", type=int, default=164)
    ap.add_argument("--xsw", type=int, default=24)
    ap.add_argument("--xwin2", type=int, default=8)
    ap.add_argument("--cwin", type=int, default=4)
    ap.add_argument("--o41", type=int, default=68)
    ap.add_argument("--dswcost", type=int, default=8)
    ap.add_argument("--bxn", type=int, default=24)
    ap.add_argument("--slowp", type=int, default=0)
    ap.add_argument("--slown", type=int, default=10)
    ap.add_argument("--pn", type=int, default=72)
    ap.add_argument("--p0", type=int, default=36)
    ap.add_argument("--fstamp", type=int, default=0)
    ap.add_argument("--swapmn", type=int, default=0)
    ap.add_argument("--scout", type=int, default=1)
    ap.add_argument("--prefn", type=int, default=4)
    ap.add_argument("--presleep", type=int, default=0)
    ap.add_argument("--pausen", type=int, default=0)
    ap.add_argument("--budget", type=int, default=8)
    ap.add_argument("--maxfill", type=int, default=5)
    ap.add_argument("--lgextra", type=int, default=1)
    ap.add_argument("--xwin", type=int, default=7)
    ap.add_argument("--xearly", type=int, default=24)
    ap.add_argument("--sleep", type=int, default=2)
    ap.add_argument("--pref", type=int, default=1)
    ap.add_argument("--stflags", default="sc1")
    ap.add_argument("--xf", default="nt")
    ap.add_argument("--log", action="store_true")
    ap.add_argument("--nostore", action="store_true")
    ap.add_argument("--stamps", action="store_true")
    ap.add_argument("--probe", default=None)
    ap.add_argument("--pwg", default="0,256")
    opt = ap.parse_args()
    if opt.probe:
        opt.probe = (opt.probe[0], int(opt.probe[1:])); opt.stamps = True
        opt.pwg = [int(x) for x in opt.pwg.split(",")]
    if opt.stflags: opt.stflags = " " + opt.stflags.replace(",", " ")
    if opt.wf: opt.wf = " " + opt.wf.replace(",", " ")
    if opt.stamps and not opt.probe: opt.prefn = 4
    if opt.xf: opt.xf = " " + opt.xf.replace(",", " ")
    print(HDR.rstrip())
    print(f"; @launch grid=(256,1,1) block=(256,1,1) lds=163840")
    print('.amdgcn_target "amdgcn-amd-amdhsa--gfx950"\n.text')
    print(main_kernel(opt))
    print('.section .rodata,"a"')
    print(f""".p2align 6
.amdhsa_kernel {KN}
  .amdhsa_next_free_vgpr {256 + 96 + 4 * opt.ring}
  .amdhsa_next_free_sgpr 96
  .amdhsa_accum_offset 256
  .amdhsa_group_segment_fixed_size 0
  .amdhsa_kernarg_size 48
  .amdhsa_user_sgpr_count 2
  .amdhsa_user_sgpr_kernarg_segment_ptr 1
  .amdhsa_system_sgpr_workgroup_id_x 1
.end_amdhsa_kernel""")

main()
```

```python
import sys, struct, argparse, re
import sched
from sched import *

KN = "standalone__swin_window_attn__vision_kernel"
XBYTES = 19267584
SCALE = (192 ** -0.5) * 1.4426950408889634
def f32bits(x): return struct.unpack("<I", struct.pack("<f", x))[0]
HDR = open("standalone__swin_window_attn__vision.s.ref").read().split("; Override launch")[0]
WS_STAMP = 0x1000000
WS_FLAG = 0x40000
WS_EPOCH = 0x50000

def woff(mat, t):
    return 90112 + t * 12288 if mat == 0 else t * 12288

X = lambda tt, s: (tt * 6 + s) * 4
WR0 = 96
TA = lambda i: 16 + 4 * (i % 8)
TB = lambda q, s: 48 + (q * 6 + s) * 4
ST = lambda kt, qt: 96 + (qt * 4 + kt) * 4
PB = lambda qt, k: 160 + (qt * 2 + k) * 4
YB = lambda i, b, k: 192 + ((i % 3) * 4 + b * 2 + k) * 4
YB2 = lambda i, b, k: 48 + ((i % 3) * 4 + b * 2 + k) * 4
OB = lambda i: 240 + 4 * (i % 4)
VO = 1
VO2 = 0
VL = [3, 4, 5]
XO = 240
FA = 252
SO = [44, 45, 46, 47]
OSRD = ["s[12:15]", "s[72:75]"]

def mfma(d, ak, a, bk, b, first, tag=""):
    c = "0" if first else rng("v", d, 4)
    rd = R(ak, a, 4) + R(bk, b, 4) + ([] if first else R("v", d, 4))
    return Ins(f"v_mfma_f32_16x16x32_bf16 {rng('v', d, 4)}, {rng(ak, a, 4)}, {rng(bk, b, 4)}, {c}",
               "mfma", rd, R("v", d, 4), srcc=([] if first else R("v", d, 4)), tag=tag)

def valu(op, d, *src, kind="valu", lead=0.0):
    rd = [s for s in src if isinstance(s, str) and s[0] in "vs" and s[1:].isdigit()]
    return Ins(f"{op} {d}, " + ", ".join(str(s) for s in src), kind, rd, [d], lead=lead)

def cvt(d, s0, lead=0.0):
    return valu("v_cvt_pk_bf16_f32", f"v{d}", f"v{s0}", f"v{s0+1}", lead=lead)

def yb(c, b, k):
    return YB(c // 2, b, k) if c % 2 == 0 else YB2(c // 2, b, k)

class Body:
    def __init__(self, opt):
        self.opt = opt
        self.base = []
        self.nfrag = 0
        self.nob = 0
        self.nacc = 0
        self.npair = 0
        self.nd = []
        self.mf = []
    def add(self, i):
        self.base.append(i); return i
    def acc(self):
        self.nacc += 1
        return TA(self.nacc)
    def wtile(self, mat, r):
        res = []
        for s in range(6):
            slot = self.nfrag % self.opt.ring; self.nfrag += 1
            reg = WR0 + 4 * slot
            off = woff(mat, 0) + r * 6144 + s * 1024
            self.add(Ins(f"ds_read_b128 {rng('a', reg, 4)}, v{VL[off >> 16]} offset:{off & 0xffff}", "dsr",
                         [f"v{VL[off >> 16]}", f"L:{mat}:{r // 2}"], R("a", reg, 4), lead=self.opt.dslead))
            res.append(reg)
        return res
    def allred(self, op, x, y):
        for sw in ("v_permlane32_swap_b32", "v_permlane16_swap_b32"):
            self.add(valu("v_mov_b32", y, x))
            self.add(Ins(f"{sw} {x}, {y}", "perm", [x, y], [x, y]))
            self.add(valu(op, x, x, y))
    def softmax(self, qt):
        vals = [ST(kt, qt) + r for kt in range(4) for r in range(4)]
        t0 = 7 + 4 * (qt % 2)
        m0, m1, l0, l1 = (f"v{t0+i}" for i in range(4))
        self.add(valu("v_max3_f32", m0, f"v{vals[0]}", f"v{vals[1]}", f"v{vals[2]}"))
        for k in range(3, 15, 2):
            self.add(valu("v_max3_f32", m0, m0, f"v{vals[k]}", f"v{vals[k+1]}"))
        self.add(valu("v_max_f32", m0, m0, f"v{vals[15]}"))
        self.allred("v_max_f32", m0, m1)
        for k, v in enumerate(vals):
            self.add(valu("v_sub_f32", f"v{v}", f"v{v}", m0))
            self.add(valu("v_exp_f32", f"v{v}", f"v{v}", kind="trans"))
            if k == 1: self.add(valu("v_add_f32", l0, f"v{vals[0]}", f"v{v}"))
            if k > 1: self.add(valu("v_add_f32", l0, l0, f"v{v}"))
        self.allred("v_add_f32", l0, l1)
        self.add(valu("v_rcp_f32", l0, l0, kind="trans"))
        for k in range(2):
            for d in range(4):
                s = ST(2 * k, qt) + 2 * d
                self.add(valu("v_mul_f32", f"v{s}", f"v{s}", l0))
                self.add(valu("v_mul_f32", f"v{s+1}", f"v{s+1}", l0))
                self.add(cvt(PB(qt, k) + d, s))
    def Tchain(self, r, w, g, q):
        acc = self.acc()
        for s in range(6):
            m = self.add(mfma(acc, "a", w[s], "a", X(2 * g + q, s), s == 0, tag=f"T{r}.{2*g+q}"))
            self.mf.append(m)
            if g == 1 and r == 0 and q == 0 and s == 0:
                self.join = m; m.after = self.nd[-1]; m.reads = m.reads + ["m0J"]
                for i in self.nd: i.writes = i.writes
        for d in range(2): self.add(cvt(TB(q, r // 2) + 2 * (r % 2) + d, acc + 2 * d))
    def Oblk(self, c, qt):
        ob = OB(self.nob); self.nob += 1
        L = self.opt.stlead; fl = self.opt.stflags
        for b in range(2):
            acc = self.acc()
            for k in range(2):
                self.add(mfma(acc, "v", yb(c, b, k), "v", PB(qt, k), k == 0, tag=f"O{c}.{qt}"))
            for d in range(2): self.add(cvt(ob + 2 * b + d, acc + 2 * d, lead=L))
        if not self.opt.nostore:
            self.add(Ins(f"buffer_store_dwordx4 {rng('v', ob, 4)}, v{VO}, {OSRD[qt // 2]}, s{SO[qt]} offen offset:{64*c}{fl}",
                         "vst", R("v", ob, 4) + [f"v{VO}"], [], lead=L))
    def Opair(self, c, g):
        par = self.npair % 2; self.npair += 1
        ob = 240 + 8 * par if not self.opt.mixed else 240 + 8 * par
        L = self.opt.stlead; fl = self.opt.stflags
        accs = []
        for q in range(2):
            for b in range(2):
                acc = self.acc(); accs.append(acc)
                for k in range(2):
                    self.add(mfma(acc, "v", yb(c, b, k), "v", PB(2 * g + q, k), k == 0, tag=f"O{c}.{2*g+q}"))
                for d in range(2): self.add(cvt(ob + 4 * q + 2 * b + d, acc + 2 * d, lead=L))
        for d in range(4):
            x, y = f"v{ob+d}", f"v{ob+4+d}"
            self.add(Ins(f"v_permlane16_swap_b32 {x}, {y}", "perm", [x, y], [x, y], lead=L))
        tmp = ST(par, 2 * g)
        def s1(dst):
            for d in range(4):
                self.add(Ins(f"v_cndmask_b32_dpp v{dst+d}, v{ob+4+d}, v{ob+d}, vcc quad_perm:[0,0,2,2] row_mask:0xf bank_mask:0xf",
                             "perm", [f"v{ob+4+d}", f"v{ob+d}", "vcc"], [f"v{dst+d}"], lead=L))
        def s2(dst):
            for d in range(4):
                self.add(Ins(f"v_cndmask_b32_dpp v{dst+d}, v{ob+d}, v{ob+4+d}, vcc quad_perm:[1,1,3,3] row_mask:0xf bank_mask:0xf",
                             "perm", [f"v{ob+4+d}", f"v{ob+d}", "vcc"], [f"v{dst+d}"], lead=L))
        def st(reg, odd):
            if self.opt.nostore: return
            self.add(Ins(f"buffer_store_dwordx4 {rng('v', reg, 4)}, v{VO2}, {OSRD[g]}, s{SO[2*g]} offen offset:{64*c + 384*odd}{fl}",
                         "vst", R("v", reg, 4) + [f"v{VO2}"], [], lead=L))
        flip = Ins("s_not_b64 vcc, vcc", "salu", ["vcc"], ["vcc"], lead=L)
        if par == 0:
            s1(tmp); st(tmp, 0); self.add(flip); s2(ob + 4); st(ob + 4, 1)
        else:
            s2(tmp); st(tmp, 1); self.add(flip); s1(ob); st(ob, 0)
    def Oany(self, c, qt):
        if c >= self.opt.pairc:
            if qt % 2 == 1: self.Opair(c, qt // 2)
        else:
            self.Oblk(c, qt)
    def bar(self, tiles, after, text="s_barrier", reads=()):
        return self.add(Ins(text, "bar", ["BAR"] + list(reads), ["BAR"] + [f"L:{m}:{t}" for m, t in tiles], after=after))

    def build(self, nq):
        opt = self.opt
        allN = [(1, tn) for tn in range(6)]
        for g in range(2):
            for c in range(6):
                if g == 0:
                    if c in (1, 2, 3): self.bar([(0, c)], self.mf[24 * c - opt.blead])
                    if c == 4:
                        self.bar([(0, 4), (0, 5)], self.mf[96 - opt.blead])
                        for r in range(8 - opt.hold, 8):
                            self.add(Ins(f"s_add_u32 m0, s24, {3072*r}", "salu", [], ["m0"], after=self.mf[opt.holdat], lead=200))
                            self.add(Ins("s_add_u32 s25, s25, 86016", "salu", ["s25"], ["s25"], after=self.mf[opt.holdat], lead=200))
                            for k in range(3):
                                self.add(Ins(f"buffer_load_dwordx4 v{XO+2*k+(r%2)}, s[8:11], s25 offen offset:{1024*k}{opt.xf} lds", "dma",
                                             ["m0", "s25", f"v{XO+2*k+(r%2)}"], [f"XD{r}{k}"], lead=200))
                if g == 1 and c == opt.b4c: self.bar(allN, self.mf[-1], "s_waitcnt vmcnt(0)\n  s_barrier")
                if c < 5:
                    for b in range(2):
                        w = self.wtile(0, 2 * c + b)
                        for q in range(2): self.Tchain(2 * c + b, w, g, q)
                else:
                    w = [self.wtile(0, 10), self.wtile(0, 11)]
                    for q in range(2):
                        for b in range(2): self.Tchain(10 + b, w[b], g, q)
            def schain(kt, q):
                for s in range(6):
                    m = self.add(mfma(ST(kt, 2 * g + q), "a", X(kt, s), "v", TB(q, s), s == 0, tag=f"S{kt}.{2*g+q}"))
                    if g == 0: self.mf.append(m)
            if g == 0:
                for q in range(2):
                    for kt in range(3): schain(kt, q)
                self.add(Ins("s_waitcnt vmcnt(0)", "salu", [], ["XW", "m0"], after=self.mf[opt.xwat], lead=100))
                for s in range(6):
                    self.add(Ins(f"ds_read_b128 {rng('a', X(3, s), 4)}, v{FA+s%2} offset:{(s//2)*128 + 3*6144}", "dsr",
                                 ["XW", f"v{FA+s%2}"], R("a", X(3, s), 4), lead=100))
                x3 = [r for s in range(6) for r in R("a", X(3, s), 4)]
                for hh in range(2):
                    self.add(Ins(f"s_add_u32 m0, s24, {18432 + 3072*hh}", "salu", x3, ["m0"], after=self.mf[opt.b5at], lead=400))
                    for k in range(3):
                        self.nd.append(self.add(Ins(f"buffer_load_dwordx4 v{VL[0]}, s[16:19], m0 offen offset:{1024*k} sc1 lds", "dma",
                                     ["m0"], [f"ND{hh}{k}"], lead=400)))
                for q in range(2):
                    schain(3, q); self.softmax(q)
            else:
                for q in range(2):
                    for kt in range(4): schain(kt, q)
                    self.softmax(2 + q)
        pos = {}
        def put(c, n, blk): pos.setdefault((c, n), []).append(blk)
        for c in range(5):
            put(c + 1, 2, (c, 0)); put(c + 1, 4, (c, 1))
        late = opt.olate
        sl = [(late + i // 4, (1, 3, 5, 7)[i % 4]) for i in range(40)]
        i = 0
        for c in range(5):
            for qt in (2, 3):
                while sl[i] < (c + 1, 2): i += 1
                put(*sl[i], (c, qt)); i += 1
        for c in range(6):
            n = 0
            for b in range(2):
                w = self.wtile(1, 2 * c + b)
                for kt in range(4):
                    for blk in pos.get((c, n), []): self.Oany(*blk)
                    acc = self.acc()
                    for s in range(6):
                        self.add(mfma(acc, "a", X(kt, s), "a", w[s], s == 0, tag=f"Y{2*c+b}.{kt}"))
                    for d in range(2): self.add(cvt(yb(c, b, kt // 2) + 2 * (kt % 2) + d, acc + 2 * d))
                    n += 1
        for key in sorted(pos):
            if key[0] >= 6:
                for blk in pos[key]: self.Oany(*blk)
        for qt in range(4): self.Oany(5, qt)

_ph = [0]
ROLE = ["h"]
def stamp(A, opt, k):
    if opt.probe is not None:
        if (ROLE[0], k) == opt.probe or (k == 0 and opt.probe[1] == 0):
            A("  s_memrealtime s[56:57]")
            A("  s_waitcnt lgkmcnt(0)")
        return
    if opt.stamps:
        A(f"  s_memrealtime s[{56+2*k}:{57+2*k}]")
        A(f"  s_memtime s[{76+2*k}:{77+2*k}]")
        A(f"  s_waitcnt lgkmcnt(0)")

def stamp_out(A, opt):
    if opt.probe is not None:
        if ROLE[0] != opt.probe[0]: return
        _ph[0] += 1; n = _ph[0]
        A(f"  s_sub_u32 s60, s2, {opt.pwg[0]}")
        A(f"  s_cmp_ge_u32 s60, {opt.pwg[1] - opt.pwg[0]}")
        A(f"  s_cbranch_scc1 L_hx{n}")
        if ROLE[0] == "m":
            A("  s_cmp_eq_u32 s20, 3")
            A(f"  s_cbranch_scc1 L_hx{n}")
        A(f"L_hold{n}:")
        A("  s_memrealtime s[58:59]")
        A("  s_waitcnt lgkmcnt(0)")
        A("  s_sub_u32 s60, s58, s56")
        A("  s_cmp_lt_u32 s60, 1500")
        A(f"  s_cbranch_scc1 L_hold{n}")
        A(f"L_hx{n}:")
        return
    if not opt.stamps: return
    for k in range(8): A(f"  v_mov_b32 v{16+k}, s{56+2*k}")
    for k in range(8): A(f"  v_mov_b32 v{24+k}, s{76+2*k}")
    A(f"  s_lshl_b32 s26, s2, 2\n  s_add_u32 s26, s26, s20\n  s_lshl_b32 s26, s26, 5\n  s_add_u32 s26, s26, {WS_STAMP}")
    A("  s_mov_b32 s18, 0x10000000")
    A("  v_mov_b32 v7, 0")
    A("  buffer_store_dwordx4 v[16:19], v7, s[16:19], s26 offen")
    A("  buffer_store_dwordx4 v[20:23], v7, s[16:19], s26 offen offset:16")
    A("  s_add_u32 s26, s26, 0x10000")
    A("  buffer_store_dwordx4 v[24:27], v7, s[16:19], s26 offen")
    A("  buffer_store_dwordx4 v[28:31], v7, s[16:19], s26 offen offset:16")

def bound(A, label):
    A("  s_add_u32 s92, s92, 1")
    A("  s_cmp_gt_u32 s92, 50000")
    A(f"  s_cbranch_scc1 {label}_x")

def check_issue(A):
    A("  buffer_load_dwordx2 v[14:15], off, s[36:39], 0 sc1")
    A("  buffer_load_dwordx2 v[12:13], v2, s[16:19], s93 offen sc1")

def spin_first(A, opt):
    A("  s_branch L_pollA_0")
    A("L_pollA:")
    A(f"  s_sleep {opt.sleep}")
    check_issue(A)
    bound(A, "L_pollA")
    A("L_pollA_0:")
    A("  s_waitcnt vmcnt(0)")
    A("L_eval:")
    A("  v_cmp_ne_u64 vcc, v[12:13], v[14:15]")
    A("  v_cmp_eq_u32 s[26:27], 0, v14")
    A("  s_nop 1")
    A("  s_or_b64 vcc, vcc, s[26:27]")
    A("  s_and_b32 s26, vcc_lo, 0x3f")
    A("  s_cbranch_scc1 L_pollA")
    A("L_pollA_x:")

def spin_flags(A, label, sreg, sleep):
    A(f"  s_branch {label}_0")
    A(f"{label}:")
    A(f"  s_sleep {sleep}")
    A(f"{label}_0:")
    A(f"  buffer_load_dwordx2 v[12:13], v2, s[16:19], {sreg} offen sc1")
    bound(A, label)
    A("  s_waitcnt vmcnt(0)")
    A("  v_cmp_ne_u64 vcc, v[12:13], v[14:15]")
    A(f"  s_cbranch_vccnz {label}")
    A(f"{label}_x:")

def stage_offsets(A, rowx, d0=16):
    for k in range(3):
        A(f"  v_add_u32 v9, {64*k}, v8")
        A("  v_mul_u32_u24 v9, 0xaab, v9")
        if rowx:
            A("  v_lshrrev_b32 v10, 16, v9")
            A(f"  v_mul_u32_u24 v10, {rowx}, v10")
        A("  v_lshrrev_b32 v9, 17, v9")
        A("  v_xor_b32 v9, v9, v8")
        if rowx:
            A("  v_xor_b32 v11, 4, v9")
            A(f"  v_lshl_add_u32 v{d0+2*k}, v9, 4, v10")
            A(f"  v_lshl_add_u32 v{d0+1+2*k}, v11, 4, v10")
        else:
            A(f"  v_lshlrev_b32 v{d0+2*k}, 4, v9")
            A(f"  v_xor_b32 v{d0+1+2*k}, 64, v{d0+2*k}")

def frag_addrs(A, jreg, base, dst=24):
    A(f"  v_mul_u32_u24 v10, 384, {jreg}")
    A(f"  v_add_u32 v10, {base}, v10")
    A(f"  v_bfe_u32 v11, {jreg}, 1, 3")
    A("  v_lshrrev_b32 v12, 5, v8")
    A("  v_xor_b32 v11, v11, v12")
    for m in range(4):
        A(f"  v_xor_b32 v13, {2*m}, v11")
        A(f"  v_lshl_add_u32 v{dst+m}, v13, 4, v10")

def fold(A, opt):
    SC = 73728
    A("  s_cmp_ge_u32 s2, 36")
    A("  s_cselect_b32 s51, 36, 0")
    A("  s_cselect_b64 vcc, -1, 0")
    A("  s_cselect_b32 s50, 768, 0")
    A("  s_cselect_b32 s21, 64, 36864")
    A("  s_cselect_b32 s24, 0, 384")
    A("  s_cselect_b32 s25, 18432, s10")
    A("  s_cselect_b32 s34, 73728, s30")
    A("  s_sub_u32 s51, s2, s51")
    A("  s_mul_i32 s48, s51, 43")
    A("  s_lshr_b32 s48, s48, 8")
    A("  s_mul_i32 s49, s48, 6")
    A("  s_sub_u32 s49, s51, s49")
    A("  s_mul_i32 s22, s49, 36864")
    A("  s_add_u32 s22, s22, s50")
    A("  s_mul_i32 s23, s48, s21")
    A("  s_add_u32 s23, s23, s24")
    stage_offsets(A, 768)
    A("  v_lshrrev_b32 v14, 2, v8")
    A("  v_mul_u32_u24 v14, 384, v14")
    A("  v_and_b32 v13, 3, v8")
    A("  v_lshl_add_u32 v14, v13, 4, v14")
    for k in range(3):
        if k: A(f"  v_add_u32 v14, 5120, v14")
        A(f"  v_cndmask_b32 v{144+2*k}, v{16+2*k}, v14, vcc")
        A(f"  v_cndmask_b32 v{145+2*k}, v{17+2*k}, v14, vcc")
    A("  s_waitcnt lgkmcnt(0)")
    A("  s_cmp_ge_u32 s2, 36")
    A("  s_mov_b64 s[28:29], s[6:7]")
    A("  s_cselect_b64 s[32:33], s[40:41], s[6:7]")
    def panel(sreg, lds, v0, srd, step):
        for r in range(4):
            A(f"  s_mov_b32 m0, {lds + 3072*r}")
            if r: A(f"  s_add_u32 {sreg}, {sreg}, {step}")
            else: A("  s_nop 0")
            for k in range(3):
                A(f"  buffer_load_dwordx4 v{v0+2*k+(r%2)}, {srd}, {sreg} offen offset:{1024*k}{opt.wf} lds")
    panel("s23", SC + 12288, 144, "s[32:35]", "s25")
    panel("s22", SC, 16, "s[28:31]", 9216)
    srd_consts(A, opt, True)
    srd_bases(A, True)
    A(f"  s_mov_b32 s95, {WS_EPOCH}")
    A("  buffer_load_dwordx2 v[6:7], off, s[16:19], s95 sc1")
    stamp(A, opt, 7)
    if opt.bh: A("  s_barrier")
    helper_misc(A, opt, True)
    A("  v_and_b32 v9, 0x13, v8")
    A("  v_and_b32 v10, 4, v8")
    A("  v_lshl_or_b32 v9, v10, 1, v9")
    A("  v_and_b32 v10, 8, v8")
    A("  v_lshrrev_b32 v10, 1, v10")
    A("  v_or_b32 v9, v9, v10")
    frag_addrs(A, "v9", SC)
    A("  v_and_b32 v9, 3, v8")
    A("  v_bfe_u32 v10, v8, 2, 2")
    A("  v_lshl_or_b32 v9, v10, 3, v9")
    A("  v_bfe_u32 v10, v8, 4, 1")
    A("  v_lshl_or_b32 v9, v10, 2, v9")
    frag_addrs(A, "v9", SC, 150)
    A("  v_bfe_u32 v9, v8, 4, 1")
    A("  v_mul_u32_u24 v9, 6144, v9")
    A("  v_and_b32 v10, 15, v8")
    A("  v_lshl_add_u32 v9, v10, 4, v9")
    A("  v_lshl_add_u32 v154, v12, 8, v9")
    A("  v_bfe_u32 v14, v8, 2, 2")
    A("  v_lshl_add_u32 v14, v12, 3, v14")
    A("  v_lshlrev_b32 v14, 6, v14")
    A("  v_bfe_u32 v13, v8, 4, 1")
    A("  v_lshl_add_u32 v14, v13, 3, v14")
    A("  v_and_b32 v13, 3, v8")
    A("  v_lshl_add_u32 v14, v13, 4, v14")
    A(f"  v_add_u32 v14, {SC + 12288}, v14")
    A("  s_mul_i32 s26, s48, 12288")
    A(f"  s_add_u32 s27, s26, {woff(0,0)}")
    A("  s_lshl_b32 s54, s49, 10")
    A("  s_cmp_ge_u32 s2, 36")
    A("  s_cselect_b32 s26, s26, s27")
    A(f"  s_cselect_b32 s27, 1.0, {f32bits(SCALE):#x}")
    A("  s_add_u32 s26, s26, s54")
    A(f"  s_lshl_b32 s54, s2, {opt.fsh}")
    A(f"  s_add_u32 s54, s54, {WS_FLAG}")
    if opt.fstamp: stamp(A, opt, 5)
    A("  s_waitcnt vmcnt(13)")
    if opt.fstamp: stamp(A, opt, 3)
    A("  s_cbranch_vccnz L_fold_tr")
    for s in range(12):
        A(f"  ds_read_b128 v[{80+4*s}:{83+4*s}], v{150+s%4} offset:{(s//4)*128 + 12288}")
    A("  s_branch L_fold_a")
    A("L_fold_tr:")
    for s in range(12):
        for jj in range(2):
            A(f"  ds_read_b64_tr_b16 v[{80+4*s+2*jj}:{81+4*s+2*jj}], v14 offset:{1024*s + 256*jj}")
        if s == 6: A("  s_waitcnt lgkmcnt(0)")
    A("L_fold_a:")
    A("  s_waitcnt vmcnt(1) lgkmcnt(0)")
    if opt.fstamp: stamp(A, opt, 4)
    for s in range(12):
        A(f"  ds_read_b128 v[{32+4*s}:{35+4*s}], v{24+s%4} offset:{(s//4)*128}")
    for s in range(12):
        c = "0" if s == 0 else "v[128:143]"
        A(f"  s_waitcnt lgkmcnt({11-s})")
        A(f"  v_mfma_f32_32x32x16_bf16 v[128:143], v[{32+4*s}:{35+4*s}], v[{80+4*s}:{83+4*s}], {c}")
    stamp(A, opt, 1)
    A("  s_waitcnt vmcnt(0)")
    A("  v_add_co_u32 v6, vcc, 2, v6")
    A("  s_nop 1")
    A("  v_addc_co_u32 v7, vcc, 0, v7, vcc")
    A("  v_or_b32 v6, 1, v6")
    A("  s_nop 5")
    for d in range(8):
        A(f"  v_mul_f32 v{128+2*d}, s27, v{128+2*d}")
        A(f"  v_mul_f32 v{129+2*d}, s27, v{129+2*d}")
        A(f"  v_cvt_pk_bf16_f32 v{32+d}, v{128+2*d}, v{129+2*d}")
        if d == 3: A(f"  buffer_store_dwordx4 v[32:35], v154, s[16:19], s26 offen sc1")
    A(f"  buffer_store_dwordx4 v[36:39], v154, s[16:19], s26 offen offset:512 sc1")
    A("  s_mov_b64 exec, 1")
    A("  s_cmp_lg_u32 s2, 0")
    A("  s_cbranch_scc1 L_fold_pub")
    A("  buffer_store_dwordx2 v[6:7], off, s[36:39], 0 sc1")
    A("  s_waitcnt vmcnt(1)")
    A("  s_branch L_fold_pub2")
    A("L_fold_pub:")
    A("  s_waitcnt vmcnt(0)")
    A("L_fold_pub2:")
    stamp(A, opt, 2)
    A("  buffer_store_dwordx2 v[6:7], off, s[16:19], s54 sc1")
    A("  s_mov_b64 exec, -1")
    stamp(A, opt, 6)
    if opt.split:
        A("  v_mov_b32 v14, v6")
        A("  v_mov_b32 v15, v7")
        A("  s_cmp_ge_u32 s2, 36")
        A("  s_cbranch_scc1 L_nonce_x")
    A("  s_branch L_loader")

def helper_misc(A, opt, prod=False):
    A("  s_mov_b32 s14, 0")
    A(f"  v_mov_b32 v{VO}, 0")
    if prod:
        for k in range(6): A(f"  v_mov_b32 v{XO+k}, 0")
    A("  v_min_u32 v2, 35, v8")
    A(f"  v_lshlrev_b32 v2, {opt.fsh}, v2")
    A("  s_lshr_b32 s26, s2, 3")
    if opt.scout == 1:
        A("  s_mul_i32 s27, s26, 57")
        A("  s_lshr_b32 s27, s27, 9")
        A("  s_mul_i32 s27, s27, 9")
        A("  s_sub_u32 s26, s26, s27")
        A("  s_lshl_b32 s26, s26, 13")
        A("  v_lshl_add_u32 v28, v8, 7, s26")
    else:
        A("  s_cmp_ge_u32 s26, 18")
        A("  s_cselect_b32 s27, 14, 0")
        A("  s_sub_u32 s26, s26, s27")
        A("  s_lshl_b32 s26, s26, 12")
        A("  v_and_b32 v28, 31, v8")
        A("  v_lshl_add_u32 v28, v28, 7, s26")
    A(f"  s_mov_b32 s3, {woff(0, 0)}")

def srd_consts(A, opt, prod=False):
    A(f"  s_mov_b32 s10, {XBYTES}\n  s_mov_b32 s11, 0x00020000")
    A(f"  s_mov_b32 s15, 0x00020000")
    A("  s_mov_b32 s18, 0x60000\n  s_mov_b32 s19, 0x00020000")
    A("  s_mov_b32 s38, 256\n  s_mov_b32 s39, 0x00020000")
    A(f"  s_mov_b32 s74, {XBYTES}\n  s_mov_b32 s75, 0x00020000")
    A(f"  s_mov_b32 s93, {WS_FLAG}")
    A(f"  s_mov_b32 s94, {WS_FLAG + (36 << opt.fsh)}")
    A("  s_mov_b32 s92, 0")

def srd_bases(A, prod=False):
    if not prod: A("  s_waitcnt lgkmcnt(0)")
    A("  s_mov_b64 s[8:9], s[4:5]\n  s_mov_b64 s[16:17], s[54:55]\n  s_mov_b64 s[36:37], s[52:53]")
    A("  s_mov_b64 s[12:13], s[42:43]\n  s_mov_b64 s[72:73], s[42:43]")

def emit_body(A, opt, nq, em, pre, stmap, pre_lines):
    b = Body(opt); b.build(nq)
    em.age = opt.age
    log = []
    sched.COST["vst"] = opt.vstcost
    sched.COST["dma"] = 8
    sched.COST["dsw"] = opt.dswcost
    stalls = schedule(pre + b.base, em, budget=opt.budget, maxfill=opt.maxfill, lg_extra=opt.lgextra, log=log,
                      prefill=7, cooldown={'vst': opt.stcool, 'dma': 2}, padwin=opt.padwin, maxbytes=opt.maxbytes, latscale=2.5)
    verify(pre + b.base, em.out)
    nm = sum(1 for i in em.out if i.kind == "mfma")
    sys.stderr.write(f"body{nq}: instrs {len(em.out)} mfma {nm} forced-cycles {stalls}\n")
    if opt.log:
        for l in log: sys.stderr.write(str(l) + "\n")
    ji = em.out.index(b.join)
    if em.out[ji - 1].kind == "wait": ji -= 1
    live = []
    for k, i in enumerate(em.out[:ji]):
        if i.kind != "dsr" or int(i.writes[0][1:]) < WR0: continue
        w = set(i.writes)
        later_w = any(j.kind == "dsr" and set(j.writes) & w for j in em.out[k + 1:ji])
        used_before = any(j.kind == "mfma" and set(j.reads) & w for j in em.out[k + 1:ji])
        if not later_w and not used_before: live.append(i.text)
    opt.join_reads = live
    assert all(k < ji for k, i in enumerate(em.out) if i.kind == "dma")
    lines = list(pre_lines)
    L = lines.append
    nb = 0
    for k, i in enumerate(em.out):
        if k == ji: L("L_join:")
        for t in i.text.split("\n"): L("  " + t.strip() + (f"   ; {i.tag}" if i.tag else ""))
        if opt.stamps and i.kind == "bar":
            if nb in stmap:
                if opt.probe is None: L("  s_waitcnt lgkmcnt(0)")
                stamp(L, opt, stmap[nb])
            nb += 1
    if opt.stamps:
        stamp(L, opt, 6)
        L("  s_waitcnt vmcnt(0)")
        stamp(L, opt, 7)
        stamp_out(L, opt)
    L("  s_endpgm")
    lines = [x for l in lines for x in l.split("\n")]
    sizes = insn_sizes([re.sub(r"L_h\w+", "L_pad1", l) for l in lines if not l.endswith(":")])
    total = sum(sizes)
    sys.stderr.write(f"body bytes {total}\n")
    npad = (total + 16) // 4096 if opt.pads else 0
    addr = 0; k = 0; placed = 0
    for l in lines:
        if l.endswith(":"):
            A(l); continue
        if placed < npad and addr >= 4096 * (placed + 1):
            placed += 1
            A(f"L_pad{placed}:")
            A(f"  s_cbranch_execz {'L_pad%d' % (placed + 1) if placed < npad else 'L_padret'}")
            addr += 4
        A(l); addr += sizes[k]; k += 1
    assert placed == npad

def insn_sizes(lines):
    import subprocess, tempfile, re, os
    src = '.amdgcn_target "amdgcn-amd-amdhsa--gfx950"\n.text\nL_pad1:\n' + "\n".join(lines) + "\n"
    open("_sz.s", "w").write(src)
    subprocess.check_call(["clang", "-x", "assembler", "-target", "amdgcn-amd-amdhsa", "-mcpu=gfx950", "-c", "_sz.s", "-o", "_sz.o"])
    out = subprocess.check_output(["llvm-objdump", "-d", "--mcpu=gfx950", "_sz.o"]).decode()
    res = []
    for l in out.splitlines():
        m = re.search(r"// [0-9A-F]{12}: ((?:[0-9A-F]{8} ?)+)", l)
        if m: res.append(4 * len(m.group(1).split()))
    assert len(res) == len(lines), (len(res), len(lines))
    return res

def win_base(A):
    A("  s_mul_hi_u32 s23, s21, 153391690")
    A("  s_mul_i32 s24, s23, 28")
    A("  s_sub_u32 s24, s21, s24")
    A("  s_mul_i32 s23, s23, 688128")
    A("  s_mul_i32 s24, s24, 3072")
    A(f"  s_add_u32 s{SO[0]}, s23, s24")

def x_row(A, r):
    A(f"  s_add_u32 m0, s24, {3072*r}")
    if r % 4: A("  s_add_u32 s25, s25, 86016")
    else: A(f"  s_mov_b32 s25, s{SO[r // 2]}")

def x_load(A, opt, r, k):
    A(f"  buffer_load_dwordx4 v{XO+2*k+(r%2)}, s[8:11], s25 offen offset:{1024*k}{opt.xf} lds")

def x_frags(A, g, step=12288):
    for tt in range(2):
        for s in range(6):
            A(f"  ds_read_b128 {rng('a', X(2*g + tt, s), 4)}, v{FA+s%2} offset:{(s//2)*128 + tt*6144 + g*step}")

def win_addrs(A):
    A(f"  v_add_u32 v{VL[1]}, 0x10000, v{VL[0]}")
    A(f"  v_add_u32 v{VL[2]}, 0x20000, v{VL[0]}")
    A("  v_and_b32 v9, 15, v8")
    A("  v_mul_u32_u24 v10, 384, v9")
    A("  v_add_u32 v10, s24, v10")
    A("  v_bfe_u32 v11, v8, 1, 3")
    A("  v_lshrrev_b32 v12, 4, v8")
    A("  v_xor_b32 v11, v11, v12")
    A(f"  v_lshl_add_u32 v{FA}, v11, 4, v10")
    A("  v_xor_b32 v11, 4, v11")
    A(f"  v_lshl_add_u32 v{FA+1}, v11, 4, v10")
    A(f"  s_add_u32 s{SO[1]}, s{SO[0]}, 172032")
    A(f"  s_add_u32 s{SO[3]}, s{SO[2]}, 172032")

def out_addrs(A):
    A("  v_bfe_u32 v9, v8, 3, 1")
    A("  v_mul_u32_u24 v9, 86016, v9")
    A("  v_and_b32 v10, 7, v8")
    A("  v_mul_u32_u24 v10, 384, v10")
    A("  v_and_b32 v11, 48, v8")
    A(f"  v_add3_u32 v{VO}, v9, v10, v11")
    A("  v_bfe_u32 v9, v8, 3, 2")
    A("  v_mul_u32_u24 v9, 86016, v9")
    A("  v_and_b32 v10, 6, v8")
    A("  v_mul_u32_u24 v10, 384, v10")
    A("  v_and_b32 v11, 1, v8")
    A("  v_lshlrev_b32 v11, 4, v11")
    A("  v_and_b32 v12, 32, v8")
    A("  v_or_b32 v11, v11, v12")
    A(f"  v_add3_u32 v{VO2}, v9, v10, v11")

def main_kernel(opt):
    o = []
    A = o.append
    A(f".globl {KN}\n.p2align 12\n.p2align 8\n.type {KN},@function\n{KN}:")
    stamp(A, opt, 0)
    A("  s_load_dwordx4 s[4:7], s[0:1], 0")
    A("  s_load_dwordx4 s[40:43], s[0:1], 16")
    A("  s_load_dwordx4 s[52:55], s[0:1], 32")
    A("  v_lshrrev_b32 v7, 6, v0")
    A("  s_cmp_ge_u32 s2, 256")
    A("  s_cbranch_scc1 L_end")
    A("  v_readfirstlane_b32 s20, v7")
    A("  v_and_b32 v8, 63, v0")
    A(f"  v_lshlrev_b32 v{VL[0]}, 4, v8")
    A("  s_cmp_lg_u32 s20, 3")
    A("  s_cbranch_scc1 L_window")
    A("  s_cmp_ge_u32 s2, 72")
    A("  s_cbranch_scc1 L_pref")
    A("  s_mov_b32 s30, 221184\n  s_mov_b32 s31, 0x00020000\n  s_mov_b32 s35, 0x00020000\n  s_mov_b32 s10, 9216")
    fold(A, opt)
    nl = [0]
    def fill(lo, nbytes):
        nl[0] += 1
        A(f"  s_mov_b32 m0, {lo}")
        A("  s_nop 0")
        A(f"L_fill{nl[0]}:")
        for k in range(3):
            A(f"  buffer_load_dwordx4 v{VL[0]}, s[16:19], m0 offen offset:{1024*k} sc1 lds")
        A("  s_add_u32 m0, m0, 3072")
        A(f"  s_cmp_lt_u32 m0, {lo + nbytes}")
        A(f"  s_cbranch_scc1 L_fill{nl[0]}")
    def hdma(mat, t, n=1):
        fill(woff(mat, t), 12288 * n)
    ROLE[0] = "m"
    A(".p2align 6")
    A("L_window:")
    A("  s_mul_i32 s21, s2, 3")
    A("  s_add_u32 s21, s21, s20")
    win_base(A)
    A(f"  s_add_u32 s{SO[2]}, s{SO[0]}, 344064")
    A("  s_mul_i32 s24, s20, 24576")
    A(f"  s_mov_b32 s14, {XBYTES}")
    stage_offsets(A, 0, XO)
    srd_consts(A, opt)
    srd_bases(A)
    if opt.fastp:
        A(f"  s_sub_u32 s26, s2, {opt.p0}")
        A(f"  s_cmp_lt_u32 s26, {opt.pn - opt.p0}")
        A("  s_cselect_b64 vcc, -1, 0")
    if opt.bh:
        A("  s_cmp_ge_u32 s2, 72")
        A("  s_cbranch_scc1 L_nobh")
        A("  s_barrier")
        A("L_nobh:")
    n = 0
    if opt.fstamp: stamp(A, opt, 1)
    for r in range(8 - opt.hold):
        x_row(A, r)
        for k in range(3):
            w = opt.xwin if n < opt.xsw else opt.xwin2
            if n >= w:
                if opt.fastp > w: A(f"  s_cbranch_vccnz L_xs{n}")
                A(f"  s_waitcnt vmcnt({w-1})")
                if opt.fastp > w:
                    A(f"L_xs{n}:")
                    if n >= opt.fastp: A(f"  s_waitcnt vmcnt({opt.fastp-1})")
            if n == opt.bxn:
                if opt.split:
                    A("  s_sub_u32 s26, s2, 36")
                    A("  s_cmp_lt_u32 s26, 36")
                    A("  s_cbranch_scc1 L_nobx")
                A("  s_barrier")
                A("L_nobx:")
            x_load(A, opt, r, k)
            n += 1
        if r == 1:
            win_addrs(A)
            out_addrs(A)
    if not opt.fstamp: stamp(A, opt, 1)
    if opt.bxn >= 24:
        A(f"  s_waitcnt vmcnt({opt.pollat})")
        A("  s_barrier")
    A(f"  s_waitcnt vmcnt({6 - 3*opt.hold})")
    x_frags(A, 0)
    A("  s_waitcnt lgkmcnt(6)")
    for s in range(6):
        A(f"  ds_read_b128 {rng('a', X(2, s), 4)}, v{FA+s%2} offset:{(s//2)*128 + 2*6144}")
    A("  s_mov_b32 vcc_lo, 0x55555555\\n  s_mov_b32 vcc_hi, 0x55555555".replace("\\n", "\n"))
    if opt.pads:
        A("  s_mov_b64 exec, 0")
        A("  s_branch L_pad1")
    else:
        A("  s_branch L_padret")
    ROLE[0] = "h"
    A(".p2align 6")
    A("L_pref:")
    srd_consts(A, opt)
    helper_misc(A, opt)
    srd_bases(A)
    if opt.pref:
        A("  s_getpc_b64 s[48:49]")
        A("L_pc:")
        A(f"  s_sub_u32 s48, s48, L_pc-{KN}")
        A("  s_subb_u32 s49, s49, 0")
        A("  s_lshr_b32 s26, s2, 3")
        A(f"  s_and_b32 s26, s26, {opt.prefn - 1}")
        A("  s_lshl_b32 s26, s26, 13")
        A("  s_add_u32 s26, s26, 1024")
        A("  v_lshl_add_u32 v9, v8, 7, s26")
        A(f"  v_min_u32 v9, L_last-{KN}, v9")
        A("  global_load_dword v29, v9, s[48:49]")
    A("  s_add_u32 s21, s2, 1312")
    A("  s_and_b32 s22, s21, 1")
    A("  s_lshr_b32 s21, s21, 1")
    win_base(A)
    A("  s_mul_i32 s22, s22, 344064")
    A(f"  s_add_u32 s{SO[2]}, s{SO[0]}, 344064")
    A(f"  s_sub_u32 s{SO[2]}, s{SO[2]}, s22")
    A(f"  s_add_u32 s{SO[0]}, s{SO[0]}, s22")
    A("  s_mov_b32 s24, 49152")
    stage_offsets(A, 0, XO)
    A("  s_cmp_lt_u32 s2, 224")
    A("  s_cbranch_scc1 L_loader")
    n = 0
    for r in range(4, 8):
        A(f"  s_mov_b32 m0, {73728 + 3072*(r-4)}")
        A(f"  s_add_u32 s25, s{SO[2]}, {86016*(r%4)}")
        for k in range(3):
            if n >= opt.cwin: A(f"  s_waitcnt vmcnt({opt.cwin-1})")
            x_load(A, opt, r, k); n += 1
    win_addrs(A)
    out_addrs(A)
    A("  s_branch L_loader")
    ROLE[0] = "m"
    A(".p2align 12")
    pl = []
    P = pl.append
    P("L_padret:")
    if opt.pads: P("  s_mov_b64 exec, -1")
    P("  s_waitcnt lgkmcnt(0)")
    stamp(P, opt, 2)
    P("  s_barrier")
    stamp(P, opt, 3)
    emit_body(A, opt, 2, Emitter(), [], {3: 4, 4: 5}, pl)
    A(".p2align 6")
    ROLE[0] = "h"
    A("L_loader:")
    A("  s_barrier")
    if opt.split:
        A("L_nonce:")
        A("  buffer_load_dwordx2 v[14:15], off, s[36:39], 0 sc1")
        bound(A, "L_nonce")
        A("  s_waitcnt vmcnt(0)")
        A("  v_cmp_eq_u32 vcc, 0, v14")
        A("  s_cbranch_vccnz L_nonce")
        A("L_nonce_x:")
        A("  buffer_load_dwordx2 v[12:13], v2, s[16:19], s93 offen sc1")
    else:
        check_issue(A)
    if opt.escout:
        A("  buffer_load_dword v29, v28, s[16:19], s3 offen sc1")
        A("  s_waitcnt vmcnt(1)")
        A("  s_branch L_eval")
    spin_first(A, opt)
    if not opt.fstamp: stamp(A, opt, 3)
    hdma(0, 0)
    A("  s_cmp_eq_u64 vcc, 0")
    A("  s_cbranch_scc1 L_pollB_x")
    spin_flags(A, "L_pollB", "s93", opt.sleep)
    e = 0
    if opt.scout and not opt.escout:
        A("  buffer_load_dword v29, v28, s[16:19], s3 offen sc1"); e = 1
    if opt.ahead:
        hdma(0, 1, 2)
        A("  s_waitcnt vmcnt(24) lgkmcnt(0)")
        if not opt.fstamp: stamp(A, opt, 4)
        A("  s_barrier")
        hdma(0, 3)
        A("  s_waitcnt vmcnt(24)")
        A("  s_barrier")
        hdma(0, 4, 2)
        A("  buffer_load_dwordx2 v[12:13], v2, s[16:19], s94 offen sc1")
        A("  buffer_load_dword v29, v28, s[16:19], 0 offen sc1")
        A("  s_waitcnt vmcnt(38)")
        A("  s_barrier")
        A("  s_waitcnt vmcnt(26)")
        A("  s_barrier")
        A("  s_waitcnt vmcnt(1)")
        A("  v_cmp_ne_u64 vcc, v[12:13], v[14:15]")
        A("  s_cbranch_vccz L_pollN_x")
        spin_flags(A, "L_pollN", "s94", opt.sleep)
    else:
        hdma(0, 1)
        A(f"  s_waitcnt vmcnt({12+e}) lgkmcnt(0)")
        if not opt.fstamp: stamp(A, opt, 4)
        A("  s_barrier")
        hdma(0, 2)
        A("  s_waitcnt vmcnt(12)")
        A("  s_barrier")
        hdma(0, 3, 2)
        A("  s_waitcnt vmcnt(24)")
        A("  s_barrier")
        hdma(0, 5)
        if opt.nearly:
            A("  buffer_load_dwordx2 v[12:13], v2, s[16:19], s94 offen sc1")
            A("  buffer_load_dword v29, v28, s[16:19], 0 offen sc1")
            A("  s_waitcnt vmcnt(26)")
            A("  s_barrier")
            A("  s_waitcnt vmcnt(1)")
            A("  v_cmp_ne_u64 vcc, v[12:13], v[14:15]")
            A("  s_cbranch_vccz L_pollN_x")
            spin_flags(A, "L_pollN", "s94", opt.sleep)
        else:
            A("  s_waitcnt vmcnt(24)")
            A("  s_barrier")
            A("  buffer_load_dword v29, v28, s[16:19], 0 offen sc1")
            spin_flags(A, "L_pollN", "s94", opt.sleep)
            A("  s_waitcnt vmcnt(0)")
    A("  s_cmp_lt_u32 s2, 224")
    A("  s_cbranch_scc1 L_nox")
    for r in range(4):
        x_row(A, r)
        for k in range(3): x_load(A, opt, r, k)
    A("L_nox:")
    A("  s_barrier")
    A("  s_cmp_lg_u32 s2, 0")
    A("  s_cbranch_scc1 L_noep")
    A("  s_mov_b64 exec, 1")
    A("  buffer_store_dwordx2 v[6:7], off, s[16:19], s95 sc1")
    A("  s_mov_b64 exec, -1")
    A("L_noep:")
    fill(0, 18432)
    fill(24576, 18432)
    A("  s_cmp_lt_u32 s2, 224")
    A("  s_cbranch_scc1 L_nofr")
    x_frags(A, 1, 24576)
    A("  s_waitcnt vmcnt(36) lgkmcnt(0)")
    x_frags(A, 0)
    A("  s_waitcnt lgkmcnt(0)")
    for n, t in enumerate(opt.join_reads):
        if n == 12: A("  s_waitcnt lgkmcnt(0)")
        A("  " + t)
    A("L_nofr:")
    fill(49152, 18432)
    A("  s_cmp_ge_u32 s2, 224")
    A("  s_cbranch_scc1 L_late")
    if not opt.fstamp: stamp(A, opt, 5)
    A("  s_waitcnt vmcnt(0)")
    A("  s_barrier")
    stamp_out(A, opt)
    A("L_end:")
    A("  s_endpgm")
    A("L_late:")
    if not opt.fstamp: stamp(A, opt, 5)
    A("  s_mov_b32 vcc_lo, 0x55555555\n  s_mov_b32 vcc_hi, 0x55555555")
    A("  s_waitcnt lgkmcnt(0)")
    A("  s_branch L_join")
    A("L_last:")
    A("  s_endpgm")
    return "\n".join(o)

def main():
    ap = argparse.ArgumentParser()
    ap.add_argument("--ring", type=int, default=12)
    ap.add_argument("--dslead", type=float, default=12.0)
    ap.add_argument("--split", type=int, default=0)
    ap.add_argument("--ahead", type=int, default=1)
    ap.add_argument("--nearly", type=int, default=1)
    ap.add_argument("--hold", type=int, default=2)
    ap.add_argument("--holdat", type=int, default=36)
    ap.add_argument("--pairc", type=int, default=6)
    ap.add_argument("--mixed", type=int, default=1)
    ap.add_argument("--escout", type=int, default=1)
    ap.add_argument("--blead", type=int, default=14)
    ap.add_argument("--b4c", type=int, default=4)
    ap.add_argument("--olate", type=int, default=2)
    ap.add_argument("--stlead", type=float, default=80.0)
    ap.add_argument("--vstcost", type=int, default=8)
    ap.add_argument("--stcool", type=int, default=6)
    ap.add_argument("--sins", type=int, default=6)
    ap.add_argument("--b4blk", type=int, default=9)
    ap.add_argument("--b1at", type=int, default=5)
    ap.add_argument("--b2at", type=int, default=17)
    ap.add_argument("--b3at", type=int, default=29)
    ap.add_argument("--fastp", type=int, default=8)
    ap.add_argument("--pollat", type=int, default=0)
    ap.add_argument("--fsh", type=int, default=5)
    ap.add_argument("--wf", default="")
    ap.add_argument("--bh", type=int, default=1)
    ap.add_argument("--pads", type=int, default=1)
    ap.add_argument("--maxbytes", type=int, default=16)
    ap.add_argument("--age", type=int, default=10)
    ap.add_argument("--padwin", type=int, default=8)
    ap.add_argument("--ndefer", type=int, default=3)
    ap.add_argument("--xwat", type=int, default=164)
    ap.add_argument("--b5at", type=int, default=176)
    ap.add_argument("--xsw", type=int, default=24)
    ap.add_argument("--xwin2", type=int, default=8)
    ap.add_argument("--cwin", type=int, default=6)
    ap.add_argument("--o41", type=int, default=68)
    ap.add_argument("--dswcost", type=int, default=8)
    ap.add_argument("--bxn", type=int, default=24)
    ap.add_argument("--slowp", type=int, default=0)
    ap.add_argument("--slown", type=int, default=10)
    ap.add_argument("--pn", type=int, default=72)
    ap.add_argument("--p0", type=int, default=36)
    ap.add_argument("--fstamp", type=int, default=0)
    ap.add_argument("--swapmn", type=int, default=0)
    ap.add_argument("--scout", type=int, default=1)
    ap.add_argument("--prefn", type=int, default=4)
    ap.add_argument("--presleep", type=int, default=0)
    ap.add_argument("--pausen", type=int, default=0)
    ap.add_argument("--budget", type=int, default=8)
    ap.add_argument("--maxfill", type=int, default=5)
    ap.add_argument("--lgextra", type=int, default=1)
    ap.add_argument("--xwin", type=int, default=6)
    ap.add_argument("--xearly", type=int, default=24)
    ap.add_argument("--sleep", type=int, default=2)
    ap.add_argument("--pref", type=int, default=1)
    ap.add_argument("--stflags", default="sc1")
    ap.add_argument("--xf", default="nt")
    ap.add_argument("--log", action="store_true")
    ap.add_argument("--nostore", action="store_true")
    ap.add_argument("--stamps", action="store_true")
    ap.add_argument("--probe", default=None)
    ap.add_argument("--pwg", default="0,256")
    opt = ap.parse_args()
    if opt.probe:
        opt.probe = (opt.probe[0], int(opt.probe[1:])); opt.stamps = True
        opt.pwg = [int(x) for x in opt.pwg.split(",")]
    if opt.stflags: opt.stflags = " " + opt.stflags.replace(",", " ")
    if opt.wf: opt.wf = " " + opt.wf.replace(",", " ")
    if opt.stamps and not opt.probe: opt.prefn = 4
    if opt.xf: opt.xf = " " + opt.xf.replace(",", " ")
    print(HDR.rstrip())
    print(f"; @launch grid=(256,1,1) block=(256,1,1) lds=163840")
    print('.amdgcn_target "amdgcn-amd-amdhsa--gfx950"\n.text')
    print(main_kernel(opt))
    print('.section .rodata,"a"')
    print(f""".p2align 6
.amdhsa_kernel {KN}
  .amdhsa_next_free_vgpr {256 + 96 + 4 * opt.ring}
  .amdhsa_next_free_sgpr 96
  .amdhsa_accum_offset 256
  .amdhsa_group_segment_fixed_size 0
  .amdhsa_kernarg_size 48
  .amdhsa_user_sgpr_count 2
  .amdhsa_user_sgpr_kernarg_segment_ptr 1
  .amdhsa_system_sgpr_workgroup_id_x 1
.end_amdhsa_kernel""")

main()
```

```python
import sys, struct, argparse, re
import sched
from sched import *

KN = "standalone__swin_window_attn__vision_kernel"
XBYTES = 19267584
SCALE = (192 ** -0.5) * 1.4426950408889634
def f32bits(x): return struct.unpack("<I", struct.pack("<f", x))[0]
HDR = open("standalone__swin_window_attn__vision.s.ref").read().split("; Override launch")[0]
WS_STAMP = 0x1000000
WS_FLAG = 0x40000
WS_EPOCH = 0x50000

def woff(mat, t):
    return 90112 + t * 12288 if mat == 0 else t * 12288

X = lambda tt, s: (tt * 6 + s) * 4
WR0 = 96
TA = lambda i: 16 + 4 * (i % 8)
TB = lambda q, s: 48 + (q * 6 + s) * 4
ST = lambda kt, qt: 96 + (qt * 4 + kt) * 4
PB = lambda qt, k: 160 + (qt * 2 + k) * 4
YB = lambda i, b, k: 192 + ((i % 3) * 4 + b * 2 + k) * 4
YB2 = lambda i, b, k: 48 + ((i % 3) * 4 + b * 2 + k) * 4
OB = lambda i: 240 + 4 * (i % 4)
VO = 1
VO2 = 0
VL = [3, 4, 5]
XO = 240
FA = 252
SO = [44, 45, 46, 47]
OSRD = ["s[12:15]", "s[72:75]"]

def mfma(d, ak, a, bk, b, first, tag=""):
    c = "0" if first else rng("v", d, 4)
    rd = R(ak, a, 4) + R(bk, b, 4) + ([] if first else R("v", d, 4))
    return Ins(f"v_mfma_f32_16x16x32_bf16 {rng('v', d, 4)}, {rng(ak, a, 4)}, {rng(bk, b, 4)}, {c}",
               "mfma", rd, R("v", d, 4), srcc=([] if first else R("v", d, 4)), tag=tag)

def valu(op, d, *src, kind="valu", lead=0.0):
    rd = [s for s in src if isinstance(s, str) and s[0] in "vs" and s[1:].isdigit()]
    return Ins(f"{op} {d}, " + ", ".join(str(s) for s in src), kind, rd, [d], lead=lead)

def cvt(d, s0, lead=0.0):
    return valu("v_cvt_pk_bf16_f32", f"v{d}", f"v{s0}", f"v{s0+1}", lead=lead)

def yb(c, b, k):
    return YB(c // 2, b, k) if c % 2 == 0 else YB2(c // 2, b, k)

class Body:
    def __init__(self, opt):
        self.opt = opt
        self.base = []
        self.nfrag = 0
        self.nob = 0
        self.nacc = 0
        self.npair = 0
        self.nd = []
        self.mf = []
    def add(self, i):
        self.base.append(i); return i
    def acc(self):
        self.nacc += 1
        return TA(self.nacc)
    def wtile(self, mat, r):
        res = []
        for s in range(6):
            slot = self.nfrag % self.opt.ring; self.nfrag += 1
            reg = WR0 + 4 * slot
            off = woff(mat, 0) + r * 6144 + s * 1024
            self.add(Ins(f"ds_read_b128 {rng('a', reg, 4)}, v{VL[off >> 16]} offset:{off & 0xffff}", "dsr",
                         [f"v{VL[off >> 16]}", f"L:{mat}:{r // 2}"], R("a", reg, 4), lead=self.opt.dslead))
            res.append(reg)
        return res
    def allred(self, op, x, y):
        for sw in ("v_permlane32_swap_b32", "v_permlane16_swap_b32"):
            self.add(valu("v_mov_b32", y, x))
            self.add(Ins(f"{sw} {x}, {y}", "perm", [x, y], [x, y]))
            self.add(valu(op, x, x, y))
    def softmax(self, qt):
        vals = [ST(kt, qt) + r for kt in range(4) for r in range(4)]
        t0 = 7 + 4 * (qt % 2)
        m0, m1, l0, l1 = (f"v{t0+i}" for i in range(4))
        self.add(valu("v_max3_f32", m0, f"v{vals[0]}", f"v{vals[1]}", f"v{vals[2]}"))
        for k in range(3, 15, 2):
            self.add(valu("v_max3_f32", m0, m0, f"v{vals[k]}", f"v{vals[k+1]}"))
        self.add(valu("v_max_f32", m0, m0, f"v{vals[15]}"))
        self.allred("v_max_f32", m0, m1)
        for k, v in enumerate(vals):
            self.add(valu("v_sub_f32", f"v{v}", f"v{v}", m0))
            self.add(valu("v_exp_f32", f"v{v}", f"v{v}", kind="trans"))
            if k == 1: self.add(valu("v_add_f32", l0, f"v{vals[0]}", f"v{v}"))
            if k > 1: self.add(valu("v_add_f32", l0, l0, f"v{v}"))
        self.allred("v_add_f32", l0, l1)
        self.add(valu("v_rcp_f32", l0, l0, kind="trans"))
        for k in range(2):
            for d in range(4):
                s = ST(2 * k, qt) + 2 * d
                self.add(valu("v_mul_f32", f"v{s}", f"v{s}", l0))
                self.add(valu("v_mul_f32", f"v{s+1}", f"v{s+1}", l0))
                self.add(cvt(PB(qt, k) + d, s))
    def Tchain(self, r, w, g, q):
        acc = self.acc()
        for s in range(6):
            m = self.add(mfma(acc, "a", w[s], "a", X(2 * g + q, s), s == 0, tag=f"T{r}.{2*g+q}"))
            self.mf.append(m)
            if g == 1 and r == 0 and q == 0 and s == 0:
                self.join = m; m.after = self.nd[-1]; m.reads = m.reads + ["m0J"]
                for i in self.nd: i.writes = i.writes
        for d in range(2): self.add(cvt(TB(q, r // 2) + 2 * (r % 2) + d, acc + 2 * d))
    def Oblk(self, c, qt):
        ob = OB(self.nob); self.nob += 1
        L = self.opt.stlead; fl = self.opt.stflags
        for b in range(2):
            acc = self.acc()
            for k in range(2):
                self.add(mfma(acc, "v", yb(c, b, k), "v", PB(qt, k), k == 0, tag=f"O{c}.{qt}"))
            for d in range(2): self.add(cvt(ob + 2 * b + d, acc + 2 * d, lead=L))
        if not self.opt.nostore:
            txt = f"buffer_store_dwordx4 {rng('v', ob, 4)}, v{VO}, {OSRD[qt // 2]}, s{SO[qt]} offen offset:{64*c}{fl}"
            if qt < 2 and self.opt.cskip: txt = f"s_cbranch_vccnz L_hs{self.nob}\n{txt}\nL_hs{self.nob}:"
            self.add(Ins(txt, "vst", R("v", ob, 4) + [f"v{VO}"], [], lead=L))
    def Opair(self, c, g):
        par = self.npair % 2; self.npair += 1
        ob = 240 + 8 * par if not self.opt.mixed else 240 + 8 * par
        L = self.opt.stlead; fl = self.opt.stflags
        accs = []
        for q in range(2):
            for b in range(2):
                acc = self.acc(); accs.append(acc)
                for k in range(2):
                    self.add(mfma(acc, "v", yb(c, b, k), "v", PB(2 * g + q, k), k == 0, tag=f"O{c}.{2*g+q}"))
                for d in range(2): self.add(cvt(ob + 4 * q + 2 * b + d, acc + 2 * d, lead=L))
        for d in range(4):
            x, y = f"v{ob+d}", f"v{ob+4+d}"
            self.add(Ins(f"v_permlane16_swap_b32 {x}, {y}", "perm", [x, y], [x, y], lead=L))
        tmp = ST(par, 2 * g)
        def s1(dst):
            for d in range(4):
                self.add(Ins(f"v_cndmask_b32_dpp v{dst+d}, v{ob+4+d}, v{ob+d}, vcc quad_perm:[0,0,2,2] row_mask:0xf bank_mask:0xf",
                             "perm", [f"v{ob+4+d}", f"v{ob+d}", "vcc"], [f"v{dst+d}"], lead=L))
        def s2(dst):
            for d in range(4):
                self.add(Ins(f"v_cndmask_b32_dpp v{dst+d}, v{ob+d}, v{ob+4+d}, vcc quad_perm:[1,1,3,3] row_mask:0xf bank_mask:0xf",
                             "perm", [f"v{ob+4+d}", f"v{ob+d}", "vcc"], [f"v{dst+d}"], lead=L))
        def st(reg, odd):
            if self.opt.nostore: return
            self.add(Ins(f"buffer_store_dwordx4 {rng('v', reg, 4)}, v{VO2}, {OSRD[g]}, s{SO[2*g]} offen offset:{64*c + 384*odd}{fl}",
                         "vst", R("v", reg, 4) + [f"v{VO2}"], [], lead=L))
        flip = Ins("s_not_b64 vcc, vcc", "salu", ["vcc"], ["vcc"], lead=L)
        if par == 0:
            s1(tmp); st(tmp, 0); self.add(flip); s2(ob + 4); st(ob + 4, 1)
        else:
            s2(tmp); st(tmp, 1); self.add(flip); s1(ob); st(ob, 0)
    def Oany(self, c, qt):
        if c >= self.opt.pairc:
            if qt % 2 == 1: self.Opair(c, qt // 2)
        else:
            self.Oblk(c, qt)
    def bar(self, tiles, after, text="s_barrier", reads=()):
        return self.add(Ins(text, "bar", ["BAR"] + list(reads), ["BAR"] + [f"L:{m}:{t}" for m, t in tiles], after=after))

    def build(self, nq):
        opt = self.opt
        allN = [(1, tn) for tn in range(6)]
        for g in range(2):
            for c in range(6):
                if g == 0:
                    if c in (1, 2, 3):
                        bb = self.bar([(0, c)], self.mf[24 * c - opt.blead]); bb.lead = 500
                        if c == 2: self.b2 = bb
                    if c == 4:
                        self.bar([(0, 4), (0, 5)], self.mf[96 - opt.blead])
                        self.add(Ins("s_cbranch_vccnz L_deep\nL_deepb:", "salu", ["s25"], ["m0", "s25"], after=self.b2, lead=300))
                        for r in range(8 - opt.hold, 8):
                            self.add(Ins(f"s_add_u32 m0, s24, {3072*r}", "salu", [], ["m0"], after=self.b2, lead=200))
                            self.add(Ins("s_add_u32 s25, s25, 86016", "salu", ["s25"], ["s25"], after=self.b2, lead=200))
                            for k in range(3):
                                self.add(Ins(f"buffer_load_dwordx4 v{XO+2*k+(r%2)}, s[8:11], s25 offen offset:{1024*k}{opt.xf} lds", "dma",
                                             ["m0", "s25", f"v{XO+2*k+(r%2)}"], [f"XD{r}{k}"], lead=200))
                if g == 1 and c == opt.b4c: self.bar(allN, self.mf[-1], "s_waitcnt vmcnt(0)\n  s_barrier")
                if c < 5:
                    for b in range(2):
                        w = self.wtile(0, 2 * c + b)
                        for q in range(2): self.Tchain(2 * c + b, w, g, q)
                else:
                    w = [self.wtile(0, 10), self.wtile(0, 11)]
                    for q in range(2):
                        for b in range(2): self.Tchain(10 + b, w[b], g, q)
            def schain(kt, q):
                for s in range(6):
                    m = self.add(mfma(ST(kt, 2 * g + q), "a", X(kt, s), "v", TB(q, s), s == 0, tag=f"S{kt}.{2*g+q}"))
                    if g == 0: self.mf.append(m)
            if g == 0:
                for q in range(2):
                    for kt in range(2): schain(kt, q)
                def xl(tt, cnt, at):
                    self.add(Ins(f"s_waitcnt vmcnt({cnt})", "salu", [], [f"XW{tt}", "m0"], after=self.mf[at], lead=100))
                    for s in range(6):
                        self.add(Ins(f"ds_read_b128 {rng('a', X(tt, s), 4)}, v{FA+s%2} offset:{(s//2)*128 + tt*6144}", "dsr",
                                     [f"XW{tt}", f"v{FA+s%2}"], R("a", X(tt, s), 4), lead=100))
                xl(2, 6, opt.xwat)
                xl(3, 0, opt.xwat3)
                schain(2, 0); schain(2, 1)
                for hh in range(4, 8):
                    xr = [r for s in range(6) for r in R("a", X(hh // 2, s), 4)]
                    self.add(Ins(f"s_add_u32 m0, s24, {3072*hh}", "salu", xr, ["m0"], after=self.mf[opt.xwat3 + (1 if hh < 6 else 11)], lead=400))
                    for k in range(3):
                        self.nd.append(self.add(Ins(f"buffer_load_dwordx4 v{VL[0]}, s[16:19], m0 offen offset:{1024*k} sc1 lds", "dma",
                                     ["m0"], [f"ND{hh}{k}"], lead=400)))
                schain(3, 0); self.softmax(0)
                schain(3, 1); self.softmax(1)
            else:
                for q in range(2):
                    for kt in range(4): schain(kt, q)
                    self.softmax(2 + q)
        pos = {}
        def put(c, n, blk): pos.setdefault((c, n), []).append(blk)
        for c in range(5):
            put(c + 1, 2, (c, 0)); put(c + 1, 4, (c, 1))
        late = opt.olate
        sl = [(late + i // 4, (1, 3, 5, 7)[i % 4]) for i in range(40)]
        i = 0
        for c in range(5):
            for qt in (2, 3):
                while sl[i] < (c + 1, 2): i += 1
                put(*sl[i], (c, qt)); i += 1
        for c in range(6):
            n = 0
            for b in range(2):
                w = self.wtile(1, 2 * c + b)
                for kt in range(4):
                    for blk in pos.get((c, n), []): self.Oany(*blk)
                    acc = self.acc()
                    for s in range(6):
                        self.add(mfma(acc, "a", X(kt, s), "a", w[s], s == 0, tag=f"Y{2*c+b}.{kt}"))
                    for d in range(2): self.add(cvt(yb(c, b, kt // 2) + 2 * (kt % 2) + d, acc + 2 * d))
                    n += 1
        for key in sorted(pos):
            if key[0] >= 6:
                for blk in pos[key]: self.Oany(*blk)
        for qt in range(4): self.Oany(5, qt)

_ph = [0]
ROLE = ["h"]
def stamp(A, opt, k):
    if opt.probe is not None:
        if (ROLE[0], k) == opt.probe or (k == 0 and opt.probe[1] == 0):
            A("  s_memrealtime s[56:57]")
            A("  s_waitcnt lgkmcnt(0)")
        return
    if opt.stamps:
        A(f"  s_memrealtime s[{56+2*k}:{57+2*k}]")
        A(f"  s_memtime s[{76+2*k}:{77+2*k}]")
        A(f"  s_waitcnt lgkmcnt(0)")

def stamp_out(A, opt):
    if opt.probe is not None:
        if ROLE[0] != opt.probe[0]: return
        _ph[0] += 1; n = _ph[0]
        A(f"  s_sub_u32 s60, s2, {opt.pwg[0]}")
        A(f"  s_cmp_ge_u32 s60, {opt.pwg[1] - opt.pwg[0]}")
        A(f"  s_cbranch_scc1 L_hx{n}")
        if ROLE[0] == "m":
            A("  s_cmp_eq_u32 s20, 3")
            A(f"  s_cbranch_scc1 L_hx{n}")
        A(f"L_hold{n}:")
        A("  s_memrealtime s[58:59]")
        A("  s_waitcnt lgkmcnt(0)")
        A("  s_sub_u32 s60, s58, s56")
        A("  s_cmp_lt_u32 s60, 1500")
        A(f"  s_cbranch_scc1 L_hold{n}")
        A(f"L_hx{n}:")
        return
    if not opt.stamps: return
    for k in range(8): A(f"  v_mov_b32 v{16+k}, s{56+2*k}")
    for k in range(8): A(f"  v_mov_b32 v{24+k}, s{76+2*k}")
    A(f"  s_lshl_b32 s26, s2, 2\n  s_add_u32 s26, s26, s20\n  s_lshl_b32 s26, s26, 5\n  s_add_u32 s26, s26, {WS_STAMP}")
    A("  s_mov_b32 s18, 0x10000000")
    A("  v_mov_b32 v7, 0")
    A("  buffer_store_dwordx4 v[16:19], v7, s[16:19], s26 offen")
    A("  buffer_store_dwordx4 v[20:23], v7, s[16:19], s26 offen offset:16")
    A("  s_add_u32 s26, s26, 0x10000")
    A("  buffer_store_dwordx4 v[24:27], v7, s[16:19], s26 offen")
    A("  buffer_store_dwordx4 v[28:31], v7, s[16:19], s26 offen offset:16")

def bound(A, label):
    A("  s_add_u32 s92, s92, 1")
    A("  s_cmp_gt_u32 s92, 50000")
    A(f"  s_cbranch_scc1 {label}_x")

def check_issue(A):
    A("  buffer_load_dwordx2 v[14:15], off, s[36:39], 0 sc1")
    A("  buffer_load_dwordx2 v[12:13], v2, s[16:19], s93 offen sc1")

def spin_first(A, opt):
    A("  s_branch L_pollA_0")
    A("L_pollA:")
    A(f"  s_sleep {opt.sleep}")
    check_issue(A)
    bound(A, "L_pollA")
    A("L_pollA_0:")
    A("  s_waitcnt vmcnt(0)")
    A("L_eval:")
    A("  v_cmp_ne_u64 vcc, v[12:13], v[14:15]")
    A("  v_cmp_eq_u32 s[26:27], 0, v14")
    A("  s_nop 1")
    A("  s_or_b64 vcc, vcc, s[26:27]")
    A("  s_and_b32 s26, vcc_lo, 0x3f")
    A("  s_cbranch_scc1 L_pollA")
    A("L_pollA_x:")

def spin_flags(A, label, sreg, sleep):
    A(f"  s_branch {label}_0")
    A(f"{label}:")
    A(f"  s_sleep {sleep}")
    A(f"{label}_0:")
    A(f"  buffer_load_dwordx2 v[12:13], v2, s[16:19], {sreg} offen sc1")
    bound(A, label)
    A("  s_waitcnt vmcnt(0)")
    A("  v_cmp_ne_u64 vcc, v[12:13], v[14:15]")
    A(f"  s_cbranch_vccnz {label}")
    A(f"{label}_x:")

def stage_offsets(A, rowx, d0=16):
    for k in range(3):
        A(f"  v_add_u32 v9, {64*k}, v8")
        A("  v_mul_u32_u24 v9, 0xaab, v9")
        if rowx:
            A("  v_lshrrev_b32 v10, 16, v9")
            A(f"  v_mul_u32_u24 v10, {rowx}, v10")
        A("  v_lshrrev_b32 v9, 17, v9")
        A("  v_xor_b32 v9, v9, v8")
        if rowx:
            A("  v_xor_b32 v11, 4, v9")
            A(f"  v_lshl_add_u32 v{d0+2*k}, v9, 4, v10")
            A(f"  v_lshl_add_u32 v{d0+1+2*k}, v11, 4, v10")
        else:
            A(f"  v_lshlrev_b32 v{d0+2*k}, 4, v9")
            A(f"  v_xor_b32 v{d0+1+2*k}, 64, v{d0+2*k}")

def frag_addrs(A, jreg, base, dst=24):
    A(f"  v_mul_u32_u24 v10, 384, {jreg}")
    A(f"  v_add_u32 v10, {base}, v10")
    A(f"  v_bfe_u32 v11, {jreg}, 1, 3")
    A("  v_lshrrev_b32 v12, 5, v8")
    A("  v_xor_b32 v11, v11, v12")
    for m in range(4):
        A(f"  v_xor_b32 v13, {2*m}, v11")
        A(f"  v_lshl_add_u32 v{dst+m}, v13, 4, v10")

def fold(A, opt):
    SC = 73728
    A("  s_cmp_ge_u32 s2, 36")
    A("  s_cselect_b32 s51, 36, 0")
    A("  s_cselect_b64 vcc, -1, 0")
    A("  s_cselect_b32 s50, 768, 0")
    A("  s_cselect_b32 s21, 64, 36864")
    A("  s_cselect_b32 s24, 0, 384")
    A("  s_cselect_b32 s25, 18432, s10")
    A("  s_cselect_b32 s34, 73728, s30")
    A("  s_sub_u32 s51, s2, s51")
    A("  s_mul_i32 s48, s51, 43")
    A("  s_lshr_b32 s48, s48, 8")
    A("  s_mul_i32 s49, s48, 6")
    A("  s_sub_u32 s49, s51, s49")
    A("  s_mul_i32 s22, s49, 36864")
    A("  s_add_u32 s22, s22, s50")
    A("  s_mul_i32 s23, s48, s21")
    A("  s_add_u32 s23, s23, s24")
    stage_offsets(A, 768)
    A("  v_lshrrev_b32 v14, 2, v8")
    A("  v_mul_u32_u24 v14, 384, v14")
    A("  v_and_b32 v13, 3, v8")
    A("  v_lshl_add_u32 v14, v13, 4, v14")
    for k in range(3):
        if k: A(f"  v_add_u32 v14, 5120, v14")
        A(f"  v_cndmask_b32 v{144+2*k}, v{16+2*k}, v14, vcc")
        A(f"  v_cndmask_b32 v{145+2*k}, v{17+2*k}, v14, vcc")
    A("  s_waitcnt lgkmcnt(0)")
    A("  s_cmp_ge_u32 s2, 36")
    A("  s_mov_b64 s[28:29], s[6:7]")
    A("  s_cselect_b64 s[32:33], s[40:41], s[6:7]")
    def panel(sreg, lds, v0, srd, step):
        for r in range(4):
            A(f"  s_mov_b32 m0, {lds + 3072*r}")
            if r: A(f"  s_add_u32 {sreg}, {sreg}, {step}")
            else: A("  s_nop 0")
            for k in range(3):
                A(f"  buffer_load_dwordx4 v{v0+2*k+(r%2)}, {srd}, {sreg} offen offset:{1024*k}{opt.wf} lds")
    panel("s23", SC + 12288, 144, "s[32:35]", "s25")
    panel("s22", SC, 16, "s[28:31]", 9216)
    srd_consts(A, opt, True)
    srd_bases(A, True)
    A(f"  s_mov_b32 s95, {WS_EPOCH}")
    A("  buffer_load_dwordx2 v[6:7], off, s[16:19], s95 sc1")
    stamp(A, opt, 7)
    if opt.bh: A("  s_barrier")
    helper_misc(A, opt, True)
    A("  v_and_b32 v9, 0x13, v8")
    A("  v_and_b32 v10, 4, v8")
    A("  v_lshl_or_b32 v9, v10, 1, v9")
    A("  v_and_b32 v10, 8, v8")
    A("  v_lshrrev_b32 v10, 1, v10")
    A("  v_or_b32 v9, v9, v10")
    frag_addrs(A, "v9", SC)
    A("  v_and_b32 v9, 3, v8")
    A("  v_bfe_u32 v10, v8, 2, 2")
    A("  v_lshl_or_b32 v9, v10, 3, v9")
    A("  v_bfe_u32 v10, v8, 4, 1")
    A("  v_lshl_or_b32 v9, v10, 2, v9")
    frag_addrs(A, "v9", SC, 150)
    A("  v_bfe_u32 v9, v8, 4, 1")
    A("  v_mul_u32_u24 v9, 6144, v9")
    A("  v_and_b32 v10, 15, v8")
    A("  v_lshl_add_u32 v9, v10, 4, v9")
    A("  v_lshl_add_u32 v154, v12, 8, v9")
    A("  v_bfe_u32 v14, v8, 2, 2")
    A("  v_lshl_add_u32 v14, v12, 3, v14")
    A("  v_lshlrev_b32 v14, 6, v14")
    A("  v_bfe_u32 v13, v8, 4, 1")
    A("  v_lshl_add_u32 v14, v13, 3, v14")
    A("  v_and_b32 v13, 3, v8")
    A("  v_lshl_add_u32 v14, v13, 4, v14")
    A(f"  v_add_u32 v14, {SC + 12288}, v14")
    A("  s_mul_i32 s26, s48, 12288")
    A(f"  s_add_u32 s27, s26, {woff(0,0)}")
    A("  s_lshl_b32 s54, s49, 10")
    A("  s_cmp_ge_u32 s2, 36")
    A("  s_cselect_b32 s26, s26, s27")
    A(f"  s_cselect_b32 s27, 1.0, {f32bits(SCALE):#x}")
    A("  s_add_u32 s26, s26, s54")
    A(f"  s_lshl_b32 s54, s2, {opt.fsh}")
    A(f"  s_add_u32 s54, s54, {WS_FLAG}")
    if opt.fstamp: stamp(A, opt, 5)
    A("  s_waitcnt vmcnt(13)")
    if opt.fstamp: stamp(A, opt, 3)
    A("  s_cbranch_vccnz L_fold_tr")
    for s in range(12):
        A(f"  ds_read_b128 v[{80+4*s}:{83+4*s}], v{150+s%4} offset:{(s//4)*128 + 12288}")
    A("  s_branch L_fold_a")
    A("L_fold_tr:")
    for s in range(12):
        for jj in range(2):
            A(f"  ds_read_b64_tr_b16 v[{80+4*s+2*jj}:{81+4*s+2*jj}], v14 offset:{1024*s + 256*jj}")
        if s == 6: A("  s_waitcnt lgkmcnt(0)")
    A("L_fold_a:")
    A("  s_waitcnt vmcnt(1) lgkmcnt(0)")
    if opt.fstamp: stamp(A, opt, 4)
    for s in range(12):
        A(f"  ds_read_b128 v[{32+4*s}:{35+4*s}], v{24+s%4} offset:{(s//4)*128}")
    for s in range(12):
        c = "0" if s == 0 else "v[128:143]"
        A(f"  s_waitcnt lgkmcnt({11-s})")
        A(f"  v_mfma_f32_32x32x16_bf16 v[128:143], v[{32+4*s}:{35+4*s}], v[{80+4*s}:{83+4*s}], {c}")
    stamp(A, opt, 1)
    A("  s_waitcnt vmcnt(0)")
    A("  v_add_co_u32 v6, vcc, 2, v6")
    A("  s_nop 1")
    A("  v_addc_co_u32 v7, vcc, 0, v7, vcc")
    A("  v_or_b32 v6, 1, v6")
    A("  s_nop 5")
    for d in range(8):
        A(f"  v_mul_f32 v{128+2*d}, s27, v{128+2*d}")
        A(f"  v_mul_f32 v{129+2*d}, s27, v{129+2*d}")
        A(f"  v_cvt_pk_bf16_f32 v{32+d}, v{128+2*d}, v{129+2*d}")
        if d == 3: A(f"  buffer_store_dwordx4 v[32:35], v154, s[16:19], s26 offen sc1")
    A(f"  buffer_store_dwordx4 v[36:39], v154, s[16:19], s26 offen offset:512 sc1")
    A("  s_mov_b64 exec, 1")
    A("  s_cmp_lg_u32 s2, 0")
    A("  s_cbranch_scc1 L_fold_pub")
    A("  buffer_store_dwordx2 v[6:7], off, s[36:39], 0 sc1")
    A("  s_waitcnt vmcnt(1)")
    A("  s_branch L_fold_pub2")
    A("L_fold_pub:")
    A("  s_waitcnt vmcnt(0)")
    A("L_fold_pub2:")
    stamp(A, opt, 2)
    A("  buffer_store_dwordx2 v[6:7], off, s[16:19], s54 sc1")
    A("  s_mov_b64 exec, -1")
    if opt.qn:
        if opt.qn < 72:
            A(f"  s_cmp_ge_u32 s2, {opt.qn}")
            A("  s_cbranch_scc1 L_noq2")
        A("  s_barrier")
        A("L_noq2:")
    stamp(A, opt, 6)
    if opt.split:
        A("  v_mov_b32 v14, v6")
        A("  v_mov_b32 v15, v7")
        A("  s_cmp_ge_u32 s2, 36")
        A("  s_cbranch_scc1 L_nonce_x")
    A("  s_branch L_loader")

def helper_misc(A, opt, prod=False):
    A("  s_mov_b32 s14, 0")
    A(f"  v_mov_b32 v{VO}, 0")
    if prod:
        for k in range(6): A(f"  v_mov_b32 v{XO+k}, 0")
    A("  v_min_u32 v2, 35, v8")
    A(f"  v_lshlrev_b32 v2, {opt.fsh}, v2")
    A("  s_lshr_b32 s26, s2, 3")
    if opt.scout == 1:
        A("  s_mul_i32 s27, s26, 57")
        A("  s_lshr_b32 s27, s27, 9")
        A("  s_mul_i32 s27, s27, 9")
        A("  s_sub_u32 s26, s26, s27")
        A("  s_lshl_b32 s26, s26, 13")
        A("  v_lshl_add_u32 v28, v8, 7, s26")
    else:
        A("  s_cmp_ge_u32 s26, 18")
        A("  s_cselect_b32 s27, 14, 0")
        A("  s_sub_u32 s26, s26, s27")
        A("  s_lshl_b32 s26, s26, 12")
        A("  v_and_b32 v28, 31, v8")
        A("  v_lshl_add_u32 v28, v28, 7, s26")
    A(f"  s_mov_b32 s3, {woff(0, 0)}")

def srd_consts(A, opt, prod=False):
    A(f"  s_mov_b32 s10, {XBYTES}\n  s_mov_b32 s11, 0x00020000")
    A(f"  s_mov_b32 s15, 0x00020000")
    A("  s_mov_b32 s18, 0x60000\n  s_mov_b32 s19, 0x00020000")
    A("  s_mov_b32 s38, 256\n  s_mov_b32 s39, 0x00020000")
    A(f"  s_mov_b32 s74, {XBYTES}\n  s_mov_b32 s75, 0x00020000")
    A(f"  s_mov_b32 s93, {WS_FLAG}")
    A(f"  s_mov_b32 s94, {WS_FLAG + (36 << opt.fsh)}")
    A("  s_mov_b32 s92, 0")

def srd_bases(A, prod=False):
    if not prod: A("  s_waitcnt lgkmcnt(0)")
    A("  s_mov_b64 s[8:9], s[4:5]\n  s_mov_b64 s[16:17], s[54:55]\n  s_mov_b64 s[36:37], s[52:53]")
    A("  s_mov_b64 s[12:13], s[42:43]\n  s_mov_b64 s[72:73], s[42:43]")

def emit_body(A, opt, nq, em, pre, stmap, pre_lines):
    b = Body(opt); b.build(nq)
    em.age = opt.age
    log = []
    sched.COST["vst"] = opt.vstcost
    sched.COST["dma"] = 8
    sched.COST["dsw"] = opt.dswcost
    stalls = schedule(pre + b.base, em, budget=opt.budget, maxfill=opt.maxfill, lg_extra=opt.lgextra, log=log,
                      prefill=7, cooldown={'vst': opt.stcool, 'dma': opt.dmacool}, padwin=opt.padwin, maxbytes=opt.maxbytes, latscale=2.5)
    verify(pre + b.base, em.out)
    nm = sum(1 for i in em.out if i.kind == "mfma")
    sys.stderr.write(f"body{nq}: instrs {len(em.out)} mfma {nm} forced-cycles {stalls}\n")
    if opt.log:
        for l in log: sys.stderr.write(str(l) + "\n")
    ji = em.out.index(b.join)
    if em.out[ji - 1].kind == "wait": ji -= 1
    live = []
    for k, i in enumerate(em.out[:ji]):
        if i.kind != "dsr" or int(i.writes[0][1:]) < WR0: continue
        w = set(i.writes)
        later_w = any(j.kind == "dsr" and set(j.writes) & w for j in em.out[k + 1:ji])
        used_before = any(j.kind == "mfma" and set(j.reads) & w for j in em.out[k + 1:ji])
        if not later_w and not used_before: live.append(i.text)
    opt.join_reads = live
    assert all(k < ji for k, i in enumerate(em.out) if i.kind == "dma")
    lines = list(pre_lines)
    L = lines.append
    nb = 0
    for k, i in enumerate(em.out):
        if k == ji: L("L_join:")
        for t in i.text.split("\n"): L(t.strip() if t.strip().endswith(":") else "  " + t.strip() + (f"   ; {i.tag}" if i.tag else ""))
        if opt.stamps and i.kind == "bar":
            if nb in stmap:
                if opt.probe is None: L("  s_waitcnt lgkmcnt(0)")
                stamp(L, opt, stmap[nb])
            nb += 1
    if opt.stamps:
        stamp(L, opt, 6)
        L("  s_waitcnt vmcnt(0)")
        stamp(L, opt, 7)
        stamp_out(L, opt)
    L("  s_endpgm")
    lines = [x for l in lines for x in l.split("\n")]
    sizes = insn_sizes([re.sub(r"L_[hd]\w+", "L_pad1", l) for l in lines if not l.endswith(":")])
    total = sum(sizes)
    sys.stderr.write(f"body bytes {total}\n")
    npad = (total + 16) // 4096 if opt.pads else 0
    addr = 0; k = 0; placed = 0
    for l in lines:
        if l.endswith(":"):
            A(l); continue
        if placed < npad and addr >= 4096 * (placed + 1):
            placed += 1
            A(f"L_pad{placed}:")
            A(f"  s_cbranch_execz {'L_pad%d' % (placed + 1) if placed < npad else 'L_padret'}")
            addr += 4
        A(l); addr += sizes[k]; k += 1
    assert placed == npad

def insn_sizes(lines):
    import subprocess, tempfile, re, os
    src = '.amdgcn_target "amdgcn-amd-amdhsa--gfx950"\n.text\nL_pad1:\n' + "\n".join(lines) + "\n"
    open("_sz.s", "w").write(src)
    subprocess.check_call(["clang", "-x", "assembler", "-target", "amdgcn-amd-amdhsa", "-mcpu=gfx950", "-c", "_sz.s", "-o", "_sz.o"])
    out = subprocess.check_output(["llvm-objdump", "-d", "--mcpu=gfx950", "_sz.o"]).decode()
    res = []
    for l in out.splitlines():
        m = re.search(r"// [0-9A-F]{12}: ((?:[0-9A-F]{8} ?)+)", l)
        if m: res.append(4 * len(m.group(1).split()))
    assert len(res) == len(lines), (len(res), len(lines))
    return res

def win_base(A):
    A("  s_mul_hi_u32 s23, s21, 153391690")
    A("  s_mul_i32 s24, s23, 28")
    A("  s_sub_u32 s24, s21, s24")
    A("  s_mul_i32 s23, s23, 688128")
    A("  s_mul_i32 s24, s24, 3072")
    A(f"  s_add_u32 s{SO[0]}, s23, s24")

def x_row(A, r):
    A(f"  s_add_u32 m0, s24, {3072*r}")
    if r % 4: A("  s_add_u32 s25, s25, 86016")
    else: A(f"  s_mov_b32 s25, s{SO[r // 2]}")

def x_load(A, opt, r, k):
    A(f"  buffer_load_dwordx4 v{XO+2*k+(r%2)}, s[8:11], s25 offen offset:{1024*k}{opt.xf} lds")

def x_frags(A, g, step=12288):
    for tt in range(2):
        for s in range(6):
            A(f"  ds_read_b128 {rng('a', X(2*g + tt, s), 4)}, v{FA+s%2} offset:{(s//2)*128 + tt*6144 + g*step}")

def win_addrs(A):
    A(f"  v_add_u32 v{VL[1]}, 0x10000, v{VL[0]}")
    A(f"  v_add_u32 v{VL[2]}, 0x20000, v{VL[0]}")
    A("  v_and_b32 v9, 15, v8")
    A("  v_mul_u32_u24 v10, 384, v9")
    A("  v_add_u32 v10, s24, v10")
    A("  v_bfe_u32 v11, v8, 1, 3")
    A("  v_lshrrev_b32 v12, 4, v8")
    A("  v_xor_b32 v11, v11, v12")
    A(f"  v_lshl_add_u32 v{FA}, v11, 4, v10")
    A("  v_xor_b32 v11, 4, v11")
    A(f"  v_lshl_add_u32 v{FA+1}, v11, 4, v10")
    A(f"  s_add_u32 s{SO[1]}, s{SO[0]}, 172032")
    A(f"  s_add_u32 s{SO[3]}, s{SO[2]}, 172032")

def out_addrs(A):
    A("  v_bfe_u32 v9, v8, 3, 1")
    A("  v_mul_u32_u24 v9, 86016, v9")
    A("  v_and_b32 v10, 7, v8")
    A("  v_mul_u32_u24 v10, 384, v10")
    A("  v_and_b32 v11, 48, v8")
    A(f"  v_add3_u32 v{VO}, v9, v10, v11")
    A("  v_bfe_u32 v9, v8, 3, 2")
    A("  v_mul_u32_u24 v9, 86016, v9")
    A("  v_and_b32 v10, 6, v8")
    A("  v_mul_u32_u24 v10, 384, v10")
    A("  v_and_b32 v11, 1, v8")
    A("  v_lshlrev_b32 v11, 4, v11")
    A("  v_and_b32 v12, 32, v8")
    A("  v_or_b32 v11, v11, v12")
    A(f"  v_add3_u32 v{VO2}, v9, v10, v11")

def main_kernel(opt):
    o = []
    A = o.append
    A(f".globl {KN}\n.p2align 12\n.p2align 8\n.type {KN},@function\n{KN}:")
    stamp(A, opt, 0)
    A("  s_load_dwordx4 s[4:7], s[0:1], 0")
    A("  s_load_dwordx4 s[40:43], s[0:1], 16")
    A("  s_load_dwordx4 s[52:55], s[0:1], 32")
    A("  v_lshrrev_b32 v7, 6, v0")
    A("  s_cmp_ge_u32 s2, 256")
    A("  s_cbranch_scc1 L_end")
    A("  v_readfirstlane_b32 s20, v7")
    A("  v_and_b32 v8, 63, v0")
    A(f"  v_lshlrev_b32 v{VL[0]}, 4, v8")
    A("  s_cmp_lg_u32 s20, 3")
    A("  s_cbranch_scc1 L_window")
    A("  s_cmp_ge_u32 s2, 72")
    A("  s_cbranch_scc1 L_pref")
    A("  s_mov_b32 s30, 221184\n  s_mov_b32 s31, 0x00020000\n  s_mov_b32 s35, 0x00020000\n  s_mov_b32 s10, 9216")
    fold(A, opt)
    nl = [0]
    def fill(lo, nbytes):
        nl[0] += 1
        A(f"  s_mov_b32 m0, {lo}")
        A("  s_nop 0")
        A(f"L_fill{nl[0]}:")
        for k in range(3):
            A(f"  buffer_load_dwordx4 v{VL[0]}, s[16:19], m0 offen offset:{1024*k} sc1 lds")
        A("  s_add_u32 m0, m0, 3072")
        A(f"  s_cmp_lt_u32 m0, {lo + nbytes}")
        A(f"  s_cbranch_scc1 L_fill{nl[0]}")
    def hdma(mat, t, n=1):
        fill(woff(mat, t), 12288 * n)
    ROLE[0] = "m"
    A(".p2align 6")
    A("L_window:")
    A("  s_mul_i32 s21, s2, 3")
    A("  s_add_u32 s21, s21, s20")
    win_base(A)
    A(f"  s_add_u32 s{SO[2]}, s{SO[0]}, 344064")
    A("  s_mul_i32 s24, s20, 24576")
    A(f"  s_mov_b32 s14, {XBYTES}")
    stage_offsets(A, 0, XO)
    srd_consts(A, opt)
    srd_bases(A)
    if opt.fastp:
        A(f"  s_sub_u32 s26, s2, {opt.p0}")
        A(f"  s_cmp_lt_u32 s26, {opt.pn - opt.p0}")
        A("  s_cselect_b64 vcc, -1, 0")
        if opt.heavyc:
            A("  s_cmp_ge_u32 s2, 224")
            A("  s_cselect_b64 vcc, -1, vcc")
    if opt.bh:
        A("  s_cmp_ge_u32 s2, 72")
        A("  s_cbranch_scc1 L_nobh")
        A("  s_barrier")
        A("L_nobh:")
    n = 0
    if opt.fstamp: stamp(A, opt, 1)
    for r in range(8 - opt.hold):
        if r == 4:
            A(f"  s_cmp_lt_u32 s2, {opt.deep}")
            A("  s_cbranch_scc1 L_x4")
        x_row(A, r)
        for k in range(3):
            w = opt.xwin if n < opt.xsw else opt.xwin2
            if opt.qn and n == opt.qat:
                A(f"  s_cmp_ge_u32 s2, {opt.qn}")
                A("  s_cbranch_scc1 L_noq")
                A("  s_barrier")
                A("L_noq:")
            if n >= w:
                if opt.fastp > w: A(f"  s_cbranch_vccnz L_xs{n}")
                A(f"  s_waitcnt vmcnt({w-1})")
                if opt.fastp > w:
                    A(f"L_xs{n}:")
                    if n >= opt.fastp: A(f"  s_waitcnt vmcnt({opt.fastp-1})")
            if n == opt.bxn:
                if opt.split:
                    A("  s_sub_u32 s26, s2, 36")
                    A("  s_cmp_lt_u32 s26, 36")
                    A("  s_cbranch_scc1 L_nobx")
                A("  s_barrier")
                A("L_nobx:")
            x_load(A, opt, r, k)
            n += 1
        if r == 1:
            win_addrs(A)
            out_addrs(A)
    if not opt.fstamp: stamp(A, opt, 1)
    if opt.bxn >= 24:
        if opt.pollh > opt.pollat:
            A(f"  s_waitcnt vmcnt({opt.pollh})")
            A("  s_cbranch_vccnz L_bx")
        A("L_x4:")
        A(f"  s_waitcnt vmcnt({opt.pollat})")
        A("L_bx:")
        A("  s_barrier")
    assert opt.pollat == 0 and opt.pollh <= 12 - 3 * opt.hold
    x_frags(A, 0)
    A(f"  s_cmp_lt_u32 s2, {opt.deep}")
    A("  s_cselect_b64 vcc, -1, 0")
    if opt.pads:
        A("  s_mov_b64 exec, 0")
        A("  s_branch L_pad1")
    else:
        A("  s_branch L_padret")
    A("L_deep:")
    for r in range(4, 8 - opt.hold):
        x_row(A, r)
        for k in range(3): x_load(A, opt, r, k)
    A("  s_branch L_deepb")
    ROLE[0] = "h"
    A(".p2align 6")
    A("L_pref:")
    srd_consts(A, opt)
    helper_misc(A, opt)
    srd_bases(A)
    if opt.pref:
        A("  s_getpc_b64 s[48:49]")
        A("L_pc:")
        A(f"  s_sub_u32 s48, s48, L_pc-{KN}")
        A("  s_subb_u32 s49, s49, 0")
        A("  s_lshr_b32 s26, s2, 3")
        A(f"  s_and_b32 s26, s26, {opt.prefn - 1}")
        A("  s_lshl_b32 s26, s26, 13")
        A("  s_add_u32 s26, s26, 1024")
        A("  v_lshl_add_u32 v9, v8, 7, s26")
        A(f"  v_min_u32 v9, L_last-{KN}, v9")
        A("  global_load_dword v29, v9, s[48:49]")
    A("  s_add_u32 s21, s2, 1312")
    A("  s_and_b32 s22, s21, 1")
    A("  s_lshr_b32 s21, s21, 1")
    win_base(A)
    A("  s_mul_i32 s22, s22, 344064")
    A(f"  s_add_u32 s{SO[2]}, s{SO[0]}, 344064")
    A(f"  s_sub_u32 s{SO[2]}, s{SO[2]}, s22")
    A(f"  s_add_u32 s{SO[0]}, s{SO[0]}, s22")
    A("  s_mov_b32 s24, 49152")
    stage_offsets(A, 0, XO)
    A("  s_cmp_lt_u32 s2, 224")
    A("  s_cbranch_scc1 L_loader")
    n = 0
    for r in range(4, 8):
        A(f"  s_mov_b32 m0, {73728 + 3072*(r-4)}")
        A(f"  s_add_u32 s25, s{SO[2]}, {86016*(r%4)}")
        for k in range(3):
            if n >= opt.cwin: A(f"  s_waitcnt vmcnt({opt.cwin-1})")
            x_load(A, opt, r, k); n += 1
    win_addrs(A)
    out_addrs(A)
    A("  s_branch L_loader")
    ROLE[0] = "m"
    A(".p2align 12")
    pl = []
    P = pl.append
    P("L_padret:")
    if opt.pads: P("  s_mov_b64 exec, -1")
    P("  s_waitcnt lgkmcnt(0)")
    stamp(P, opt, 2)
    P("  s_barrier")
    stamp(P, opt, 3)
    emit_body(A, opt, 2, Emitter(), [], {3: 4, 4: 5}, pl)
    A(".p2align 6")
    ROLE[0] = "h"
    A("L_loader:")
    A("  s_barrier")
    if opt.split:
        A("L_nonce:")
        A("  buffer_load_dwordx2 v[14:15], off, s[36:39], 0 sc1")
        bound(A, "L_nonce")
        A("  s_waitcnt vmcnt(0)")
        A("  v_cmp_eq_u32 vcc, 0, v14")
        A("  s_cbranch_vccnz L_nonce")
        A("L_nonce_x:")
        A("  buffer_load_dwordx2 v[12:13], v2, s[16:19], s93 offen sc1")
    else:
        check_issue(A)
    if opt.escout:
        A("  buffer_load_dword v29, v28, s[16:19], s3 offen sc1")
        A("  s_waitcnt vmcnt(1)")
        A("  s_branch L_eval")
    spin_first(A, opt)
    if not opt.fstamp: stamp(A, opt, 3)
    hdma(0, 0)
    A("  s_cmp_eq_u64 vcc, 0")
    A("  s_cbranch_scc1 L_pollB_x")
    spin_flags(A, "L_pollB", "s93", opt.sleep)
    e = 0
    if opt.scout and not opt.escout:
        A("  buffer_load_dword v29, v28, s[16:19], s3 offen sc1"); e = 1
    if opt.ahead:
        hdma(0, 1, 2)
        A("  s_waitcnt vmcnt(24) lgkmcnt(0)")
        if not opt.fstamp: stamp(A, opt, 4)
        A("  s_barrier")
        hdma(0, 3)
        A("  s_waitcnt vmcnt(24)")
        A("  s_barrier")
        hdma(0, 4, 2)
        A("  buffer_load_dwordx2 v[12:13], v2, s[16:19], s94 offen sc1")
        A("  buffer_load_dword v29, v28, s[16:19], 0 offen sc1")
        A("  s_waitcnt vmcnt(38)")
        A("  s_barrier")
        if opt.cx2:
            A("  s_cmp_lt_u32 s2, 224")
            A("  s_cbranch_scc1 L_nox")
            nb4 = 4 if opt.cx2 == 1 else 2
            for r in range(4):
                if r == nb4:
                    A(f"  s_waitcnt vmcnt({26 + 3*nb4})")
                    A("  s_barrier")
                x_row(A, r)
                for k in range(3): x_load(A, opt, r, k)
            if nb4 == 4:
                A("  s_waitcnt vmcnt(38)")
                A("  s_barrier")
            A("  s_waitcnt vmcnt(13)")
            A("  s_branch L_nox2")
            A("L_nox:")
        A("  s_waitcnt vmcnt(26)")
        A("  s_barrier")
        A("  s_waitcnt vmcnt(1)")
        A("L_nox2:")
        A("  v_cmp_ne_u64 vcc, v[12:13], v[14:15]")
        A("  s_cbranch_vccz L_pollN_x")
        spin_flags(A, "L_pollN", "s94", opt.sleep)
    else:
        hdma(0, 1)
        A(f"  s_waitcnt vmcnt({12+e}) lgkmcnt(0)")
        if not opt.fstamp: stamp(A, opt, 4)
        A("  s_barrier")
        hdma(0, 2)
        A("  s_waitcnt vmcnt(12)")
        A("  s_barrier")
        hdma(0, 3, 2)
        A("  s_waitcnt vmcnt(24)")
        A("  s_barrier")
        hdma(0, 5)
        if opt.nearly:
            A("  buffer_load_dwordx2 v[12:13], v2, s[16:19], s94 offen sc1")
            A("  buffer_load_dword v29, v28, s[16:19], 0 offen sc1")
            A("  s_waitcnt vmcnt(26)")
            A("  s_barrier")
            A("  s_waitcnt vmcnt(1)")
            A("  v_cmp_ne_u64 vcc, v[12:13], v[14:15]")
            A("  s_cbranch_vccz L_pollN_x")
            spin_flags(A, "L_pollN", "s94", opt.sleep)
        else:
            A("  s_waitcnt vmcnt(24)")
            A("  s_barrier")
            A("  buffer_load_dword v29, v28, s[16:19], 0 offen sc1")
            spin_flags(A, "L_pollN", "s94", opt.sleep)
            A("  s_waitcnt vmcnt(0)")
    if not opt.cx2:
        A("  s_cmp_lt_u32 s2, 224")
        A("  s_cbranch_scc1 L_nox")
        for r in range(4):
            x_row(A, r)
            for k in range(3): x_load(A, opt, r, k)
        A("L_nox:")
    A("  s_barrier")
    A("  s_cmp_lg_u32 s2, 0")
    A("  s_cbranch_scc1 L_noep")
    A("  s_mov_b64 exec, 1")
    A("  buffer_store_dwordx2 v[6:7], off, s[16:19], s95 sc1")
    A("  s_mov_b64 exec, -1")
    A("L_noep:")
    fill(0, 24576 - 1024 * opt.nshare)
    fill(24576, 24576 - 1024 * opt.nshare)
    A("  s_cmp_lt_u32 s2, 224")
    A("  s_cbranch_scc1 L_nofr")
    x_frags(A, 1, 24576)
    A(f"  s_waitcnt vmcnt({2 * (24 - opt.nshare)}) lgkmcnt(0)")
    x_frags(A, 0)
    A("  s_waitcnt lgkmcnt(0)")
    for n, t in enumerate(opt.join_reads):
        if n == 12: A("  s_waitcnt lgkmcnt(0)")
        A("  " + t)
    A("L_nofr:")
    fill(49152, 24576 - 1024 * opt.nshare)
    A("  s_cmp_ge_u32 s2, 224")
    A("  s_cbranch_scc1 L_late")
    if not opt.fstamp: stamp(A, opt, 5)
    A("  s_waitcnt vmcnt(0)")
    A("  s_barrier")
    stamp_out(A, opt)
    A("L_end:")
    A("  s_endpgm")
    A("L_late:")
    if not opt.fstamp: stamp(A, opt, 5)
    A("  s_mov_b64 vcc, -1")
    A("  s_waitcnt lgkmcnt(0)")
    A("  s_branch L_join")
    A("L_last:")
    A("  s_endpgm")
    return "\n".join(o)

def main():
    ap = argparse.ArgumentParser()
    ap.add_argument("--ring", type=int, default=12)
    ap.add_argument("--dslead", type=float, default=12.0)
    ap.add_argument("--split", type=int, default=0)
    ap.add_argument("--qn", type=int, default=36)
    ap.add_argument("--qat", type=int, default=6)
    ap.add_argument("--deep", type=int, default=72)
    ap.add_argument("--xwat3", type=int, default=164)
    ap.add_argument("--dmacool", type=int, default=2)
    ap.add_argument("--cskip", type=int, default=0)
    ap.add_argument("--nshare", type=int, default=12)
    ap.add_argument("--cx2", type=int, default=2)
    ap.add_argument("--x2late", type=int, default=1)
    ap.add_argument("--heavyc", type=int, default=1)
    ap.add_argument("--pollh", type=int, default=3)
    ap.add_argument("--ahead", type=int, default=1)
    ap.add_argument("--nearly", type=int, default=1)
    ap.add_argument("--hold", type=int, default=2)
    ap.add_argument("--holdat", type=int, default=36)
    ap.add_argument("--pairc", type=int, default=6)
    ap.add_argument("--mixed", type=int, default=1)
    ap.add_argument("--escout", type=int, default=1)
    ap.add_argument("--blead", type=int, default=14)
    ap.add_argument("--b4c", type=int, default=4)
    ap.add_argument("--olate", type=int, default=2)
    ap.add_argument("--stlead", type=float, default=80.0)
    ap.add_argument("--vstcost", type=int, default=8)
    ap.add_argument("--stcool", type=int, default=6)
    ap.add_argument("--sins", type=int, default=6)
    ap.add_argument("--b4blk", type=int, default=9)
    ap.add_argument("--b1at", type=int, default=5)
    ap.add_argument("--b2at", type=int, default=17)
    ap.add_argument("--b3at", type=int, default=29)
    ap.add_argument("--fastp", type=int, default=8)
    ap.add_argument("--pollat", type=int, default=0)
    ap.add_argument("--fsh", type=int, default=5)
    ap.add_argument("--wf", default="")
    ap.add_argument("--bh", type=int, default=1)
    ap.add_argument("--pads", type=int, default=1)
    ap.add_argument("--maxbytes", type=int, default=16)
    ap.add_argument("--age", type=int, default=10)
    ap.add_argument("--padwin", type=int, default=8)
    ap.add_argument("--ndefer", type=int, default=3)
    ap.add_argument("--xwat", type=int, default=154)
    ap.add_argument("--b5at", type=int, default=168)
    ap.add_argument("--xsw", type=int, default=24)
    ap.add_argument("--xwin2", type=int, default=8)
    ap.add_argument("--cwin", type=int, default=6)
    ap.add_argument("--o41", type=int, default=68)
    ap.add_argument("--dswcost", type=int, default=8)
    ap.add_argument("--bxn", type=int, default=24)
    ap.add_argument("--slowp", type=int, default=0)
    ap.add_argument("--slown", type=int, default=10)
    ap.add_argument("--pn", type=int, default=72)
    ap.add_argument("--p0", type=int, default=0)
    ap.add_argument("--fstamp", type=int, default=0)
    ap.add_argument("--swapmn", type=int, default=0)
    ap.add_argument("--scout", type=int, default=1)
    ap.add_argument("--prefn", type=int, default=4)
    ap.add_argument("--presleep", type=int, default=0)
    ap.add_argument("--pausen", type=int, default=0)
    ap.add_argument("--budget", type=int, default=8)
    ap.add_argument("--maxfill", type=int, default=5)
    ap.add_argument("--lgextra", type=int, default=1)
    ap.add_argument("--xwin", type=int, default=6)
    ap.add_argument("--xearly", type=int, default=24)
    ap.add_argument("--sleep", type=int, default=2)
    ap.add_argument("--pref", type=int, default=1)
    ap.add_argument("--stflags", default="sc1")
    ap.add_argument("--xf", default="nt")
    ap.add_argument("--log", action="store_true")
    ap.add_argument("--nostore", action="store_true")
    ap.add_argument("--stamps", action="store_true")
    ap.add_argument("--probe", default=None)
    ap.add_argument("--pwg", default="0,256")
    opt = ap.parse_args()
    if opt.probe:
        opt.probe = (opt.probe[0], int(opt.probe[1:])); opt.stamps = True
        opt.pwg = [int(x) for x in opt.pwg.split(",")]
    if opt.stflags: opt.stflags = " " + opt.stflags.replace(",", " ")
    if opt.wf: opt.wf = " " + opt.wf.replace(",", " ")
    if opt.stamps and not opt.probe: opt.prefn = 4
    if opt.xf: opt.xf = " " + opt.xf.replace(",", " ")
    print(HDR.rstrip())
    print(f"; @launch grid=(256,1,1) block=(256,1,1) lds=163840")
    print('.amdgcn_target "amdgcn-amd-amdhsa--gfx950"\n.text')
    print(main_kernel(opt))
    print('.section .rodata,"a"')
    print(f""".p2align 6
.amdhsa_kernel {KN}
  .amdhsa_next_free_vgpr {256 + 96 + 4 * opt.ring}
  .amdhsa_next_free_sgpr 96
  .amdhsa_accum_offset 256
  .amdhsa_group_segment_fixed_size 0
  .amdhsa_kernarg_size 48
  .amdhsa_user_sgpr_count 2
  .amdhsa_user_sgpr_kernarg_segment_ptr 1
  .amdhsa_system_sgpr_workgroup_id_x 1
.end_amdhsa_kernel""")

main()
```

```python
import sys, struct, argparse, re
import sched
from sched import *

KN = "standalone__swin_window_attn__vision_kernel"
XBYTES = 19267584
SCALE = (192 ** -0.5) * 1.4426950408889634
def f32bits(x): return struct.unpack("<I", struct.pack("<f", x))[0]
HDR = open("standalone__swin_window_attn__vision.s.ref").read().split("; Override launch")[0]
WS_STAMP = 0x1000000
WS_FLAG = 0x40000
WS_EPOCH = 0x50000

DOC = '''; ---------------------------------------------------------------------------------------------
;               v_mfma_f32_16x16x32_bf16; every accumulator layout is the next product's operand layout.
; Generated by a scheduling script (hazard distances and s_waitcnt counts are derived by it).
; ---------------------------------------------------------------------------------------------'''

def woff(mat, t):
    return 90112 + t * 12288 if mat == 0 else t * 12288

X = lambda tt, s: (tt * 6 + s) * 4
WR0 = 96
TA = lambda i: 16 + 4 * (i % 8)
TB = lambda q, s: 48 + (q * 6 + s) * 4
ST = lambda kt, qt: 96 + (qt * 4 + kt) * 4
PB = lambda qt, k: 160 + (qt * 2 + k) * 4
YB = lambda i, b, k: 192 + ((i % 3) * 4 + b * 2 + k) * 4
YB2 = lambda i, b, k: 48 + ((i % 3) * 4 + b * 2 + k) * 4
OB = lambda i: 240 + 4 * (i % 4)
VO = 1
VO2 = 0
VL = [3, 4, 5]
XO = 240
FA = 252
SO = [44, 45, 46, 47]
OSRD = ["s[12:15]", "s[72:75]"]

def mfma(d, ak, a, bk, b, first, tag=""):
    c = "0" if first else rng("v", d, 4)
    rd = R(ak, a, 4) + R(bk, b, 4) + ([] if first else R("v", d, 4))
    return Ins(f"v_mfma_f32_16x16x32_bf16 {rng('v', d, 4)}, {rng(ak, a, 4)}, {rng(bk, b, 4)}, {c}",
               "mfma", rd, R("v", d, 4), srcc=([] if first else R("v", d, 4)), tag=tag)

def valu(op, d, *src, kind="valu", lead=0.0):
    rd = [s for s in src if isinstance(s, str) and s[0] in "vs" and s[1:].isdigit()]
    return Ins(f"{op} {d}, " + ", ".join(str(s) for s in src), kind, rd, [d], lead=lead)

def cvt(d, s0, lead=0.0):
    return valu("v_cvt_pk_bf16_f32", f"v{d}", f"v{s0}", f"v{s0+1}", lead=lead)

def yb(c, b, k):
    return YB(c // 2, b, k) if c % 2 == 0 else YB2(c // 2, b, k)

class Body:
    def __init__(self, opt):
        self.opt = opt
        self.base = []
        self.nfrag = 0
        self.nob = 0
        self.nacc = 0
        self.npair = 0
        self.nd = []
        self.mf = []
    def add(self, i):
        self.base.append(i); return i
    def acc(self):
        self.nacc += 1
        return TA(self.nacc)
    def wtile(self, mat, r):
        res = []
        for s in range(6):
            slot = self.nfrag % self.opt.ring; self.nfrag += 1
            reg = WR0 + 4 * slot
            off = woff(mat, 0) + r * 6144 + s * 1024
            self.add(Ins(f"ds_read_b128 {rng('a', reg, 4)}, v{VL[off >> 16]} offset:{off & 0xffff}", "dsr",
                         [f"v{VL[off >> 16]}", f"L:{mat}:{r // 2}"], R("a", reg, 4), lead=self.opt.dslead))
            res.append(reg)
        return res
    def allred(self, op, x, y):
        for sw in ("v_permlane32_swap_b32", "v_permlane16_swap_b32"):
            self.add(valu("v_mov_b32", y, x))
            self.add(Ins(f"{sw} {x}, {y}", "perm", [x, y], [x, y]))
            self.add(valu(op, x, x, y))
    def softmax(self, qt):
        vals = [ST(kt, qt) + r for kt in range(4) for r in range(4)]
        t0 = 7 + 4 * (qt % 2)
        m0, m1, l0, l1 = (f"v{t0+i}" for i in range(4))
        self.add(valu("v_max3_f32", m0, f"v{vals[0]}", f"v{vals[1]}", f"v{vals[2]}"))
        for k in range(3, 15, 2):
            self.add(valu("v_max3_f32", m0, m0, f"v{vals[k]}", f"v{vals[k+1]}"))
        self.add(valu("v_max_f32", m0, m0, f"v{vals[15]}"))
        self.allred("v_max_f32", m0, m1)
        for k, v in enumerate(vals):
            self.add(valu("v_sub_f32", f"v{v}", f"v{v}", m0))
            self.add(valu("v_exp_f32", f"v{v}", f"v{v}", kind="trans"))
            if k == 1: self.add(valu("v_add_f32", l0, f"v{vals[0]}", f"v{v}"))
            if k > 1: self.add(valu("v_add_f32", l0, l0, f"v{v}"))
        self.allred("v_add_f32", l0, l1)
        self.add(valu("v_rcp_f32", l0, l0, kind="trans"))
        for k in range(2):
            for d in range(4):
                s = ST(2 * k, qt) + 2 * d
                self.add(valu("v_mul_f32", f"v{s}", f"v{s}", l0))
                self.add(valu("v_mul_f32", f"v{s+1}", f"v{s+1}", l0))
                self.add(cvt(PB(qt, k) + d, s))
    def Tchain(self, r, w, g, q):
        acc = self.acc()
        for s in range(6):
            m = self.add(mfma(acc, "a", w[s], "a", X(2 * g + q, s), s == 0, tag=f"T{r}.{2*g+q}"))
            self.mf.append(m)
            if g == 1 and r == 0 and q == 0 and s == 0: self.join = m
        for d in range(2): self.add(cvt(TB(q, r // 2) + 2 * (r % 2) + d, acc + 2 * d))
    def Oblk(self, c, qt):
        ob = OB(self.nob); self.nob += 1
        L = self.opt.stlead; fl = self.opt.stflags
        for b in range(2):
            acc = self.acc()
            for k in range(2):
                self.add(mfma(acc, "v", yb(c, b, k), "v", PB(qt, k), k == 0, tag=f"O{c}.{qt}"))
            for d in range(2): self.add(cvt(ob + 2 * b + d, acc + 2 * d, lead=L))
        if not self.opt.nostore:
            txt = f"buffer_store_dwordx4 {rng('v', ob, 4)}, v{VO}, {OSRD[qt // 2]}, s{SO[qt]} offen offset:{64*c}{fl}"
            if qt < 2 and self.opt.cskip: txt = f"s_cbranch_vccnz L_hs{self.nob}\n{txt}\nL_hs{self.nob}:"
            self.add(Ins(txt, "vst", R("v", ob, 4) + [f"v{VO}"], [], lead=L))
    def Opair(self, c, g):
        par = self.npair % 2; self.npair += 1
        ob = 240 + 8 * par if not self.opt.mixed else 240 + 8 * par
        L = self.opt.stlead; fl = self.opt.stflags
        accs = []
        for q in range(2):
            for b in range(2):
                acc = self.acc(); accs.append(acc)
                for k in range(2):
                    self.add(mfma(acc, "v", yb(c, b, k), "v", PB(2 * g + q, k), k == 0, tag=f"O{c}.{2*g+q}"))
                for d in range(2): self.add(cvt(ob + 4 * q + 2 * b + d, acc + 2 * d, lead=L))
        for d in range(4):
            x, y = f"v{ob+d}", f"v{ob+4+d}"
            self.add(Ins(f"v_permlane16_swap_b32 {x}, {y}", "perm", [x, y], [x, y], lead=L))
        tmp = ST(par, 2 * g)
        def s1(dst):
            for d in range(4):
                self.add(Ins(f"v_cndmask_b32_dpp v{dst+d}, v{ob+4+d}, v{ob+d}, vcc quad_perm:[0,0,2,2] row_mask:0xf bank_mask:0xf",
                             "perm", [f"v{ob+4+d}", f"v{ob+d}", "vcc"], [f"v{dst+d}"], lead=L))
        def s2(dst):
            for d in range(4):
                self.add(Ins(f"v_cndmask_b32_dpp v{dst+d}, v{ob+d}, v{ob+4+d}, vcc quad_perm:[1,1,3,3] row_mask:0xf bank_mask:0xf",
                             "perm", [f"v{ob+4+d}", f"v{ob+d}", "vcc"], [f"v{dst+d}"], lead=L))
        def st(reg, odd):
            if self.opt.nostore: return
            self.add(Ins(f"buffer_store_dwordx4 {rng('v', reg, 4)}, v{VO2}, {OSRD[g]}, s{SO[2*g]} offen offset:{64*c + 384*odd}{fl}",
                         "vst", R("v", reg, 4) + [f"v{VO2}"], [], lead=L))
        flip = Ins("s_not_b64 vcc, vcc", "salu", ["vcc"], ["vcc"], lead=L)
        if par == 0:
            s1(tmp); st(tmp, 0); self.add(flip); s2(ob + 4); st(ob + 4, 1)
        else:
            s2(tmp); st(tmp, 1); self.add(flip); s1(ob); st(ob, 0)
    def Oany(self, c, qt):
        if c >= self.opt.pairc:
            if qt % 2 == 1: self.Opair(c, qt // 2)
        else:
            self.Oblk(c, qt)
    def bar(self, tiles, after, text="s_barrier", reads=()):
        return self.add(Ins(text, "bar", ["BAR"] + list(reads), ["BAR"] + [f"L:{m}:{t}" for m, t in tiles], after=after))

    def build(self, nq):
        opt = self.opt
        allN = [(1, tn) for tn in range(6)]
        for g in range(2):
            for c in range(6):
                if g == 0:
                    if c in (1, 2, 3):
                        bb = self.bar([(0, c)], self.mf[24 * c - opt.blead]); bb.lead = 500
                        if c == 2: self.b2 = bb
                    if c == 4:
                        self.bar([(0, 4), (0, 5)], self.mf[96 - opt.blead])
                        self.add(Ins("s_cbranch_vccnz L_deep\nL_deepb:", "salu", ["s25"], ["m0", "s25"], after=self.b2, lead=300))
                        for r in range(8 - opt.hold, 8):
                            self.add(Ins(f"s_add_u32 m0, s24, {3072*r}", "salu", [], ["m0"], after=self.b2, lead=200))
                            self.add(Ins("s_add_u32 s25, s25, 86016", "salu", ["s25"], ["s25"], after=self.b2, lead=200))
                            for k in range(3):
                                self.add(Ins(f"buffer_load_dwordx4 v{XO+2*k+(r%2)}, s[8:11], s25 offen offset:{1024*k}{opt.xf} lds", "dma",
                                             ["m0", "s25", f"v{XO+2*k+(r%2)}"], [f"XD{r}{k}"], lead=200))
                if g == 1 and c == opt.b4c: self.bar(allN, self.mf[-1], "s_barrier", reads=[f"ND{hh}{k}" for hh in range(8) for k in range(3)])
                if c < 5:
                    for b in range(2):
                        w = self.wtile(0, 2 * c + b)
                        for q in range(2): self.Tchain(2 * c + b, w, g, q)
                else:
                    w = [self.wtile(0, 10), self.wtile(0, 11)]
                    for q in range(2):
                        for b in range(2): self.Tchain(10 + b, w[b], g, q)
            def schain(kt, q):
                for s in range(6):
                    m = self.add(mfma(ST(kt, 2 * g + q), "a", X(kt, s), "v", TB(q, s), s == 0, tag=f"S{kt}.{2*g+q}"))
                    if g == 0: self.mf.append(m)
            if g == 0:
                for q in range(2):
                    for kt in range(2): schain(kt, q)
                def xl(tt, cnt, at):
                    self.add(Ins(f"s_waitcnt vmcnt({cnt})", "salu", [], [f"XW{tt}", "m0"], after=self.mf[at], lead=100))
                    for s in range(6):
                        self.add(Ins(f"ds_read_b128 {rng('a', X(tt, s), 4)}, v{FA+s%2} offset:{(s//2)*128 + tt*6144}", "dsr",
                                     [f"XW{tt}", f"v{FA+s%2}"], R("a", X(tt, s), 4), lead=100))
                def nfill(hh, at, step):
                    xr = [r for s in range(6) for r in R("a", X(hh // 2, s), 4)] if hh >= 4 else []
                    self.add(Ins(f"s_add_u32 m0, s24, {3072*hh}", "salu", xr, ["m0"], after=self.mf[at], lead=400))
                    for k in range(3):
                        self.nd.append(self.add(Ins(f"buffer_load_dwordx4 v{VL[0]}, s[16:19], m0 offen offset:{1024*k} sc1 lds", "dma",
                                     ["m0"], [f"ND{hh}{k}"], after=self.mf[at + k * step], lead=400)))
                for hh in range(4): nfill(hh, opt.n0at + 3 * opt.n0step * hh, opt.n0step)
                xl(2, 18, opt.xwat)
                xl(3, 12, opt.xwat3)
                schain(2, 0); schain(2, 1)
                for hh in range(4, 8): nfill(hh, opt.xwat3 + (11 if hh >= 6 else 1), 0)
                schain(3, 0); self.softmax(0)
                schain(3, 1); self.softmax(1)
            else:
                for q in range(2):
                    for kt in range(4): schain(kt, q)
                    self.softmax(2 + q)
        pos = {}
        def put(c, n, blk): pos.setdefault((c, n), []).append(blk)
        for c in range(5):
            put(c + 1, 2, (c, 0)); put(c + 1, 4, (c, 1))
        late = opt.olate
        sl = [(late + i // 4, (1, 3, 5, 7)[i % 4]) for i in range(40)]
        i = 0
        for c in range(5):
            for qt in (2, 3):
                while sl[i] < (c + 1, 2): i += 1
                put(*sl[i], (c, qt)); i += 1
        for c in range(6):
            n = 0
            for b in range(2):
                w = self.wtile(1, 2 * c + b)
                for kt in range(4):
                    for blk in pos.get((c, n), []): self.Oany(*blk)
                    acc = self.acc()
                    for s in range(6):
                        self.add(mfma(acc, "a", X(kt, s), "a", w[s], s == 0, tag=f"Y{2*c+b}.{kt}"))
                    for d in range(2): self.add(cvt(yb(c, b, kt // 2) + 2 * (kt % 2) + d, acc + 2 * d))
                    n += 1
        for key in sorted(pos):
            if key[0] >= 6:
                for blk in pos[key]: self.Oany(*blk)
        for qt in range(4): self.Oany(5, qt)

_ph = [0]
ROLE = ["h"]
def stamp(A, opt, k):
    if opt.probe is not None:
        if (ROLE[0], k) == opt.probe or (k == 0 and opt.probe[1] == 0):
            A("  s_memrealtime s[56:57]")
            A("  s_waitcnt lgkmcnt(0)")
        return
    if opt.stamps:
        A(f"  s_memrealtime s[{56+2*k}:{57+2*k}]")
        A(f"  s_memtime s[{76+2*k}:{77+2*k}]")
        A(f"  s_waitcnt lgkmcnt(0)")

def stamp_out(A, opt):
    if opt.probe is not None:
        if ROLE[0] != opt.probe[0]: return
        _ph[0] += 1; n = _ph[0]
        A(f"  s_sub_u32 s60, s2, {opt.pwg[0]}")
        A(f"  s_cmp_ge_u32 s60, {opt.pwg[1] - opt.pwg[0]}")
        A(f"  s_cbranch_scc1 L_hx{n}")
        if ROLE[0] == "m":
            A("  s_cmp_eq_u32 s20, 3")
            A(f"  s_cbranch_scc1 L_hx{n}")
        A(f"L_hold{n}:")
        A("  s_memrealtime s[58:59]")
        A("  s_waitcnt lgkmcnt(0)")
        A("  s_sub_u32 s60, s58, s56")
        A("  s_cmp_lt_u32 s60, 1500")
        A(f"  s_cbranch_scc1 L_hold{n}")
        A(f"L_hx{n}:")
        return
    if not opt.stamps: return
    for k in range(8): A(f"  v_mov_b32 v{16+k}, s{56+2*k}")
    for k in range(8): A(f"  v_mov_b32 v{24+k}, s{76+2*k}")
    A(f"  s_lshl_b32 s26, s2, 2\n  s_add_u32 s26, s26, s20\n  s_lshl_b32 s26, s26, 5\n  s_add_u32 s26, s26, {WS_STAMP}")
    A("  s_mov_b32 s18, 0x10000000")
    A("  v_mov_b32 v7, 0")
    A("  buffer_store_dwordx4 v[16:19], v7, s[16:19], s26 offen")
    A("  buffer_store_dwordx4 v[20:23], v7, s[16:19], s26 offen offset:16")
    A("  s_add_u32 s26, s26, 0x10000")
    A("  buffer_store_dwordx4 v[24:27], v7, s[16:19], s26 offen")
    A("  buffer_store_dwordx4 v[28:31], v7, s[16:19], s26 offen offset:16")

def bound(A, label):
    A("  s_add_u32 s92, s92, 1")
    A("  s_cmp_gt_u32 s92, 50000")
    A(f"  s_cbranch_scc1 {label}_x")

def check_issue(A):
    A("  buffer_load_dwordx2 v[14:15], off, s[36:39], 0 sc1")
    A("  buffer_load_dwordx2 v[12:13], v2, s[16:19], s93 offen sc1")

def spin_first(A, opt):
    if not opt.escout: A("  s_branch L_pollA_0")
    A("L_pollA:")
    A(f"  s_sleep {opt.sleep}")
    check_issue(A)
    bound(A, "L_pollA")
    A("L_pollA_0:")
    A("  s_waitcnt vmcnt(0)")
    A("L_eval:")
    A("  v_cmp_ne_u64 vcc, v[12:13], v[14:15]")
    A("  v_cmp_eq_u32 s[26:27], 0, v14")
    A("  s_nop 1")
    A("  s_or_b64 vcc, vcc, s[26:27]")
    A("  s_and_b32 s26, vcc_lo, 0x3f")
    A("  s_cbranch_scc1 L_pollA")
    A("L_pollA_x:")

def spin_flags(A, label, sreg, sleep):
    A(f"  s_branch {label}_0")
    A(f"{label}:")
    A(f"  s_sleep {sleep}")
    A(f"{label}_0:")
    A(f"  buffer_load_dwordx2 v[12:13], v2, s[16:19], {sreg} offen sc1")
    bound(A, label)
    A("  s_waitcnt vmcnt(0)")
    A("  v_cmp_ne_u64 vcc, v[12:13], v[14:15]")
    A(f"  s_cbranch_vccnz {label}")
    A(f"{label}_x:")

def stage_offsets(A, rowx, d0=16):
    for k in range(3):
        A(f"  v_add_u32 v9, {64*k}, v8")
        A("  v_mul_u32_u24 v9, 0xaab, v9")
        if rowx:
            A("  v_lshrrev_b32 v10, 16, v9")
            A(f"  v_mul_u32_u24 v10, {rowx}, v10")
        A("  v_lshrrev_b32 v9, 17, v9")
        A("  v_xor_b32 v9, v9, v8")
        if rowx:
            A("  v_xor_b32 v11, 4, v9")
            A(f"  v_lshl_add_u32 v{d0+2*k}, v9, 4, v10")
            A(f"  v_lshl_add_u32 v{d0+1+2*k}, v11, 4, v10")
        else:
            A(f"  v_lshlrev_b32 v{d0+2*k}, 4, v9")
            A(f"  v_xor_b32 v{d0+1+2*k}, 64, v{d0+2*k}")

def frag_addrs(A, jreg, base, dst=24):
    A(f"  v_mul_u32_u24 v10, 384, {jreg}")
    A(f"  v_add_u32 v10, {base}, v10")
    A(f"  v_bfe_u32 v11, {jreg}, 1, 3")
    A("  v_lshrrev_b32 v12, 5, v8")
    A("  v_xor_b32 v11, v11, v12")
    for m in range(4):
        A(f"  v_xor_b32 v13, {2*m}, v11")
        A(f"  v_lshl_add_u32 v{dst+m}, v13, 4, v10")

def fold(A, opt):
    SC = 73728
    A("  s_cmp_ge_u32 s2, 36")
    A("  s_cselect_b32 s51, 36, 0")
    A("  s_cselect_b64 vcc, -1, 0")
    A("  s_cselect_b32 s50, 768, 0")
    A("  s_cselect_b32 s21, 64, 36864")
    A("  s_cselect_b32 s24, 0, 384")
    A("  s_cselect_b32 s25, 18432, s10")
    A("  s_cselect_b32 s34, 73728, s30")
    A("  s_sub_u32 s51, s2, s51")
    A("  s_mul_i32 s48, s51, 43")
    A("  s_lshr_b32 s48, s48, 8")
    A("  s_mul_i32 s49, s48, 6")
    A("  s_sub_u32 s49, s51, s49")
    A("  s_mul_i32 s22, s49, 36864")
    A("  s_add_u32 s22, s22, s50")
    A("  s_mul_i32 s23, s48, s21")
    A("  s_add_u32 s23, s23, s24")
    stage_offsets(A, 768)
    A("  v_lshrrev_b32 v14, 2, v8")
    A("  v_mul_u32_u24 v14, 384, v14")
    A("  v_and_b32 v13, 3, v8")
    A("  v_lshl_add_u32 v14, v13, 4, v14")
    for k in range(3):
        if k: A(f"  v_add_u32 v14, 5120, v14")
        A(f"  v_cndmask_b32 v{144+2*k}, v{16+2*k}, v14, vcc")
        A(f"  v_cndmask_b32 v{145+2*k}, v{17+2*k}, v14, vcc")
    A("  s_waitcnt lgkmcnt(0)")
    A("  s_cmp_ge_u32 s2, 36")
    A("  s_mov_b64 s[28:29], s[6:7]")
    A("  s_cselect_b64 s[32:33], s[40:41], s[6:7]")
    def panel(sreg, lds, v0, srd, step):
        for r in range(4):
            A(f"  s_mov_b32 m0, {lds + 3072*r}")
            if r: A(f"  s_add_u32 {sreg}, {sreg}, {step}")
            else: A("  s_nop 0")
            for k in range(3):
                A(f"  buffer_load_dwordx4 v{v0+2*k+(r%2)}, {srd}, {sreg} offen offset:{1024*k}{opt.wf} lds")
    panel("s23", SC + 12288, 144, "s[32:35]", "s25")
    panel("s22", SC, 16, "s[28:31]", 9216)
    srd_consts(A, opt, True)
    srd_bases(A, True)
    A(f"  s_mov_b32 s95, {WS_EPOCH}")
    A("  buffer_load_dwordx2 v[6:7], off, s[16:19], s95 sc1")
    stamp(A, opt, 7)
    if opt.bh: A("  s_barrier")
    helper_misc(A, opt, True)
    A("  v_and_b32 v9, 0x13, v8")
    A("  v_and_b32 v10, 4, v8")
    A("  v_lshl_or_b32 v9, v10, 1, v9")
    A("  v_and_b32 v10, 8, v8")
    A("  v_lshrrev_b32 v10, 1, v10")
    A("  v_or_b32 v9, v9, v10")
    frag_addrs(A, "v9", SC)
    A("  v_and_b32 v9, 3, v8")
    A("  v_bfe_u32 v10, v8, 2, 2")
    A("  v_lshl_or_b32 v9, v10, 3, v9")
    A("  v_bfe_u32 v10, v8, 4, 1")
    A("  v_lshl_or_b32 v9, v10, 2, v9")
    frag_addrs(A, "v9", SC, 150)
    A("  v_bfe_u32 v9, v8, 4, 1")
    A("  v_mul_u32_u24 v9, 6144, v9")
    A("  v_and_b32 v10, 15, v8")
    A("  v_lshl_add_u32 v9, v10, 4, v9")
    A("  v_lshl_add_u32 v154, v12, 8, v9")
    A("  v_bfe_u32 v14, v8, 2, 2")
    A("  v_lshl_add_u32 v14, v12, 3, v14")
    A("  v_lshlrev_b32 v14, 6, v14")
    A("  v_bfe_u32 v13, v8, 4, 1")
    A("  v_lshl_add_u32 v14, v13, 3, v14")
    A("  v_and_b32 v13, 3, v8")
    A("  v_lshl_add_u32 v14, v13, 4, v14")
    A(f"  v_add_u32 v14, {SC + 12288}, v14")
    A("  s_mul_i32 s26, s48, 12288")
    A(f"  s_add_u32 s27, s26, {woff(0,0)}")
    A("  s_lshl_b32 s54, s49, 10")
    A("  s_cmp_ge_u32 s2, 36")
    A("  s_cselect_b32 s26, s26, s27")
    A(f"  s_cselect_b32 s27, 1.0, {f32bits(SCALE):#x}")
    A("  s_add_u32 s26, s26, s54")
    A(f"  s_lshl_b32 s54, s2, {opt.fsh}")
    A(f"  s_add_u32 s54, s54, {WS_FLAG}")
    if opt.fstamp: stamp(A, opt, 5)
    A("  s_waitcnt vmcnt(13)")
    if opt.fstamp: stamp(A, opt, 3)
    A("  s_cbranch_vccnz L_fold_tr")
    for s in range(12):
        A(f"  ds_read_b128 v[{80+4*s}:{83+4*s}], v{150+s%4} offset:{(s//4)*128 + 12288}")
    A("  s_branch L_fold_a")
    A("L_fold_tr:")
    for s in range(12):
        for jj in range(2):
            A(f"  ds_read_b64_tr_b16 v[{80+4*s+2*jj}:{81+4*s+2*jj}], v14 offset:{1024*s + 256*jj}")
        if s == 6: A("  s_waitcnt lgkmcnt(0)")
    A("L_fold_a:")
    A("  s_waitcnt vmcnt(1) lgkmcnt(0)")
    if opt.fstamp: stamp(A, opt, 4)
    for s in range(12):
        A(f"  ds_read_b128 v[{32+4*s}:{35+4*s}], v{24+s%4} offset:{(s//4)*128}")
    for s in range(12):
        c = "0" if s == 0 else "v[128:143]"
        A(f"  s_waitcnt lgkmcnt({11-s})")
        A(f"  v_mfma_f32_32x32x16_bf16 v[128:143], v[{32+4*s}:{35+4*s}], v[{80+4*s}:{83+4*s}], {c}")
    stamp(A, opt, 1)
    A("  s_waitcnt vmcnt(0)")
    A("  v_add_co_u32 v6, vcc, 2, v6")
    A("  s_nop 1")
    A("  v_addc_co_u32 v7, vcc, 0, v7, vcc")
    A("  v_or_b32 v6, 1, v6")
    A("  s_nop 5")
    for d in range(8):
        A(f"  v_mul_f32 v{128+2*d}, s27, v{128+2*d}")
        A(f"  v_mul_f32 v{129+2*d}, s27, v{129+2*d}")
        A(f"  v_cvt_pk_bf16_f32 v{32+d}, v{128+2*d}, v{129+2*d}")
        if d == 3: A(f"  buffer_store_dwordx4 v[32:35], v154, s[16:19], s26 offen sc1")
    A(f"  buffer_store_dwordx4 v[36:39], v154, s[16:19], s26 offen offset:512 sc1")
    A("  s_mov_b64 exec, 1")
    A("  s_cmp_lg_u32 s2, 0")
    A("  s_cbranch_scc1 L_fold_pub")
    A("  buffer_store_dwordx2 v[6:7], off, s[36:39], 0 sc1")
    A("  s_waitcnt vmcnt(1)")
    A("  s_branch L_fold_pub2")
    A("L_fold_pub:")
    A("  s_waitcnt vmcnt(0)")
    A("L_fold_pub2:")
    stamp(A, opt, 2)
    A("  buffer_store_dwordx2 v[6:7], off, s[16:19], s54 sc1")
    A("  s_mov_b64 exec, -1")
    if opt.qn:
        if opt.qn < 72:
            A(f"  s_cmp_ge_u32 s2, {opt.qn}")
            A("  s_cbranch_scc1 L_noq2")
        A("  s_barrier")
        A("L_noq2:")
    stamp(A, opt, 6)
    if opt.split:
        A("  v_mov_b32 v14, v6")
        A("  v_mov_b32 v15, v7")
        A("  s_cmp_ge_u32 s2, 36")
        A("  s_cbranch_scc1 L_nonce_x")
    A("  s_branch L_loader")

def helper_misc(A, opt, prod=False):
    A("  s_mov_b32 s14, 0")
    A(f"  v_mov_b32 v{VO}, 0")
    if prod:
        for k in range(6): A(f"  v_mov_b32 v{XO+k}, 0")
    A("  v_min_u32 v2, 35, v8")
    A(f"  v_lshlrev_b32 v2, {opt.fsh}, v2")
    A("  s_lshr_b32 s26, s2, 3")
    if opt.scout == 1:
        A("  s_mul_i32 s27, s26, 57")
        A("  s_lshr_b32 s27, s27, 9")
        A("  s_mul_i32 s27, s27, 9")
        A("  s_sub_u32 s26, s26, s27")
        A("  s_lshl_b32 s26, s26, 13")
        A("  v_lshl_add_u32 v28, v8, 7, s26")
    else:
        A("  s_cmp_ge_u32 s26, 18")
        A("  s_cselect_b32 s27, 14, 0")
        A("  s_sub_u32 s26, s26, s27")
        A("  s_lshl_b32 s26, s26, 12")
        A("  v_and_b32 v28, 31, v8")
        A("  v_lshl_add_u32 v28, v28, 7, s26")
    A(f"  s_mov_b32 s3, {woff(0, 0)}")

def srd_consts(A, opt, prod=False):
    A(f"  s_mov_b32 s10, {XBYTES}\n  s_mov_b32 s11, 0x00020000")
    A(f"  s_mov_b32 s15, 0x00020000")
    A("  s_mov_b32 s18, 0x60000\n  s_mov_b32 s19, 0x00020000")
    A("  s_mov_b32 s38, 256\n  s_mov_b32 s39, 0x00020000")
    A(f"  s_mov_b32 s74, {XBYTES}\n  s_mov_b32 s75, 0x00020000")
    A(f"  s_mov_b32 s93, {WS_FLAG}")
    A(f"  s_mov_b32 s94, {WS_FLAG + (36 << opt.fsh)}")
    A("  s_mov_b32 s92, 0")

def srd_bases(A, prod=False):
    if not prod: A("  s_waitcnt lgkmcnt(0)")
    A("  s_mov_b64 s[8:9], s[4:5]\n  s_mov_b64 s[16:17], s[54:55]\n  s_mov_b64 s[36:37], s[52:53]")
    A("  s_mov_b64 s[12:13], s[42:43]\n  s_mov_b64 s[72:73], s[42:43]")

def emit_body(A, opt, nq, em, pre, stmap, pre_lines):
    b = Body(opt); b.build(nq)
    em.age = opt.age
    log = []
    sched.COST["vst"] = opt.vstcost
    sched.COST["dma"] = 8
    sched.COST["dsw"] = opt.dswcost
    stalls = schedule(pre + b.base, em, budget=opt.budget, maxfill=opt.maxfill, lg_extra=opt.lgextra, log=log,
                      prefill=7, cooldown={'vst': opt.stcool, 'dma': opt.dmacool}, padwin=opt.padwin, maxbytes=opt.maxbytes, latscale=2.5)
    verify(pre + b.base, em.out)
    nm = sum(1 for i in em.out if i.kind == "mfma")
    sys.stderr.write(f"body{nq}: instrs {len(em.out)} mfma {nm} forced-cycles {stalls}\n")
    if opt.log:
        for l in log: sys.stderr.write(str(l) + "\n")
    ji = em.out.index(b.join)
    if em.out[ji - 1].kind == "wait": ji -= 1
    live = []
    for k, i in enumerate(em.out[:ji]):
        if i.kind != "dsr" or int(i.writes[0][1:]) < WR0: continue
        w = set(i.writes)
        later_w = any(j.kind == "dsr" and set(j.writes) & w for j in em.out[k + 1:ji])
        used_before = any(j.kind == "mfma" and set(j.reads) & w for j in em.out[k + 1:ji])
        if not later_w and not used_before: live.append(i.text)
    opt.join_reads = live
    assert all(k < ji for k, i in enumerate(em.out) if i.kind == "dma" and "s[8:11]" in i.text)
    assert all(k < ji for k, i in enumerate(em.out) if i.kind == "dma" and i.writes[0].startswith("ND"))
    opt.join_m0 = [i.text for i in em.out[:ji] if "m0" in i.writes and i.text.startswith("s_add")][-1]
    lines = list(pre_lines)
    L = lines.append
    nb = 0
    for k, i in enumerate(em.out):
        if k == ji: L("L_join:")
        for t in i.text.split("\n"): L(t.strip() if t.strip().endswith(":") else "  " + t.strip() + (f"   ; {i.tag}" if i.tag else ""))
        if opt.stamps and i.kind == "bar":
            if nb in stmap:
                if opt.probe is None: L("  s_waitcnt lgkmcnt(0)")
                stamp(L, opt, stmap[nb])
            nb += 1
    if opt.stamps:
        stamp(L, opt, 6)
        L("  s_waitcnt vmcnt(0)")
        stamp(L, opt, 7)
        stamp_out(L, opt)
    L("  s_endpgm")
    lines = [x for l in lines for x in l.split("\n")]
    sizes = insn_sizes([re.sub(r"L_[hd]\w+", "L_pad1", l) for l in lines if not l.endswith(":")])
    total = sum(sizes)
    sys.stderr.write(f"body bytes {total}\n")
    npad = (total + 16) // 4096 if opt.pads else 0
    addr = 0; k = 0; placed = 0
    for l in lines:
        if l.endswith(":"):
            A(l); continue
        if placed < npad and addr >= 4096 * (placed + 1):
            placed += 1
            A(f"L_pad{placed}:")
            A(f"  s_cbranch_execz {'L_pad%d' % (placed + 1) if placed < npad else 'L_padret'}")
            addr += 4
        A(l); addr += sizes[k]; k += 1
    assert placed == npad

def insn_sizes(lines):
    import subprocess, tempfile, re, os
    src = '.amdgcn_target "amdgcn-amd-amdhsa--gfx950"\n.text\nL_pad1:\n' + "\n".join(lines) + "\n"
    open("_sz.s", "w").write(src)
    subprocess.check_call(["clang", "-x", "assembler", "-target", "amdgcn-amd-amdhsa", "-mcpu=gfx950", "-c", "_sz.s", "-o", "_sz.o"])
    out = subprocess.check_output(["llvm-objdump", "-d", "--mcpu=gfx950", "_sz.o"]).decode()
    res = []
    for l in out.splitlines():
        m = re.search(r"// [0-9A-F]{12}: ((?:[0-9A-F]{8} ?)+)", l)
        if m: res.append(4 * len(m.group(1).split()))
    assert len(res) == len(lines), (len(res), len(lines))
    return res

def win_base(A):
    A("  s_mul_hi_u32 s23, s21, 153391690")
    A("  s_mul_i32 s24, s23, 28")
    A("  s_sub_u32 s24, s21, s24")
    A("  s_mul_i32 s23, s23, 688128")
    A("  s_mul_i32 s24, s24, 3072")
    A(f"  s_add_u32 s{SO[0]}, s23, s24")

def x_row(A, r):
    A(f"  s_add_u32 m0, s24, {3072*r}")
    if r % 4: A("  s_add_u32 s25, s25, 86016")
    else: A(f"  s_mov_b32 s25, s{SO[r // 2]}")

def x_load(A, opt, r, k):
    A(f"  buffer_load_dwordx4 v{XO+2*k+(r%2)}, s[8:11], s25 offen offset:{1024*k}{opt.xf} lds")

def x_frags(A, g, step=12288):
    for tt in range(2):
        for s in range(6):
            A(f"  ds_read_b128 {rng('a', X(2*g + tt, s), 4)}, v{FA+s%2} offset:{(s//2)*128 + tt*6144 + g*step}")

def win_addrs(A):
    A(f"  v_add_u32 v{VL[1]}, 0x10000, v{VL[0]}")
    A(f"  v_add_u32 v{VL[2]}, 0x20000, v{VL[0]}")
    A("  v_and_b32 v9, 15, v8")
    A("  v_mul_u32_u24 v10, 384, v9")
    A("  v_add_u32 v10, s24, v10")
    A("  v_bfe_u32 v11, v8, 1, 3")
    A("  v_lshrrev_b32 v12, 4, v8")
    A("  v_xor_b32 v11, v11, v12")
    A(f"  v_lshl_add_u32 v{FA}, v11, 4, v10")
    A("  v_xor_b32 v11, 4, v11")
    A(f"  v_lshl_add_u32 v{FA+1}, v11, 4, v10")
    A(f"  s_add_u32 s{SO[1]}, s{SO[0]}, 172032")
    A(f"  s_add_u32 s{SO[3]}, s{SO[2]}, 172032")

def out_addrs(A):
    A("  v_bfe_u32 v9, v8, 3, 1")
    A("  v_mul_u32_u24 v9, 86016, v9")
    A("  v_and_b32 v10, 7, v8")
    A("  v_mul_u32_u24 v10, 384, v10")
    A("  v_and_b32 v11, 48, v8")
    A(f"  v_add3_u32 v{VO}, v9, v10, v11")

def main_kernel(opt):
    o = []
    A = o.append
    A(f".globl {KN}\n.p2align 12\n.p2align 8\n.type {KN},@function\n{KN}:")
    stamp(A, opt, 0)
    A("  s_load_dwordx4 s[4:7], s[0:1], 0")
    A("  s_load_dwordx4 s[40:43], s[0:1], 16")
    A("  s_load_dwordx4 s[52:55], s[0:1], 32")
    A("  v_lshrrev_b32 v7, 6, v0")
    A("  s_cmp_ge_u32 s2, 256")
    A("  s_cbranch_scc1 L_end")
    A("  v_readfirstlane_b32 s20, v7")
    A("  v_and_b32 v8, 63, v0")
    A(f"  v_lshlrev_b32 v{VL[0]}, 4, v8")
    A("  s_cmp_lg_u32 s20, 3")
    A("  s_cbranch_scc1 L_window")
    A("  s_cmp_ge_u32 s2, 72")
    A("  s_cbranch_scc1 L_pref")
    A("  s_mov_b32 s30, 221184\n  s_mov_b32 s31, 0x00020000\n  s_mov_b32 s35, 0x00020000\n  s_mov_b32 s10, 9216")
    fold(A, opt)
    nl = [0]
    def fill(lo, nbytes):
        nl[0] += 1
        A(f"  s_mov_b32 m0, {lo}")
        A("  s_nop 0")
        A(f"L_fill{nl[0]}:")
        for k in range(3):
            A(f"  buffer_load_dwordx4 v{VL[0]}, s[16:19], m0 offen offset:{1024*k} sc1 lds")
        A("  s_add_u32 m0, m0, 3072")
        A(f"  s_cmp_lt_u32 m0, {lo + nbytes}")
        A(f"  s_cbranch_scc1 L_fill{nl[0]}")
    def hdma(mat, t, n=1):
        fill(woff(mat, t), 12288 * n)
    ROLE[0] = "m"
    A(".p2align 6")
    A("L_window:")
    A("  s_mul_i32 s21, s2, 3")
    A("  s_add_u32 s21, s21, s20")
    win_base(A)
    A(f"  s_add_u32 s{SO[2]}, s{SO[0]}, 344064")
    A("  s_mul_i32 s24, s20, 24576")
    A(f"  s_mov_b32 s14, {XBYTES}")
    stage_offsets(A, 0, XO)
    srd_consts(A, opt)
    srd_bases(A)
    if opt.fastp:
        A(f"  s_sub_u32 s26, s2, {opt.p0}")
        A(f"  s_cmp_lt_u32 s26, {opt.pn - opt.p0}")
        A("  s_cselect_b64 vcc, -1, 0")
        if opt.heavyc:
            A("  s_cmp_ge_u32 s2, 224")
            A("  s_cselect_b64 vcc, -1, vcc")
    if opt.bh:
        A("  s_cmp_ge_u32 s2, 72")
        A("  s_cbranch_scc1 L_nobh")
        A("  s_barrier")
        A("L_nobh:")
    n = 0
    if opt.fstamp: stamp(A, opt, 1)
    for r in range(8 - opt.hold):
        if r == 4:
            A(f"  s_cmp_lt_u32 s2, {opt.deep}")
            A("  s_cbranch_scc1 L_x4")
        x_row(A, r)
        for k in range(3):
            w = opt.xwin if n < opt.xsw else opt.xwin2
            if opt.qn and n == opt.qat:
                A(f"  s_cmp_ge_u32 s2, {opt.qn}")
                A("  s_cbranch_scc1 L_noq")
                A("  s_barrier")
                A("L_noq:")
            if n >= w:
                if opt.fastp > w: A(f"  s_cbranch_vccnz L_xs{n}")
                A(f"  s_waitcnt vmcnt({w-1})")
                if opt.fastp > w:
                    A(f"L_xs{n}:")
                    if n >= opt.fastp: A(f"  s_waitcnt vmcnt({opt.fastp-1})")
            if n == opt.bxn:
                if opt.split:
                    A("  s_sub_u32 s26, s2, 36")
                    A("  s_cmp_lt_u32 s26, 36")
                    A("  s_cbranch_scc1 L_nobx")
                A("  s_barrier")
                A("L_nobx:")
            x_load(A, opt, r, k)
            n += 1
        if r == 1:
            win_addrs(A)
            out_addrs(A)
    if not opt.fstamp: stamp(A, opt, 1)
    if opt.bxn >= 24:
        if opt.pollh > opt.pollat:
            A(f"  s_waitcnt vmcnt({opt.pollh})")
            A("  s_cbranch_vccnz L_bx")
        A("L_x4:")
        A(f"  s_waitcnt vmcnt({opt.pollat})")
        A("L_bx:")
        A("  s_barrier")
    assert opt.pollat == 0 and opt.pollh <= 12 - 3 * opt.hold
    x_frags(A, 0)
    A(f"  s_cmp_lt_u32 s2, {opt.deep}")
    A("  s_cselect_b64 vcc, -1, 0")
    if opt.pads:
        A("  s_mov_b64 exec, 0")
        A("  s_branch L_pad1")
    else:
        A("  s_branch L_padret")
    A("L_deep:")
    for r in range(4, 8 - opt.hold):
        x_row(A, r)
        for k in range(3): x_load(A, opt, r, k)
    A("  s_branch L_deepb")
    ROLE[0] = "h"
    A(".p2align 6")
    A("L_pref:")
    srd_consts(A, opt)
    helper_misc(A, opt)
    srd_bases(A)
    if opt.pref:
        A("  s_getpc_b64 s[48:49]")
        A("L_pc:")
        A(f"  s_sub_u32 s48, s48, L_pc-{KN}")
        A("  s_subb_u32 s49, s49, 0")
        A("  s_lshr_b32 s26, s2, 3")
        A(f"  s_and_b32 s26, s26, {opt.prefn - 1}")
        A("  s_lshl_b32 s26, s26, 13")
        A("  s_add_u32 s26, s26, 1024")
        A("  v_lshl_add_u32 v9, v8, 7, s26")
        A(f"  v_min_u32 v9, L_last-{KN}, v9")
        A("  global_load_dword v29, v9, s[48:49]")
    A("  s_add_u32 s21, s2, 1312")
    A("  s_and_b32 s22, s21, 1")
    A("  s_lshr_b32 s21, s21, 1")
    win_base(A)
    A("  s_mul_i32 s22, s22, 344064")
    A(f"  s_add_u32 s{SO[2]}, s{SO[0]}, 344064")
    A(f"  s_sub_u32 s{SO[2]}, s{SO[2]}, s22")
    A(f"  s_add_u32 s{SO[0]}, s{SO[0]}, s22")
    A("  s_mov_b32 s24, 73728")
    stage_offsets(A, 0, XO)
    A("  s_cmp_lt_u32 s2, 224")
    A("  s_cbranch_scc1 L_loader")
    n = 0
    for r in range(4, 8):
        A(f"  s_mov_b32 m0, {73728 + 3072*(r-4)}")
        A(f"  s_add_u32 s25, s{SO[2]}, {86016*(r%4)}")
        for k in range(3):
            if n >= opt.cwin: A(f"  s_waitcnt vmcnt({opt.cwin-1})")
            x_load(A, opt, r, k); n += 1
    win_addrs(A)
    out_addrs(A)
    A("  s_branch L_loader")
    ROLE[0] = "m"
    A(".p2align 12")
    pl = []
    P = pl.append
    P("L_padret:")
    if opt.pads: P("  s_mov_b64 exec, -1")
    P("  s_waitcnt lgkmcnt(0)")
    stamp(P, opt, 2)
    P("  s_barrier")
    stamp(P, opt, 3)
    emit_body(A, opt, 2, Emitter(), [], {3: 4, 4: 5}, pl)
    A(".p2align 6")
    ROLE[0] = "h"
    A("L_loader:")
    A("  s_barrier")
    if opt.split:
        A("L_nonce:")
        A("  buffer_load_dwordx2 v[14:15], off, s[36:39], 0 sc1")
        bound(A, "L_nonce")
        A("  s_waitcnt vmcnt(0)")
        A("  v_cmp_eq_u32 vcc, 0, v14")
        A("  s_cbranch_vccnz L_nonce")
        A("L_nonce_x:")
        A("  buffer_load_dwordx2 v[12:13], v2, s[16:19], s93 offen sc1")
    else:
        check_issue(A)
    if opt.escout:
        A("  buffer_load_dword v29, v28, s[16:19], s3 offen sc1")
        A("  s_waitcnt vmcnt(1)")
        A("  s_branch L_eval")
    spin_first(A, opt)
    if not opt.fstamp: stamp(A, opt, 3)
    hdma(0, 0)
    A("  s_cmp_eq_u64 vcc, 0")
    A("  s_cbranch_scc1 L_pollB_x")
    spin_flags(A, "L_pollB", "s93", opt.sleep)
    e = 0
    if opt.scout and not opt.escout:
        A("  buffer_load_dword v29, v28, s[16:19], s3 offen sc1"); e = 1
    if opt.ahead:
        hdma(0, 1, 2)
        A("  s_waitcnt vmcnt(24) lgkmcnt(0)")
        if not opt.fstamp: stamp(A, opt, 4)
        A("  s_barrier")
        hdma(0, 3)
        A("  s_waitcnt vmcnt(24)")
        A("  s_barrier")
        hdma(0, 4, 2)
        A("  buffer_load_dwordx2 v[12:13], v2, s[16:19], s94 offen sc1")
        A("  buffer_load_dword v29, v28, s[16:19], 0 offen sc1")
        A("  s_waitcnt vmcnt(38)")
        A("  s_barrier")
        A("  s_cmp_lt_u32 s2, 224")
        A("  s_cbranch_scc1 L_nox")
        x_frags(A, 1, 0)
        A("  s_waitcnt vmcnt(26) lgkmcnt(0)")
        A("  s_barrier")
        for r in range(4):
            x_row(A, r)
            for k in range(3): x_load(A, opt, r, k)
        A("  s_waitcnt vmcnt(13)")
        A("  s_branch L_nox2")
        A("L_nox:")
        A("  s_waitcnt vmcnt(26)")
        A("  s_barrier")
        A("  s_waitcnt vmcnt(1)")
        A("L_nox2:")
        A("  v_cmp_ne_u64 vcc, v[12:13], v[14:15]")
        A("  s_cbranch_vccz L_pollN_x")
        spin_flags(A, "L_pollN", "s94", opt.sleep)
    else:
        hdma(0, 1)
        A(f"  s_waitcnt vmcnt({12+e}) lgkmcnt(0)")
        if not opt.fstamp: stamp(A, opt, 4)
        A("  s_barrier")
        hdma(0, 2)
        A("  s_waitcnt vmcnt(12)")
        A("  s_barrier")
        hdma(0, 3, 2)
        A("  s_waitcnt vmcnt(24)")
        A("  s_barrier")
        hdma(0, 5)
        if opt.nearly:
            A("  buffer_load_dwordx2 v[12:13], v2, s[16:19], s94 offen sc1")
            A("  buffer_load_dword v29, v28, s[16:19], 0 offen sc1")
            A("  s_waitcnt vmcnt(26)")
            A("  s_barrier")
            A("  s_waitcnt vmcnt(1)")
            A("  v_cmp_ne_u64 vcc, v[12:13], v[14:15]")
            A("  s_cbranch_vccz L_pollN_x")
            spin_flags(A, "L_pollN", "s94", opt.sleep)
        else:
            A("  s_waitcnt vmcnt(24)")
            A("  s_barrier")
            A("  buffer_load_dword v29, v28, s[16:19], 0 offen sc1")
            spin_flags(A, "L_pollN", "s94", opt.sleep)
            A("  s_waitcnt vmcnt(0)")
    A("  s_barrier")
    A("  s_cmp_ge_u32 s2, 224")
    A("  s_cbranch_scc1 L_late")
    A("  s_cmp_lg_u32 s2, 0")
    A("  s_cbranch_scc1 L_noep")
    A("  s_mov_b64 exec, 1")
    A("  buffer_store_dwordx2 v[6:7], off, s[16:19], s95 sc1")
    A("  s_mov_b64 exec, -1")
    A("L_noep:")
    if not opt.fstamp: stamp(A, opt, 5)
    stamp_out(A, opt)
    A("L_end:")
    A("  s_endpgm")
    A("L_late:")
    for n, t in enumerate(opt.join_reads):
        if n == 12: A("  s_waitcnt lgkmcnt(0)")
        A("  " + t)
    A("  s_waitcnt vmcnt(0) lgkmcnt(0)")
    x_frags(A, 0)
    A("  s_waitcnt lgkmcnt(0)")
    A("  s_branch L_join")
    A("L_last:")
    A("  s_endpgm")
    return "\n".join(o)

def main():
    ap = argparse.ArgumentParser()
    ap.add_argument("--ring", type=int, default=12)
    ap.add_argument("--dslead", type=float, default=12.0)
    ap.add_argument("--split", type=int, default=0)
    ap.add_argument("--qn", type=int, default=36)
    ap.add_argument("--qat", type=int, default=6)
    ap.add_argument("--deep", type=int, default=72)
    ap.add_argument("--n0at", type=int, default=104)
    ap.add_argument("--n0step", type=int, default=4)
    ap.add_argument("--xwat3", type=int, default=164)
    ap.add_argument("--dmacool", type=int, default=2)
    ap.add_argument("--cskip", type=int, default=0)
    ap.add_argument("--nshare", type=int, default=12)
    ap.add_argument("--cx2", type=int, default=2)
    ap.add_argument("--x2late", type=int, default=1)
    ap.add_argument("--heavyc", type=int, default=1)
    ap.add_argument("--pollh", type=int, default=3)
    ap.add_argument("--ahead", type=int, default=1)
    ap.add_argument("--nearly", type=int, default=1)
    ap.add_argument("--hold", type=int, default=2)
    ap.add_argument("--holdat", type=int, default=36)
    ap.add_argument("--pairc", type=int, default=6)
    ap.add_argument("--mixed", type=int, default=1)
    ap.add_argument("--escout", type=int, default=1)
    ap.add_argument("--blead", type=int, default=14)
    ap.add_argument("--b4c", type=int, default=4)
    ap.add_argument("--olate", type=int, default=2)
    ap.add_argument("--stlead", type=float, default=80.0)
    ap.add_argument("--vstcost", type=int, default=8)
    ap.add_argument("--stcool", type=int, default=6)
    ap.add_argument("--sins", type=int, default=6)
    ap.add_argument("--b4blk", type=int, default=9)
    ap.add_argument("--b1at", type=int, default=5)
    ap.add_argument("--b2at", type=int, default=17)
    ap.add_argument("--b3at", type=int, default=29)
    ap.add_argument("--fastp", type=int, default=8)
    ap.add_argument("--pollat", type=int, default=0)
    ap.add_argument("--fsh", type=int, default=5)
    ap.add_argument("--wf", default="")
    ap.add_argument("--bh", type=int, default=1)
    ap.add_argument("--pads", type=int, default=1)
    ap.add_argument("--maxbytes", type=int, default=16)
    ap.add_argument("--age", type=int, default=10)
    ap.add_argument("--padwin", type=int, default=8)
    ap.add_argument("--ndefer", type=int, default=3)
    ap.add_argument("--xwat", type=int, default=154)
    ap.add_argument("--b5at", type=int, default=168)
    ap.add_argument("--xsw", type=int, default=24)
    ap.add_argument("--xwin2", type=int, default=8)
    ap.add_argument("--cwin", type=int, default=6)
    ap.add_argument("--o41", type=int, default=68)
    ap.add_argument("--dswcost", type=int, default=8)
    ap.add_argument("--bxn", type=int, default=24)
    ap.add_argument("--slowp", type=int, default=0)
    ap.add_argument("--slown", type=int, default=10)
    ap.add_argument("--pn", type=int, default=72)
    ap.add_argument("--p0", type=int, default=0)
    ap.add_argument("--fstamp", type=int, default=0)
    ap.add_argument("--swapmn", type=int, default=0)
    ap.add_argument("--scout", type=int, default=1)
    ap.add_argument("--prefn", type=int, default=4)
    ap.add_argument("--presleep", type=int, default=0)
    ap.add_argument("--pausen", type=int, default=0)
    ap.add_argument("--budget", type=int, default=8)
    ap.add_argument("--maxfill", type=int, default=5)
    ap.add_argument("--lgextra", type=int, default=1)
    ap.add_argument("--xwin", type=int, default=6)
    ap.add_argument("--xearly", type=int, default=24)
    ap.add_argument("--sleep", type=int, default=2)
    ap.add_argument("--pref", type=int, default=1)
    ap.add_argument("--stflags", default="sc1,nt")
    ap.add_argument("--xf", default="nt")
    ap.add_argument("--log", action="store_true")
    ap.add_argument("--nostore", action="store_true")
    ap.add_argument("--stamps", action="store_true")
    ap.add_argument("--probe", default=None)
    ap.add_argument("--pwg", default="0,256")
    opt = ap.parse_args()
    if opt.probe:
        opt.probe = (opt.probe[0], int(opt.probe[1:])); opt.stamps = True
        opt.pwg = [int(x) for x in opt.pwg.split(",")]
    if opt.stflags: opt.stflags = " " + opt.stflags.replace(",", " ")
    if opt.wf: opt.wf = " " + opt.wf.replace(",", " ")
    if opt.stamps and not opt.probe: opt.prefn = 4
    if opt.xf: opt.xf = " " + opt.xf.replace(",", " ")
    print(HDR.rstrip())
    print(f"; @launch grid=(256,1,1) block=(256,1,1) lds=163840")
    print(DOC)
    print('.amdgcn_target "amdgcn-amd-amdhsa--gfx950"\n.text')
    print(main_kernel(opt))
    print('.section .rodata,"a"')
    print(f""".p2align 6
.amdhsa_kernel {KN}
  .amdhsa_next_free_vgpr {256 + 96 + 4 * opt.ring}
  .amdhsa_next_free_sgpr 96
  .amdhsa_accum_offset 256
  .amdhsa_group_segment_fixed_size 0
  .amdhsa_kernarg_size 48
  .amdhsa_user_sgpr_count 2
  .amdhsa_user_sgpr_kernarg_segment_ptr 1
  .amdhsa_system_sgpr_workgroup_id_x 1
.end_amdhsa_kernel""")

main()
```

```python
import sys, struct, argparse, re
import sched
from sched import *

KN = "standalone__swin_window_attn__vision_kernel"
XBYTES = 19267584
SCALE = (192 ** -0.5) * 1.4426950408889634
def f32bits(x): return struct.unpack("<I", struct.pack("<f", x))[0]
HDR = open("standalone__swin_window_attn__vision.s.ref").read().split("; Override launch")[0]
WS_STAMP = 0x1000000
WS_FLAG = 0x40000
WS_EPOCH = 0x50000

DOC = '''; ---------------------------------------------------------------------------------------------
;               v_mfma_f32_16x16x32_bf16; every accumulator layout is the next product's operand layout.
; Generated by a scheduling script (hazard distances and s_waitcnt counts are derived by it).
; ---------------------------------------------------------------------------------------------'''

def woff(mat, t):
    return 90112 + t * 12288 if mat == 0 else t * 12288

X = lambda tt, s: (tt * 6 + s) * 4
WR0 = 96
TA = lambda i: 16 + 4 * (i % 8)
TB = lambda q, s: 48 + (q * 6 + s) * 4
ST = lambda kt, qt: 96 + (qt * 4 + kt) * 4
PB = lambda qt, k: 160 + (qt * 2 + k) * 4
YB = lambda i, b, k: 192 + ((i % 3) * 4 + b * 2 + k) * 4
YB2 = lambda i, b, k: 48 + ((i % 3) * 4 + b * 2 + k) * 4
OB = lambda i: 240 + 4 * (i % 4)
VO = 1
VO2 = 0
VL = [3, 4, 5]
XO = 240
FA = 252
SO = [44, 45, 46, 47]
OSRD = ["s[12:15]", "s[72:75]"]

def mfma(d, ak, a, bk, b, first, tag=""):
    c = "0" if first else rng("v", d, 4)
    rd = R(ak, a, 4) + R(bk, b, 4) + ([] if first else R("v", d, 4))
    return Ins(f"v_mfma_f32_16x16x32_bf16 {rng('v', d, 4)}, {rng(ak, a, 4)}, {rng(bk, b, 4)}, {c}",
               "mfma", rd, R("v", d, 4), srcc=([] if first else R("v", d, 4)), tag=tag)

def valu(op, d, *src, kind="valu", lead=0.0):
    rd = [s for s in src if isinstance(s, str) and s[0] in "vs" and s[1:].isdigit()]
    return Ins(f"{op} {d}, " + ", ".join(str(s) for s in src), kind, rd, [d], lead=lead)

def cvt(d, s0, lead=0.0):
    return valu("v_cvt_pk_bf16_f32", f"v{d}", f"v{s0}", f"v{s0+1}", lead=lead)

def yb(c, b, k):
    return YB(c // 2, b, k) if c % 2 == 0 else YB2(c // 2, b, k)

class Body:
    def __init__(self, opt):
        self.opt = opt
        self.base = []
        self.nfrag = 0
        self.nob = 0
        self.nacc = 0
        self.npair = 0
        self.nd = []
        self.mf = []
    def add(self, i):
        self.base.append(i); return i
    def acc(self):
        self.nacc += 1
        return TA(self.nacc)
    def wtile(self, mat, r):
        res = []
        for s in range(6):
            slot = self.nfrag % self.opt.ring; self.nfrag += 1
            reg = WR0 + 4 * slot
            off = woff(mat, 0) + r * 6144 + s * 1024
            self.add(Ins(f"ds_read_b128 {rng('a', reg, 4)}, v{VL[off >> 16]} offset:{off & 0xffff}", "dsr",
                         [f"v{VL[off >> 16]}", f"L:{mat}:{r // 2}"], R("a", reg, 4), lead=self.opt.dslead))
            res.append(reg)
        return res
    def allred(self, op, x, y):
        for sw in ("v_permlane32_swap_b32", "v_permlane16_swap_b32"):
            self.add(valu("v_mov_b32", y, x))
            self.add(Ins(f"{sw} {x}, {y}", "perm", [x, y], [x, y]))
            self.add(valu(op, x, x, y))
    def softmax(self, qt):
        vals = [ST(kt, qt) + r for kt in range(4) for r in range(4)]
        t0 = 7 + 4 * (qt % 2)
        m0, m1, l0, l1 = (f"v{t0+i}" for i in range(4))
        self.add(valu("v_max3_f32", m0, f"v{vals[0]}", f"v{vals[1]}", f"v{vals[2]}"))
        for k in range(3, 15, 2):
            self.add(valu("v_max3_f32", m0, m0, f"v{vals[k]}", f"v{vals[k+1]}"))
        self.add(valu("v_max_f32", m0, m0, f"v{vals[15]}"))
        self.allred("v_max_f32", m0, m1)
        for k, v in enumerate(vals):
            self.add(valu("v_sub_f32", f"v{v}", f"v{v}", m0))
            self.add(valu("v_exp_f32", f"v{v}", f"v{v}", kind="trans"))
            if k == 1: self.add(valu("v_add_f32", l0, f"v{vals[0]}", f"v{v}"))
            if k > 1: self.add(valu("v_add_f32", l0, l0, f"v{v}"))
        self.allred("v_add_f32", l0, l1)
        self.add(valu("v_rcp_f32", l0, l0, kind="trans"))
        for k in range(2):
            for d in range(4):
                s = ST(2 * k, qt) + 2 * d
                self.add(valu("v_mul_f32", f"v{s}", f"v{s}", l0))
                self.add(valu("v_mul_f32", f"v{s+1}", f"v{s+1}", l0))
                self.add(cvt(PB(qt, k) + d, s))
    def Tchain(self, r, w, g, q):
        acc = self.acc()
        for s in range(6):
            m = self.add(mfma(acc, "a", w[s], "a", X(2 * g + q, s), s == 0, tag=f"T{r}.{2*g+q}"))
            self.mf.append(m)
            if g == 1 and r == 0 and q == 0 and s == 0: self.join = m
        for d in range(2): self.add(cvt(TB(q, r // 2) + 2 * (r % 2) + d, acc + 2 * d))
    def Oblk(self, c, qt):
        ob = OB(self.nob); self.nob += 1
        L = self.opt.stlead; fl = self.opt.stflags
        for b in range(2):
            acc = self.acc()
            for k in range(2):
                self.add(mfma(acc, "v", yb(c, b, k), "v", PB(qt, k), k == 0, tag=f"O{c}.{qt}"))
            for d in range(2): self.add(cvt(ob + 2 * b + d, acc + 2 * d, lead=L))
        if not self.opt.nostore:
            txt = f"buffer_store_dwordx4 {rng('v', ob, 4)}, v{VO}, {OSRD[qt // 2]}, s{SO[qt]} offen offset:{64*c}{fl}"
            if qt < 2 and self.opt.cskip: txt = f"s_cbranch_vccnz L_hs{self.nob}\n{txt}\nL_hs{self.nob}:"
            self.add(Ins(txt, "vst", R("v", ob, 4) + [f"v{VO}"], [], lead=L))
    def Opair(self, c, g):
        par = self.npair % 2; self.npair += 1
        ob = 240 + 8 * par if not self.opt.mixed else 240 + 8 * par
        L = self.opt.stlead; fl = self.opt.stflags
        accs = []
        for q in range(2):
            for b in range(2):
                acc = self.acc(); accs.append(acc)
                for k in range(2):
                    self.add(mfma(acc, "v", yb(c, b, k), "v", PB(2 * g + q, k), k == 0, tag=f"O{c}.{2*g+q}"))
                for d in range(2): self.add(cvt(ob + 4 * q + 2 * b + d, acc + 2 * d, lead=L))
        for d in range(4):
            x, y = f"v{ob+d}", f"v{ob+4+d}"
            self.add(Ins(f"v_permlane16_swap_b32 {x}, {y}", "perm", [x, y], [x, y], lead=L))
        tmp = ST(par, 2 * g)
        def s1(dst):
            for d in range(4):
                self.add(Ins(f"v_cndmask_b32_dpp v{dst+d}, v{ob+4+d}, v{ob+d}, vcc quad_perm:[0,0,2,2] row_mask:0xf bank_mask:0xf",
                             "perm", [f"v{ob+4+d}", f"v{ob+d}", "vcc"], [f"v{dst+d}"], lead=L))
        def s2(dst):
            for d in range(4):
                self.add(Ins(f"v_cndmask_b32_dpp v{dst+d}, v{ob+d}, v{ob+4+d}, vcc quad_perm:[1,1,3,3] row_mask:0xf bank_mask:0xf",
                             "perm", [f"v{ob+4+d}", f"v{ob+d}", "vcc"], [f"v{dst+d}"], lead=L))
        def st(reg, odd):
            if self.opt.nostore: return
            self.add(Ins(f"buffer_store_dwordx4 {rng('v', reg, 4)}, v{VO2}, {OSRD[g]}, s{SO[2*g]} offen offset:{64*c + 384*odd}{fl}",
                         "vst", R("v", reg, 4) + [f"v{VO2}"], [], lead=L))
        flip = Ins("s_not_b64 vcc, vcc", "salu", ["vcc"], ["vcc"], lead=L)
        if par == 0:
            s1(tmp); st(tmp, 0); self.add(flip); s2(ob + 4); st(ob + 4, 1)
        else:
            s2(tmp); st(tmp, 1); self.add(flip); s1(ob); st(ob, 0)
    def Oany(self, c, qt):
        if c >= self.opt.pairc:
            if qt % 2 == 1: self.Opair(c, qt // 2)
        else:
            self.Oblk(c, qt)
    def bar(self, tiles, after, text="s_barrier", reads=()):
        return self.add(Ins(text, "bar", ["BAR"] + list(reads), ["BAR"] + [f"L:{m}:{t}" for m, t in tiles], after=after))

    def build(self, nq):
        opt = self.opt
        allN = [(1, tn) for tn in range(6)]
        for g in range(2):
            for c in range(6):
                if g == 0:
                    if c in (1, 2, 3):
                        bb = self.bar([(0, c)], self.mf[24 * c - opt.blead]); bb.lead = 500
                        if c == 2: self.b2 = bb
                    if c == 4:
                        self.bar([(0, 4), (0, 5)], self.mf[96 - opt.blead])
                        self.add(Ins("s_cbranch_vccnz L_deep\nL_deepb:", "salu", ["s25"], ["m0", "s25"], after=self.b2, lead=300))
                        for r in range(8 - opt.hold, 8):
                            self.add(Ins(f"s_add_u32 m0, s24, {3072*r}", "salu", [], ["m0"], after=self.b2, lead=200))
                            self.add(Ins("s_add_u32 s25, s25, 86016", "salu", ["s25"], ["s25"], after=self.b2, lead=200))
                            for k in range(3):
                                self.add(Ins(f"buffer_load_dwordx4 v{XO+2*k+(r%2)}, s[8:11], s25 offen offset:{1024*k}{opt.xf} lds", "dma",
                                             ["m0", "s25", f"v{XO+2*k+(r%2)}"], [f"XD{r}{k}"], lead=200))
                if g == 1 and c == opt.b4c: self.bar(allN, self.mf[-1], "s_barrier", reads=[f"ND{hh}{k}" for hh in range(8) for k in range(3)])
                if c < 5:
                    for b in range(2):
                        w = self.wtile(0, 2 * c + b)
                        for q in range(2): self.Tchain(2 * c + b, w, g, q)
                else:
                    w = [self.wtile(0, 10), self.wtile(0, 11)]
                    for q in range(2):
                        for b in range(2): self.Tchain(10 + b, w[b], g, q)
            def schain(kt, q):
                for s in range(6):
                    m = self.add(mfma(ST(kt, 2 * g + q), "a", X(kt, s), "v", TB(q, s), s == 0, tag=f"S{kt}.{2*g+q}"))
                    if g == 0: self.mf.append(m)
            if g == 0:
                for q in range(2):
                    for kt in range(2): schain(kt, q)
                def xl(tt, cnt, at):
                    self.add(Ins(f"s_waitcnt vmcnt({cnt})", "salu", [], [f"XW{tt}", "m0"], after=self.mf[at], lead=100))
                    for s in range(6):
                        self.add(Ins(f"ds_read_b128 {rng('a', X(tt, s), 4)}, v{FA+s%2} offset:{(s//2)*128 + tt*6144}", "dsr",
                                     [f"XW{tt}", f"v{FA+s%2}"], R("a", X(tt, s), 4), lead=100))
                def nfill(hh, at, step):
                    xr = [r for s in range(6) for r in R("a", X(hh // 2, s), 4)] if hh >= 4 else []
                    self.add(Ins(f"s_add_u32 m0, s24, {3072*hh}", "salu", xr, ["m0"], after=self.mf[at], lead=400))
                    for k in range(3):
                        self.nd.append(self.add(Ins(f"buffer_load_dwordx4 v{VL[0]}, s[16:19], m0 offen offset:{1024*k} sc1 lds", "dma",
                                     ["m0"], [f"ND{hh}{k}"], after=self.mf[at + k * step], lead=400)))
                for hh in range(4): nfill(hh, opt.n0at + 3 * opt.n0step * hh, opt.n0step)
                xl(2, 18, opt.xwat)
                xl(3, 12, opt.xwat3)
                schain(2, 0); schain(2, 1)
                for hh in range(4, 8): nfill(hh, opt.xwat3 + (11 if hh >= 6 else 1), 0)
                schain(3, 0); self.softmax(0)
                schain(3, 1); self.softmax(1)
            else:
                for q in range(2):
                    for kt in range(4): schain(kt, q)
                    self.softmax(2 + q)
        pos = {}
        def put(c, n, blk): pos.setdefault((c, n), []).append(blk)
        for c in range(5):
            put(c + 1, 2, (c, 0)); put(c + 1, 4, (c, 1))
        late = opt.olate
        sl = [(late + i // 4, (1, 3, 5, 7)[i % 4]) for i in range(40)]
        i = 0
        for c in range(5):
            for qt in (2, 3):
                while sl[i] < (c + 1, 2): i += 1
                put(*sl[i], (c, qt)); i += 1
        for c in range(6):
            n = 0
            for b in range(2):
                w = self.wtile(1, 2 * c + b)
                for kt in range(4):
                    for blk in pos.get((c, n), []): self.Oany(*blk)
                    acc = self.acc()
                    for s in range(6):
                        self.add(mfma(acc, "a", X(kt, s), "a", w[s], s == 0, tag=f"Y{2*c+b}.{kt}"))
                    for d in range(2): self.add(cvt(yb(c, b, kt // 2) + 2 * (kt % 2) + d, acc + 2 * d))
                    n += 1
        for key in sorted(pos):
            if key[0] >= 6:
                for blk in pos[key]: self.Oany(*blk)
        for qt in range(4): self.Oany(5, qt)

_ph = [0]
ROLE = ["h"]
def stamp(A, opt, k):
    if opt.probe is not None:
        if (ROLE[0], k) == opt.probe or (k == 0 and opt.probe[1] == 0):
            A("  s_memrealtime s[56:57]")
            A("  s_waitcnt lgkmcnt(0)")
        return
    if opt.stamps:
        A(f"  s_memrealtime s[{56+2*k}:{57+2*k}]")
        A(f"  s_memtime s[{76+2*k}:{77+2*k}]")
        A(f"  s_waitcnt lgkmcnt(0)")

def stamp_out(A, opt):
    if opt.probe is not None:
        if ROLE[0] != opt.probe[0]: return
        _ph[0] += 1; n = _ph[0]
        A(f"  s_sub_u32 s60, s2, {opt.pwg[0]}")
        A(f"  s_cmp_ge_u32 s60, {opt.pwg[1] - opt.pwg[0]}")
        A(f"  s_cbranch_scc1 L_hx{n}")
        if ROLE[0] == "m":
            A("  s_cmp_eq_u32 s20, 3")
            A(f"  s_cbranch_scc1 L_hx{n}")
        A(f"L_hold{n}:")
        A("  s_memrealtime s[58:59]")
        A("  s_waitcnt lgkmcnt(0)")
        A("  s_sub_u32 s60, s58, s56")
        A("  s_cmp_lt_u32 s60, 1500")
        A(f"  s_cbranch_scc1 L_hold{n}")
        A(f"L_hx{n}:")
        return
    if not opt.stamps: return
    for k in range(8): A(f"  v_mov_b32 v{16+k}, s{56+2*k}")
    for k in range(8): A(f"  v_mov_b32 v{24+k}, s{76+2*k}")
    A(f"  s_lshl_b32 s26, s2, 2\n  s_add_u32 s26, s26, s20\n  s_lshl_b32 s26, s26, 5\n  s_add_u32 s26, s26, {WS_STAMP}")
    A("  s_mov_b32 s18, 0x10000000")
    A("  v_mov_b32 v7, 0")
    A("  buffer_store_dwordx4 v[16:19], v7, s[16:19], s26 offen")
    A("  buffer_store_dwordx4 v[20:23], v7, s[16:19], s26 offen offset:16")
    A("  s_add_u32 s26, s26, 0x10000")
    A("  buffer_store_dwordx4 v[24:27], v7, s[16:19], s26 offen")
    A("  buffer_store_dwordx4 v[28:31], v7, s[16:19], s26 offen offset:16")

def bound(A, label):
    A("  s_add_u32 s92, s92, 1")
    A("  s_cmp_gt_u32 s92, 50000")
    A(f"  s_cbranch_scc1 {label}_x")

def check_issue(A):
    A("  buffer_load_dwordx2 v[14:15], off, s[36:39], 0 sc1")
    A("  buffer_load_dwordx2 v[12:13], v2, s[16:19], s93 offen sc1")

def spin_first(A, opt):
    if not opt.escout: A("  s_branch L_pollA_0")
    A("L_pollA:")
    A(f"  s_sleep {opt.sleep}")
    check_issue(A)
    bound(A, "L_pollA")
    A("L_pollA_0:")
    A("  s_waitcnt vmcnt(0)")
    A("L_eval:")
    A("  v_cmp_ne_u64 vcc, v[12:13], v[14:15]")
    A("  v_cmp_eq_u32 s[26:27], 0, v14")
    A("  s_nop 1")
    A("  s_or_b64 vcc, vcc, s[26:27]")
    A("  s_and_b32 s26, vcc_lo, 0x3f")
    A("  s_cbranch_scc1 L_pollA")
    A("L_pollA_x:")

def spin_flags(A, label, sreg, sleep):
    A(f"  s_branch {label}_0")
    A(f"{label}:")
    A(f"  s_sleep {sleep}")
    A(f"{label}_0:")
    A(f"  buffer_load_dwordx2 v[12:13], v2, s[16:19], {sreg} offen sc1")
    bound(A, label)
    A("  s_waitcnt vmcnt(0)")
    A("  v_cmp_ne_u64 vcc, v[12:13], v[14:15]")
    A(f"  s_cbranch_vccnz {label}")
    A(f"{label}_x:")

def stage_offsets(A, rowx, d0=16):
    for k in range(3):
        A(f"  v_add_u32 v9, {64*k}, v8")
        A("  v_mul_u32_u24 v9, 0xaab, v9")
        if rowx:
            A("  v_lshrrev_b32 v10, 16, v9")
            A(f"  v_mul_u32_u24 v10, {rowx}, v10")
        A("  v_lshrrev_b32 v9, 17, v9")
        A("  v_xor_b32 v9, v9, v8")
        if rowx:
            A("  v_xor_b32 v11, 4, v9")
            A(f"  v_lshl_add_u32 v{d0+2*k}, v9, 4, v10")
            A(f"  v_lshl_add_u32 v{d0+1+2*k}, v11, 4, v10")
        else:
            A(f"  v_lshlrev_b32 v{d0+2*k}, 4, v9")
            A(f"  v_xor_b32 v{d0+1+2*k}, 64, v{d0+2*k}")

def frag_addrs(A, jreg, base, dst=24):
    A(f"  v_mul_u32_u24 v10, 384, {jreg}")
    A(f"  v_add_u32 v10, {base}, v10")
    A(f"  v_bfe_u32 v11, {jreg}, 1, 3")
    A("  v_lshrrev_b32 v12, 5, v8")
    A("  v_xor_b32 v11, v11, v12")
    for m in range(4):
        A(f"  v_xor_b32 v13, {2*m}, v11")
        A(f"  v_lshl_add_u32 v{dst+m}, v13, 4, v10")

def fold(A, opt):
    SC = 73728
    A("  s_cmp_ge_u32 s2, 36")
    A("  s_cselect_b32 s51, 36, 0")
    A("  s_cselect_b64 vcc, -1, 0")
    A("  s_cselect_b32 s50, 768, 0")
    A("  s_cselect_b32 s21, 64, 36864")
    A("  s_cselect_b32 s24, 0, 384")
    A("  s_cselect_b32 s25, 18432, s10")
    A("  s_cselect_b32 s34, 73728, s30")
    A("  s_sub_u32 s51, s2, s51")
    A("  s_mul_i32 s48, s51, 43")
    A("  s_lshr_b32 s48, s48, 8")
    A("  s_mul_i32 s49, s48, 6")
    A("  s_sub_u32 s49, s51, s49")
    A("  s_mul_i32 s22, s49, 36864")
    A("  s_add_u32 s22, s22, s50")
    A("  s_mul_i32 s23, s48, s21")
    A("  s_add_u32 s23, s23, s24")
    stage_offsets(A, 768)
    A("  v_lshrrev_b32 v14, 2, v8")
    A("  v_mul_u32_u24 v14, 384, v14")
    A("  v_and_b32 v13, 3, v8")
    A("  v_lshl_add_u32 v14, v13, 4, v14")
    for k in range(3):
        if k: A(f"  v_add_u32 v14, 5120, v14")
        A(f"  v_cndmask_b32 v{144+2*k}, v{16+2*k}, v14, vcc")
        A(f"  v_cndmask_b32 v{145+2*k}, v{17+2*k}, v14, vcc")
    A("  s_waitcnt lgkmcnt(0)")
    A("  s_cmp_ge_u32 s2, 36")
    A("  s_mov_b64 s[28:29], s[6:7]")
    A("  s_cselect_b64 s[32:33], s[40:41], s[6:7]")
    def panel(sreg, lds, v0, srd, step):
        for r in range(4):
            A(f"  s_mov_b32 m0, {lds + 3072*r}")
            if r: A(f"  s_add_u32 {sreg}, {sreg}, {step}")
            else: A("  s_nop 0")
            for k in range(3):
                A(f"  buffer_load_dwordx4 v{v0+2*k+(r%2)}, {srd}, {sreg} offen offset:{1024*k}{opt.wf} lds")
    panel("s23", SC + 12288, 144, "s[32:35]", "s25")
    panel("s22", SC, 16, "s[28:31]", 9216)
    srd_consts(A, opt, True)
    srd_bases(A, True)
    A(f"  s_mov_b32 s95, {WS_EPOCH}")
    A("  buffer_load_dwordx2 v[6:7], off, s[16:19], s95 sc1")
    stamp(A, opt, 7)
    if opt.bh: A("  s_barrier")
    helper_misc(A, opt, True)
    A("  v_and_b32 v9, 0x13, v8")
    A("  v_and_b32 v10, 4, v8")
    A("  v_lshl_or_b32 v9, v10, 1, v9")
    A("  v_and_b32 v10, 8, v8")
    A("  v_lshrrev_b32 v10, 1, v10")
    A("  v_or_b32 v9, v9, v10")
    frag_addrs(A, "v9", SC)
    A("  v_and_b32 v9, 3, v8")
    A("  v_bfe_u32 v10, v8, 2, 2")
    A("  v_lshl_or_b32 v9, v10, 3, v9")
    A("  v_bfe_u32 v10, v8, 4, 1")
    A("  v_lshl_or_b32 v9, v10, 2, v9")
    frag_addrs(A, "v9", SC, 150)
    A("  v_bfe_u32 v9, v8, 4, 1")
    A("  v_mul_u32_u24 v9, 6144, v9")
    A("  v_and_b32 v10, 15, v8")
    A("  v_lshl_add_u32 v9, v10, 4, v9")
    A("  v_lshl_add_u32 v154, v12, 8, v9")
    A("  v_bfe_u32 v14, v8, 2, 2")
    A("  v_lshl_add_u32 v14, v12, 3, v14")
    A("  v_lshlrev_b32 v14, 6, v14")
    A("  v_bfe_u32 v13, v8, 4, 1")
    A("  v_lshl_add_u32 v14, v13, 3, v14")
    A("  v_and_b32 v13, 3, v8")
    A("  v_lshl_add_u32 v14, v13, 4, v14")
    A(f"  v_add_u32 v14, {SC + 12288}, v14")
    A("  s_mul_i32 s26, s48, 12288")
    A(f"  s_add_u32 s27, s26, {woff(0,0)}")
    A("  s_lshl_b32 s54, s49, 10")
    A("  s_cmp_ge_u32 s2, 36")
    A("  s_cselect_b32 s26, s26, s27")
    A(f"  s_cselect_b32 s27, 1.0, {f32bits(SCALE):#x}")
    A("  s_add_u32 s26, s26, s54")
    A(f"  s_lshl_b32 s54, s2, {opt.fsh}")
    A(f"  s_add_u32 s54, s54, {WS_FLAG}")
    if opt.fstamp: stamp(A, opt, 5)
    A("  s_waitcnt vmcnt(13)")
    if opt.fstamp: stamp(A, opt, 3)
    A("  s_cbranch_vccnz L_fold_tr")
    for s in range(12):
        A(f"  ds_read_b128 v[{80+4*s}:{83+4*s}], v{150+s%4} offset:{(s//4)*128 + 12288}")
    A("  s_branch L_fold_a")
    A("L_fold_tr:")
    for s in range(12):
        for jj in range(2):
            A(f"  ds_read_b64_tr_b16 v[{80+4*s+2*jj}:{81+4*s+2*jj}], v14 offset:{1024*s + 256*jj}")
        if s == 6: A("  s_waitcnt lgkmcnt(0)")
    A("L_fold_a:")
    A("  s_waitcnt vmcnt(1) lgkmcnt(0)")
    if opt.fstamp: stamp(A, opt, 4)
    for s in range(12):
        A(f"  ds_read_b128 v[{32+4*s}:{35+4*s}], v{24+s%4} offset:{(s//4)*128}")
    for s in range(12):
        c = "0" if s == 0 else "v[128:143]"
        A(f"  s_waitcnt lgkmcnt({11-s})")
        A(f"  v_mfma_f32_32x32x16_bf16 v[128:143], v[{32+4*s}:{35+4*s}], v[{80+4*s}:{83+4*s}], {c}")
    stamp(A, opt, 1)
    A("  s_nop 11")
    for d in range(8):
        A(f"  v_mul_f32 v{128+2*d}, s27, v{128+2*d}")
        A(f"  v_mul_f32 v{129+2*d}, s27, v{129+2*d}")
        A(f"  v_cvt_pk_bf16_f32 v{32+d}, v{128+2*d}, v{129+2*d}")
        if d == 3: A(f"  buffer_store_dwordx4 v[32:35], v154, s[16:19], s26 offen sc1")
    A(f"  buffer_store_dwordx4 v[36:39], v154, s[16:19], s26 offen offset:512 sc1")
    A("  s_waitcnt vmcnt(2)")
    A("  v_add_co_u32 v6, vcc, 2, v6")
    A("  s_nop 1")
    A("  v_addc_co_u32 v7, vcc, 0, v7, vcc")
    A("  v_or_b32 v6, 1, v6")
    A("  s_mov_b64 exec, 1")
    A("  s_cmp_lg_u32 s2, 0")
    A("  s_cbranch_scc1 L_fold_pub")
    A("  buffer_store_dwordx2 v[6:7], off, s[36:39], 0 sc1")
    A("L_fold_pub:")
    A("  s_waitcnt vmcnt(0)")
    stamp(A, opt, 2)
    A("  buffer_store_dwordx2 v[6:7], off, s[16:19], s54 sc1")
    A("  s_mov_b64 exec, -1")
    if opt.qn:
        if opt.qn < 72:
            A(f"  s_cmp_ge_u32 s2, {opt.qn}")
            A("  s_cbranch_scc1 L_noq2")
        A("  s_barrier")
        A("L_noq2:")
    stamp(A, opt, 6)
    if opt.split:
        A("  v_mov_b32 v14, v6")
        A("  v_mov_b32 v15, v7")
        A("  s_cmp_ge_u32 s2, 36")
        A("  s_cbranch_scc1 L_nonce_x")
    A("  s_branch L_loader")

def helper_misc(A, opt, prod=False):
    A("  s_mov_b32 s14, 0")
    A(f"  v_mov_b32 v{VO}, 0")
    if prod:
        for k in range(6): A(f"  v_mov_b32 v{XO+k}, 0")
    A("  v_min_u32 v2, 35, v8")
    A(f"  v_lshlrev_b32 v2, {opt.fsh}, v2")
    A("  s_lshr_b32 s26, s2, 3")
    if opt.scout == 1:
        A("  s_mul_i32 s27, s26, 57")
        A("  s_lshr_b32 s27, s27, 9")
        A("  s_mul_i32 s27, s27, 9")
        A("  s_sub_u32 s26, s26, s27")
        A("  s_lshl_b32 s26, s26, 13")
        A("  v_lshl_add_u32 v28, v8, 7, s26")
    else:
        A("  s_cmp_ge_u32 s26, 18")
        A("  s_cselect_b32 s27, 14, 0")
        A("  s_sub_u32 s26, s26, s27")
        A("  s_lshl_b32 s26, s26, 12")
        A("  v_and_b32 v28, 31, v8")
        A("  v_lshl_add_u32 v28, v28, 7, s26")
    A(f"  s_mov_b32 s3, {woff(0, 0)}")

def srd_consts(A, opt, prod=False):
    A(f"  s_mov_b32 s10, {XBYTES}\n  s_mov_b32 s11, 0x00020000")
    A(f"  s_mov_b32 s15, 0x00020000")
    A("  s_mov_b32 s18, 0x60000\n  s_mov_b32 s19, 0x00020000")
    A("  s_mov_b32 s38, 256\n  s_mov_b32 s39, 0x00020000")
    A(f"  s_mov_b32 s74, {XBYTES}\n  s_mov_b32 s75, 0x00020000")
    A(f"  s_mov_b32 s93, {WS_FLAG}")
    A(f"  s_mov_b32 s94, {WS_FLAG + (36 << opt.fsh)}")
    A("  s_mov_b32 s92, 0")

def srd_bases(A, prod=False):
    if not prod: A("  s_waitcnt lgkmcnt(0)")
    A("  s_mov_b64 s[8:9], s[4:5]\n  s_mov_b64 s[16:17], s[54:55]\n  s_mov_b64 s[36:37], s[52:53]")
    A("  s_mov_b64 s[12:13], s[42:43]\n  s_mov_b64 s[72:73], s[42:43]")

def emit_body(A, opt, nq, em, pre, stmap, pre_lines):
    b = Body(opt); b.build(nq)
    em.age = opt.age
    log = []
    sched.COST["vst"] = opt.vstcost
    sched.COST["dma"] = 8
    sched.COST["dsw"] = opt.dswcost
    stalls = schedule(pre + b.base, em, budget=opt.budget, maxfill=opt.maxfill, lg_extra=opt.lgextra, log=log,
                      prefill=7, cooldown={'vst': opt.stcool, 'dma': opt.dmacool}, padwin=opt.padwin, maxbytes=opt.maxbytes, latscale=2.5)
    verify(pre + b.base, em.out)
    nm = sum(1 for i in em.out if i.kind == "mfma")
    sys.stderr.write(f"body{nq}: instrs {len(em.out)} mfma {nm} forced-cycles {stalls}\n")
    if opt.log:
        for l in log: sys.stderr.write(str(l) + "\n")
    ji = em.out.index(b.join)
    if em.out[ji - 1].kind == "wait": ji -= 1
    live = []
    for k, i in enumerate(em.out[:ji]):
        if i.kind != "dsr" or int(i.writes[0][1:]) < WR0: continue
        w = set(i.writes)
        later_w = any(j.kind == "dsr" and set(j.writes) & w for j in em.out[k + 1:ji])
        used_before = any(j.kind == "mfma" and set(j.reads) & w for j in em.out[k + 1:ji])
        if not later_w and not used_before: live.append(i.text)
    opt.join_reads = live
    assert all(k < ji for k, i in enumerate(em.out) if i.kind == "dma" and "s[8:11]" in i.text)
    assert all(k < ji for k, i in enumerate(em.out) if i.kind == "dma" and i.writes[0].startswith("ND"))
    opt.join_m0 = [i.text for i in em.out[:ji] if "m0" in i.writes and i.text.startswith("s_add")][-1]
    lines = list(pre_lines)
    L = lines.append
    nb = 0
    for k, i in enumerate(em.out):
        if k == ji: L("L_join:")
        for t in i.text.split("\n"): L(t.strip() if t.strip().endswith(":") else "  " + t.strip() + (f"   ; {i.tag}" if i.tag else ""))
        if opt.stamps and i.kind == "bar":
            if nb in stmap:
                if opt.probe is None: L("  s_waitcnt lgkmcnt(0)")
                stamp(L, opt, stmap[nb])
            nb += 1
    if opt.stamps:
        stamp(L, opt, 6)
        L("  s_waitcnt vmcnt(0)")
        stamp(L, opt, 7)
        stamp_out(L, opt)
    L("  s_endpgm")
    lines = [x for l in lines for x in l.split("\n")]
    sizes = insn_sizes([re.sub(r"L_[hd]\w+", "L_pad1", l) for l in lines if not l.endswith(":")])
    total = sum(sizes)
    sys.stderr.write(f"body bytes {total}\n")
    npad = (total + 16) // 4096 if opt.pads else 0
    addr = 0; k = 0; placed = 0
    for l in lines:
        if l.endswith(":"):
            A(l); continue
        if placed < npad and addr >= 4096 * (placed + 1):
            placed += 1
            A(f"L_pad{placed}:")
            A(f"  s_cbranch_execz {'L_pad%d' % (placed + 1) if placed < npad else 'L_padret'}")
            addr += 4
        A(l); addr += sizes[k]; k += 1
    assert placed == npad

def insn_sizes(lines):
    import subprocess, tempfile, re, os
    src = '.amdgcn_target "amdgcn-amd-amdhsa--gfx950"\n.text\nL_pad1:\n' + "\n".join(lines) + "\n"
    open("_sz.s", "w").write(src)
    subprocess.check_call(["clang", "-x", "assembler", "-target", "amdgcn-amd-amdhsa", "-mcpu=gfx950", "-c", "_sz.s", "-o", "_sz.o"])
    out = subprocess.check_output(["llvm-objdump", "-d", "--mcpu=gfx950", "_sz.o"]).decode()
    res = []
    for l in out.splitlines():
        m = re.search(r"// [0-9A-F]{12}: ((?:[0-9A-F]{8} ?)+)", l)
        if m: res.append(4 * len(m.group(1).split()))
    assert len(res) == len(lines), (len(res), len(lines))
    return res

def win_base(A):
    A("  s_mul_hi_u32 s23, s21, 153391690")
    A("  s_mul_i32 s24, s23, 28")
    A("  s_sub_u32 s24, s21, s24")
    A("  s_mul_i32 s23, s23, 688128")
    A("  s_mul_i32 s24, s24, 3072")
    A(f"  s_add_u32 s{SO[0]}, s23, s24")

def x_row(A, r):
    A(f"  s_add_u32 m0, s24, {3072*r}")
    if r % 4: A("  s_add_u32 s25, s25, 86016")
    else: A(f"  s_mov_b32 s25, s{SO[r // 2]}")

def x_load(A, opt, r, k):
    A(f"  buffer_load_dwordx4 v{XO+2*k+(r%2)}, s[8:11], s25 offen offset:{1024*k}{opt.xf} lds")

def x_frags(A, g, step=12288):
    for tt in range(2):
        for s in range(6):
            A(f"  ds_read_b128 {rng('a', X(2*g + tt, s), 4)}, v{FA+s%2} offset:{(s//2)*128 + tt*6144 + g*step}")

def win_addrs(A):
    A(f"  v_add_u32 v{VL[1]}, 0x10000, v{VL[0]}")
    A(f"  v_add_u32 v{VL[2]}, 0x20000, v{VL[0]}")
    A("  v_and_b32 v9, 15, v8")
    A("  v_mul_u32_u24 v10, 384, v9")
    A("  v_add_u32 v10, s24, v10")
    A("  v_bfe_u32 v11, v8, 1, 3")
    A("  v_lshrrev_b32 v12, 4, v8")
    A("  v_xor_b32 v11, v11, v12")
    A(f"  v_lshl_add_u32 v{FA}, v11, 4, v10")
    A("  v_xor_b32 v11, 4, v11")
    A(f"  v_lshl_add_u32 v{FA+1}, v11, 4, v10")
    A(f"  s_add_u32 s{SO[1]}, s{SO[0]}, 172032")
    A(f"  s_add_u32 s{SO[3]}, s{SO[2]}, 172032")

def out_addrs(A):
    A("  v_bfe_u32 v9, v8, 3, 1")
    A("  v_mul_u32_u24 v9, 86016, v9")
    A("  v_and_b32 v10, 7, v8")
    A("  v_mul_u32_u24 v10, 384, v10")
    A("  v_and_b32 v11, 48, v8")
    A(f"  v_add3_u32 v{VO}, v9, v10, v11")

def main_kernel(opt):
    o = []
    A = o.append
    A(f".globl {KN}\n.p2align 12\n.p2align 8\n.type {KN},@function\n{KN}:")
    stamp(A, opt, 0)
    A("  s_load_dwordx4 s[4:7], s[0:1], 0")
    A("  s_load_dwordx4 s[40:43], s[0:1], 16")
    A("  s_load_dwordx4 s[52:55], s[0:1], 32")
    A("  v_lshrrev_b32 v7, 6, v0")
    A("  s_cmp_ge_u32 s2, 256")
    A("  s_cbranch_scc1 L_end")
    A("  v_readfirstlane_b32 s20, v7")
    A("  v_and_b32 v8, 63, v0")
    A(f"  v_lshlrev_b32 v{VL[0]}, 4, v8")
    A("  s_cmp_lg_u32 s20, 3")
    A("  s_cbranch_scc1 L_window")
    A("  s_cmp_ge_u32 s2, 72")
    A("  s_cbranch_scc1 L_pref")
    A("  s_mov_b32 s30, 221184\n  s_mov_b32 s31, 0x00020000\n  s_mov_b32 s35, 0x00020000\n  s_mov_b32 s10, 9216")
    fold(A, opt)
    nl = [0]
    def fill(lo, nbytes):
        nl[0] += 1
        A(f"  s_mov_b32 m0, {lo}")
        A("  s_nop 0")
        A(f"L_fill{nl[0]}:")
        for k in range(3):
            A(f"  buffer_load_dwordx4 v{VL[0]}, s[16:19], m0 offen offset:{1024*k} sc1 lds")
        A("  s_add_u32 m0, m0, 3072")
        A(f"  s_cmp_lt_u32 m0, {lo + nbytes}")
        A(f"  s_cbranch_scc1 L_fill{nl[0]}")
    def hdma(mat, t, n=1):
        fill(woff(mat, t), 12288 * n)
    ROLE[0] = "m"
    A(".p2align 6")
    A("L_window:")
    A("  s_mul_i32 s21, s2, 3")
    A("  s_add_u32 s21, s21, s20")
    win_base(A)
    A(f"  s_add_u32 s{SO[2]}, s{SO[0]}, 344064")
    A("  s_mul_i32 s24, s20, 24576")
    A(f"  s_mov_b32 s14, {XBYTES}")
    stage_offsets(A, 0, XO)
    srd_consts(A, opt)
    srd_bases(A)
    if opt.fastp:
        A(f"  s_sub_u32 s26, s2, {opt.p0}")
        A(f"  s_cmp_lt_u32 s26, {opt.pn - opt.p0}")
        A("  s_cselect_b64 vcc, -1, 0")
        if opt.heavyc:
            A("  s_cmp_ge_u32 s2, 224")
            A("  s_cselect_b64 vcc, -1, vcc")
    if opt.bh:
        A("  s_cmp_ge_u32 s2, 72")
        A("  s_cbranch_scc1 L_nobh")
        A("  s_barrier")
        A("L_nobh:")
    n = 0
    if opt.fstamp: stamp(A, opt, 1)
    for r in range(8 - opt.hold):
        if r == 4:
            A(f"  s_cmp_lt_u32 s2, {opt.deep}")
            A("  s_cbranch_scc1 L_x4")
        x_row(A, r)
        for k in range(3):
            w = opt.xwin if n < opt.xsw else opt.xwin2
            if opt.qn and n == opt.qat:
                A(f"  s_cmp_ge_u32 s2, {opt.qn}")
                A("  s_cbranch_scc1 L_noq")
                A("  s_barrier")
                A("L_noq:")
            if n >= w:
                if opt.fastp > w: A(f"  s_cbranch_vccnz L_xs{n}")
                A(f"  s_waitcnt vmcnt({w-1})")
                if opt.fastp > w:
                    A(f"L_xs{n}:")
                    if n >= opt.fastp: A(f"  s_waitcnt vmcnt({opt.fastp-1})")
            if n == opt.bxn:
                if opt.split:
                    A("  s_sub_u32 s26, s2, 36")
                    A("  s_cmp_lt_u32 s26, 36")
                    A("  s_cbranch_scc1 L_nobx")
                A("  s_barrier")
                A("L_nobx:")
            x_load(A, opt, r, k)
            n += 1
        if r == 1:
            win_addrs(A)
            out_addrs(A)
    if not opt.fstamp: stamp(A, opt, 1)
    if opt.bxn >= 24:
        if opt.pollh > opt.pollat:
            A(f"  s_waitcnt vmcnt({opt.pollh})")
            A("  s_cbranch_vccnz L_bx")
        A("L_x4:")
        A(f"  s_waitcnt vmcnt({opt.pollat})")
        A("L_bx:")
        A("  s_barrier")
    assert opt.pollat == 0 and opt.pollh <= 12 - 3 * opt.hold
    x_frags(A, 0)
    A(f"  s_cmp_lt_u32 s2, {opt.deep}")
    A("  s_cselect_b64 vcc, -1, 0")
    if opt.pads:
        A("  s_mov_b64 exec, 0")
        A("  s_branch L_pad1")
    else:
        A("  s_branch L_padret")
    A("L_deep:")
    for r in range(4, 8 - opt.hold):
        x_row(A, r)
        for k in range(3): x_load(A, opt, r, k)
    A("  s_branch L_deepb")
    ROLE[0] = "h"
    A(".p2align 6")
    A("L_pref:")
    srd_consts(A, opt)
    helper_misc(A, opt)
    srd_bases(A)
    if opt.pref:
        A("  s_getpc_b64 s[48:49]")
        A("L_pc:")
        A(f"  s_sub_u32 s48, s48, L_pc-{KN}")
        A("  s_subb_u32 s49, s49, 0")
        A("  s_lshr_b32 s26, s2, 3")
        A(f"  s_and_b32 s26, s26, {opt.prefn - 1}")
        A("  s_lshl_b32 s26, s26, 13")
        A("  s_add_u32 s26, s26, 1024")
        A("  v_lshl_add_u32 v9, v8, 7, s26")
        A(f"  v_min_u32 v9, L_last-{KN}, v9")
        A("  global_load_dword v29, v9, s[48:49]")
    A("  s_add_u32 s21, s2, 1312")
    A("  s_and_b32 s22, s21, 1")
    A("  s_lshr_b32 s21, s21, 1")
    win_base(A)
    A("  s_mul_i32 s22, s22, 344064")
    A(f"  s_add_u32 s{SO[2]}, s{SO[0]}, 344064")
    A(f"  s_sub_u32 s{SO[2]}, s{SO[2]}, s22")
    A(f"  s_add_u32 s{SO[0]}, s{SO[0]}, s22")
    A("  s_mov_b32 s24, 73728")
    stage_offsets(A, 0, XO)
    A("  s_cmp_lt_u32 s2, 224")
    A("  s_cbranch_scc1 L_loader")
    n = 0
    for r in range(4, 8):
        A(f"  s_mov_b32 m0, {73728 + 3072*(r-4)}")
        A(f"  s_add_u32 s25, s{SO[2]}, {86016*(r%4)}")
        for k in range(3):
            if n >= opt.cwin: A(f"  s_waitcnt vmcnt({opt.cwin-1})")
            x_load(A, opt, r, k); n += 1
    win_addrs(A)
    out_addrs(A)
    A("  s_branch L_loader")
    ROLE[0] = "m"
    A(".p2align 12")
    pl = []
    P = pl.append
    P("L_padret:")
    if opt.pads: P("  s_mov_b64 exec, -1")
    P("  s_waitcnt lgkmcnt(0)")
    stamp(P, opt, 2)
    P("  s_barrier")
    stamp(P, opt, 3)
    emit_body(A, opt, 2, Emitter(), [], {3: 4, 4: 5}, pl)
    A(".p2align 6")
    ROLE[0] = "h"
    A("L_loader:")
    A("  s_barrier")
    if opt.split:
        A("L_nonce:")
        A("  buffer_load_dwordx2 v[14:15], off, s[36:39], 0 sc1")
        bound(A, "L_nonce")
        A("  s_waitcnt vmcnt(0)")
        A("  v_cmp_eq_u32 vcc, 0, v14")
        A("  s_cbranch_vccnz L_nonce")
        A("L_nonce_x:")
        A("  buffer_load_dwordx2 v[12:13], v2, s[16:19], s93 offen sc1")
    else:
        check_issue(A)
    if opt.escout:
        A("  buffer_load_dword v29, v28, s[16:19], s3 offen sc1")
        A("  s_waitcnt vmcnt(1)")
        A("  s_branch L_eval")
    spin_first(A, opt)
    if not opt.fstamp: stamp(A, opt, 3)
    hdma(0, 0)
    A("  s_cmp_eq_u64 vcc, 0")
    A("  s_cbranch_scc1 L_pollB_x")
    spin_flags(A, "L_pollB", "s93", opt.sleep)
    e = 0
    if opt.scout and not opt.escout:
        A("  buffer_load_dword v29, v28, s[16:19], s3 offen sc1"); e = 1
    if opt.ahead:
        hdma(0, 1, 2)
        A("  s_waitcnt vmcnt(24) lgkmcnt(0)")
        if not opt.fstamp: stamp(A, opt, 4)
        A("  s_barrier")
        hdma(0, 3)
        A("  s_waitcnt vmcnt(24)")
        A("  s_barrier")
        hdma(0, 4, 2)
        A("  buffer_load_dwordx2 v[12:13], v2, s[16:19], s94 offen sc1")
        A("  buffer_load_dword v29, v28, s[16:19], 0 offen sc1")
        A("  s_waitcnt vmcnt(38)")
        A("  s_barrier")
        A("  s_cmp_lt_u32 s2, 224")
        A("  s_cbranch_scc1 L_nox")
        x_frags(A, 1, 0)
        A("  s_waitcnt vmcnt(26) lgkmcnt(0)")
        A("  s_barrier")
        for r in range(4):
            x_row(A, r)
            for k in range(3): x_load(A, opt, r, k)
        A("  s_waitcnt vmcnt(13)")
        A("  s_branch L_nox2")
        A("L_nox:")
        A("  s_waitcnt vmcnt(26)")
        A("  s_barrier")
        A("  s_waitcnt vmcnt(1)")
        A("L_nox2:")
        A("  v_cmp_ne_u64 vcc, v[12:13], v[14:15]")
        A("  s_cbranch_vccz L_pollN_x")
        spin_flags(A, "L_pollN", "s94", opt.sleep)
    else:
        hdma(0, 1)
        A(f"  s_waitcnt vmcnt({12+e}) lgkmcnt(0)")
        if not opt.fstamp: stamp(A, opt, 4)
        A("  s_barrier")
        hdma(0, 2)
        A("  s_waitcnt vmcnt(12)")
        A("  s_barrier")
        hdma(0, 3, 2)
        A("  s_waitcnt vmcnt(24)")
        A("  s_barrier")
        hdma(0, 5)
        if opt.nearly:
            A("  buffer_load_dwordx2 v[12:13], v2, s[16:19], s94 offen sc1")
            A("  buffer_load_dword v29, v28, s[16:19], 0 offen sc1")
            A("  s_waitcnt vmcnt(26)")
            A("  s_barrier")
            A("  s_waitcnt vmcnt(1)")
            A("  v_cmp_ne_u64 vcc, v[12:13], v[14:15]")
            A("  s_cbranch_vccz L_pollN_x")
            spin_flags(A, "L_pollN", "s94", opt.sleep)
        else:
            A("  s_waitcnt vmcnt(24)")
            A("  s_barrier")
            A("  buffer_load_dword v29, v28, s[16:19], 0 offen sc1")
            spin_flags(A, "L_pollN", "s94", opt.sleep)
            A("  s_waitcnt vmcnt(0)")
    A("  s_barrier")
    A("  s_cmp_ge_u32 s2, 224")
    A("  s_cbranch_scc1 L_late")
    A("  s_cmp_lg_u32 s2, 0")
    A("  s_cbranch_scc1 L_noep")
    A("  s_mov_b64 exec, 1")
    A("  buffer_store_dwordx2 v[6:7], off, s[16:19], s95 sc1")
    A("  s_mov_b64 exec, -1")
    A("L_noep:")
    if not opt.fstamp: stamp(A, opt, 5)
    stamp_out(A, opt)
    A("L_end:")
    A("  s_endpgm")
    A("L_late:")
    for n, t in enumerate(opt.join_reads):
        if n == 12: A("  s_waitcnt lgkmcnt(0)")
        A("  " + t)
    A("  s_waitcnt vmcnt(0) lgkmcnt(0)")
    x_frags(A, 0)
    A("  s_waitcnt lgkmcnt(0)")
    A("  s_branch L_join")
    A("L_last:")
    A("  s_endpgm")
    return "\n".join(o)

def main():
    ap = argparse.ArgumentParser()
    ap.add_argument("--ring", type=int, default=12)
    ap.add_argument("--dslead", type=float, default=12.0)
    ap.add_argument("--split", type=int, default=0)
    ap.add_argument("--qn", type=int, default=36)
    ap.add_argument("--qat", type=int, default=6)
    ap.add_argument("--deep", type=int, default=72)
    ap.add_argument("--n0at", type=int, default=104)
    ap.add_argument("--n0step", type=int, default=4)
    ap.add_argument("--xwat3", type=int, default=164)
    ap.add_argument("--dmacool", type=int, default=2)
    ap.add_argument("--cskip", type=int, default=0)
    ap.add_argument("--nshare", type=int, default=12)
    ap.add_argument("--cx2", type=int, default=2)
    ap.add_argument("--x2late", type=int, default=1)
    ap.add_argument("--heavyc", type=int, default=1)
    ap.add_argument("--pollh", type=int, default=3)
    ap.add_argument("--ahead", type=int, default=1)
    ap.add_argument("--nearly", type=int, default=1)
    ap.add_argument("--hold", type=int, default=2)
    ap.add_argument("--holdat", type=int, default=36)
    ap.add_argument("--pairc", type=int, default=6)
    ap.add_argument("--mixed", type=int, default=1)
    ap.add_argument("--escout", type=int, default=1)
    ap.add_argument("--blead", type=int, default=14)
    ap.add_argument("--b4c", type=int, default=4)
    ap.add_argument("--olate", type=int, default=2)
    ap.add_argument("--stlead", type=float, default=80.0)
    ap.add_argument("--vstcost", type=int, default=0)
    ap.add_argument("--stcool", type=int, default=6)
    ap.add_argument("--sins", type=int, default=6)
    ap.add_argument("--b4blk", type=int, default=9)
    ap.add_argument("--b1at", type=int, default=5)
    ap.add_argument("--b2at", type=int, default=17)
    ap.add_argument("--b3at", type=int, default=29)
    ap.add_argument("--fastp", type=int, default=8)
    ap.add_argument("--pollat", type=int, default=0)
    ap.add_argument("--fsh", type=int, default=5)
    ap.add_argument("--wf", default="")
    ap.add_argument("--bh", type=int, default=1)
    ap.add_argument("--pads", type=int, default=1)
    ap.add_argument("--maxbytes", type=int, default=24)
    ap.add_argument("--age", type=int, default=10)
    ap.add_argument("--padwin", type=int, default=8)
    ap.add_argument("--ndefer", type=int, default=3)
    ap.add_argument("--xwat", type=int, default=154)
    ap.add_argument("--b5at", type=int, default=168)
    ap.add_argument("--xsw", type=int, default=24)
    ap.add_argument("--xwin2", type=int, default=8)
    ap.add_argument("--cwin", type=int, default=6)
    ap.add_argument("--o41", type=int, default=68)
    ap.add_argument("--dswcost", type=int, default=8)
    ap.add_argument("--bxn", type=int, default=24)
    ap.add_argument("--slowp", type=int, default=0)
    ap.add_argument("--slown", type=int, default=10)
    ap.add_argument("--pn", type=int, default=72)
    ap.add_argument("--p0", type=int, default=0)
    ap.add_argument("--fstamp", type=int, default=0)
    ap.add_argument("--swapmn", type=int, default=0)
    ap.add_argument("--scout", type=int, default=1)
    ap.add_argument("--prefn", type=int, default=4)
    ap.add_argument("--presleep", type=int, default=0)
    ap.add_argument("--pausen", type=int, default=0)
    ap.add_argument("--budget", type=int, default=8)
    ap.add_argument("--maxfill", type=int, default=5)
    ap.add_argument("--lgextra", type=int, default=1)
    ap.add_argument("--xwin", type=int, default=6)
    ap.add_argument("--xearly", type=int, default=24)
    ap.add_argument("--sleep", type=int, default=2)
    ap.add_argument("--pref", type=int, default=1)
    ap.add_argument("--stflags", default="sc1,nt")
    ap.add_argument("--xf", default="nt")
    ap.add_argument("--log", action="store_true")
    ap.add_argument("--nostore", action="store_true")
    ap.add_argument("--stamps", action="store_true")
    ap.add_argument("--probe", default=None)
    ap.add_argument("--pwg", default="0,256")
    opt = ap.parse_args()
    if opt.probe:
        opt.probe = (opt.probe[0], int(opt.probe[1:])); opt.stamps = True
        opt.pwg = [int(x) for x in opt.pwg.split(",")]
    if opt.stflags: opt.stflags = " " + opt.stflags.replace(",", " ")
    if opt.wf: opt.wf = " " + opt.wf.replace(",", " ")
    if opt.stamps and not opt.probe: opt.prefn = 4
    if opt.xf: opt.xf = " " + opt.xf.replace(",", " ")
    print(HDR.rstrip())
    print(f"; @launch grid=(256,1,1) block=(256,1,1) lds=163840")
    print(DOC)
    print('.amdgcn_target "amdgcn-amd-amdhsa--gfx950"\n.text')
    print(main_kernel(opt))
    print('.section .rodata,"a"')
    print(f""".p2align 6
.amdhsa_kernel {KN}
  .amdhsa_next_free_vgpr {256 + 96 + 4 * opt.ring}
  .amdhsa_next_free_sgpr 96
  .amdhsa_accum_offset 256
  .amdhsa_group_segment_fixed_size 0
  .amdhsa_kernarg_size 48
  .amdhsa_user_sgpr_count 2
  .amdhsa_user_sgpr_kernarg_segment_ptr 1
  .amdhsa_system_sgpr_workgroup_id_x 1
.end_amdhsa_kernel""")

main()
```

```python
import sys, struct, argparse, re
import sched
from sched import *

KN = "standalone__swin_window_attn__vision_kernel"
XBYTES = 19267584
SCALE = (192 ** -0.5) * 1.4426950408889634
def f32bits(x): return struct.unpack("<I", struct.pack("<f", x))[0]
HDR = open("standalone__swin_window_attn__vision.s.ref").read().split("; Override launch")[0]
WS_STAMP = 0x1000000
WS_FLAG = 0x40000
WS_EPOCH = 0x50000

DOC = '''; ---------------------------------------------------------------------------------------------
;               v_mfma_f32_16x16x32_bf16; every accumulator layout is the next product's operand layout.
; Generated by a scheduling script (hazard distances and s_waitcnt counts are derived by it).
; ---------------------------------------------------------------------------------------------'''

def woff(mat, t):
    return 90112 + t * 12288 if mat == 0 else t * 12288

X = lambda tt, s: (tt * 6 + s) * 4
WR0 = 96
TA = lambda i: 16 + 4 * (i % 8)
TB = lambda q, s: 48 + (q * 6 + s) * 4
ST = lambda kt, qt: 96 + (qt * 4 + kt) * 4
PB = lambda qt, k: 160 + (qt * 2 + k) * 4
YB = lambda i, b, k: 192 + ((i % 3) * 4 + b * 2 + k) * 4
YB2 = lambda i, b, k: 48 + ((i % 3) * 4 + b * 2 + k) * 4
OB = lambda i: 240 + 4 * (i % 4)
VO = 1
VO2 = 0
VL = [3, 4, 5]
XO = 240
FA = 252
SO = [44, 45, 46, 47]
OSRD = ["s[12:15]", "s[72:75]"]

def mfma(d, ak, a, bk, b, first, tag=""):
    c = "0" if first else rng("v", d, 4)
    rd = R(ak, a, 4) + R(bk, b, 4) + ([] if first else R("v", d, 4))
    return Ins(f"v_mfma_f32_16x16x32_bf16 {rng('v', d, 4)}, {rng(ak, a, 4)}, {rng(bk, b, 4)}, {c}",
               "mfma", rd, R("v", d, 4), srcc=([] if first else R("v", d, 4)), tag=tag)

def valu(op, d, *src, kind="valu", lead=0.0):
    rd = [s for s in src if isinstance(s, str) and s[0] in "vs" and s[1:].isdigit()]
    return Ins(f"{op} {d}, " + ", ".join(str(s) for s in src), kind, rd, [d], lead=lead)

def cvt(d, s0, lead=0.0):
    return valu("v_cvt_pk_bf16_f32", f"v{d}", f"v{s0}", f"v{s0+1}", lead=lead)

def yb(c, b, k):
    return YB(c // 2, b, k) if c % 2 == 0 else YB2(c // 2, b, k)

class Body:
    def __init__(self, opt):
        self.opt = opt
        self.base = []
        self.nfrag = 0
        self.nob = 0
        self.nacc = 0
        self.npair = 0
        self.nd = []
        self.mf = []
    def add(self, i):
        self.base.append(i); return i
    def acc(self):
        self.nacc += 1
        return TA(self.nacc)
    def wtile(self, mat, r):
        res = []
        for s in range(6):
            slot = self.nfrag % self.opt.ring; self.nfrag += 1
            reg = WR0 + 4 * slot
            off = woff(mat, 0) + r * 6144 + s * 1024
            self.add(Ins(f"ds_read_b128 {rng('a', reg, 4)}, v{VL[off >> 16]} offset:{off & 0xffff}", "dsr",
                         [f"v{VL[off >> 16]}", f"L:{mat}:{r // 2}"], R("a", reg, 4), lead=self.opt.dslead))
            res.append(reg)
        return res
    def allred(self, op, x, y):
        for sw in ("v_permlane32_swap_b32", "v_permlane16_swap_b32"):
            self.add(valu("v_mov_b32", y, x))
            self.add(Ins(f"{sw} {x}, {y}", "perm", [x, y], [x, y]))
            self.add(valu(op, x, x, y))
    def softmax(self, qt):
        vals = [ST(kt, qt) + r for kt in range(4) for r in range(4)]
        t0 = 7 + 4 * (qt % 2)
        m0, m1, l0, l1 = (f"v{t0+i}" for i in range(4))
        self.add(valu("v_max3_f32", m0, f"v{vals[0]}", f"v{vals[1]}", f"v{vals[2]}"))
        for k in range(3, 15, 2):
            self.add(valu("v_max3_f32", m0, m0, f"v{vals[k]}", f"v{vals[k+1]}"))
        self.add(valu("v_max_f32", m0, m0, f"v{vals[15]}"))
        self.allred("v_max_f32", m0, m1)
        for k, v in enumerate(vals):
            self.add(valu("v_sub_f32", f"v{v}", f"v{v}", m0))
            self.add(valu("v_exp_f32", f"v{v}", f"v{v}", kind="trans"))
            if k == 1: self.add(valu("v_add_f32", l0, f"v{vals[0]}", f"v{v}"))
            if k > 1: self.add(valu("v_add_f32", l0, l0, f"v{v}"))
        self.allred("v_add_f32", l0, l1)
        self.add(valu("v_rcp_f32", l0, l0, kind="trans"))
        for k in range(2):
            for d in range(4):
                s = ST(2 * k, qt) + 2 * d
                self.add(valu("v_mul_f32", f"v{s}", f"v{s}", l0))
                self.add(valu("v_mul_f32", f"v{s+1}", f"v{s+1}", l0))
                self.add(cvt(PB(qt, k) + d, s))
    def Tchain(self, r, w, g, q):
        acc = self.acc()
        for s in range(6):
            m = self.add(mfma(acc, "a", w[s], "a", X(2 * g + q, s), s == 0, tag=f"T{r}.{2*g+q}"))
            self.mf.append(m)
            if g == 1 and r == 0 and q == 0 and s == 0: self.join = m
        for d in range(2): self.add(cvt(TB(q, r // 2) + 2 * (r % 2) + d, acc + 2 * d))
    def Oblk(self, c, qt):
        ob = OB(self.nob); self.nob += 1
        L = self.opt.stlead; fl = self.opt.stflags
        for b in range(2):
            acc = self.acc()
            for k in range(2):
                self.add(mfma(acc, "v", yb(c, b, k), "v", PB(qt, k), k == 0, tag=f"O{c}.{qt}"))
            for d in range(2): self.add(cvt(ob + 2 * b + d, acc + 2 * d, lead=L))
        if not self.opt.nostore:
            txt = f"buffer_store_dwordx4 {rng('v', ob, 4)}, v{VO}, {OSRD[qt // 2]}, s{SO[qt]} offen offset:{64*c}{fl}"
            if qt < 2 and self.opt.cskip: txt = f"s_cbranch_vccnz L_hs{self.nob}\n{txt}\nL_hs{self.nob}:"
            self.add(Ins(txt, "vst", R("v", ob, 4) + [f"v{VO}"], [], lead=L))
    def Opair(self, c, g):
        par = self.npair % 2; self.npair += 1
        ob = 240 + 8 * par if not self.opt.mixed else 240 + 8 * par
        L = self.opt.stlead; fl = self.opt.stflags
        accs = []
        for q in range(2):
            for b in range(2):
                acc = self.acc(); accs.append(acc)
                for k in range(2):
                    self.add(mfma(acc, "v", yb(c, b, k), "v", PB(2 * g + q, k), k == 0, tag=f"O{c}.{2*g+q}"))
                for d in range(2): self.add(cvt(ob + 4 * q + 2 * b + d, acc + 2 * d, lead=L))
        for d in range(4):
            x, y = f"v{ob+d}", f"v{ob+4+d}"
            self.add(Ins(f"v_permlane16_swap_b32 {x}, {y}", "perm", [x, y], [x, y], lead=L))
        tmp = ST(par, 2 * g)
        def s1(dst):
            for d in range(4):
                self.add(Ins(f"v_cndmask_b32_dpp v{dst+d}, v{ob+4+d}, v{ob+d}, vcc quad_perm:[0,0,2,2] row_mask:0xf bank_mask:0xf",
                             "perm", [f"v{ob+4+d}", f"v{ob+d}", "vcc"], [f"v{dst+d}"], lead=L))
        def s2(dst):
            for d in range(4):
                self.add(Ins(f"v_cndmask_b32_dpp v{dst+d}, v{ob+d}, v{ob+4+d}, vcc quad_perm:[1,1,3,3] row_mask:0xf bank_mask:0xf",
                             "perm", [f"v{ob+4+d}", f"v{ob+d}", "vcc"], [f"v{dst+d}"], lead=L))
        def st(reg, odd):
            if self.opt.nostore: return
            self.add(Ins(f"buffer_store_dwordx4 {rng('v', reg, 4)}, v{VO2}, {OSRD[g]}, s{SO[2*g]} offen offset:{64*c + 384*odd}{fl}",
                         "vst", R("v", reg, 4) + [f"v{VO2}"], [], lead=L))
        flip = Ins("s_not_b64 vcc, vcc", "salu", ["vcc"], ["vcc"], lead=L)
        if par == 0:
            s1(tmp); st(tmp, 0); self.add(flip); s2(ob + 4); st(ob + 4, 1)
        else:
            s2(tmp); st(tmp, 1); self.add(flip); s1(ob); st(ob, 0)
    def Oany(self, c, qt):
        if c >= self.opt.pairc:
            if qt % 2 == 1: self.Opair(c, qt // 2)
        else:
            self.Oblk(c, qt)
    def bar(self, tiles, after, text="s_barrier", reads=()):
        return self.add(Ins(text, "bar", ["BAR"] + list(reads), ["BAR"] + [f"L:{m}:{t}" for m, t in tiles], after=after))

    def build(self, nq):
        opt = self.opt
        allN = [(1, tn) for tn in range(6)]
        for g in range(2):
            for c in range(6):
                if g == 0:
                    if c in (1, 2, 3):
                        bb = self.bar([(0, c)], self.mf[24 * c - opt.blead]); bb.lead = 500
                        if c == 2: self.b2 = bb
                    if c == 4:
                        self.bar([(0, 4), (0, 5)], self.mf[96 - opt.blead])
                        self.add(Ins("s_cbranch_vccnz L_deep\nL_deepb:", "salu", ["s25"], ["m0", "s25"], after=self.b2, lead=300))
                        for r in range(8 - opt.hold, 8):
                            self.add(Ins(f"s_add_u32 m0, s24, {3072*r}", "salu", [], ["m0"], after=self.b2, lead=200))
                            self.add(Ins("s_add_u32 s25, s25, 86016", "salu", ["s25"], ["s25"], after=self.b2, lead=200))
                            for k in range(3):
                                self.add(Ins(f"buffer_load_dwordx4 v{XO+2*k+(r%2)}, s[8:11], s25 offen offset:{1024*k}{opt.xf} lds", "dma",
                                             ["m0", "s25", f"v{XO+2*k+(r%2)}"], [f"XD{r}{k}"], lead=200))
                if g == 1 and c == opt.b4c: self.bar(allN, self.mf[-1], "s_barrier", reads=[f"ND{hh}{k}" for hh in range(8) for k in range(3)])
                if c < 5:
                    for b in range(2):
                        w = self.wtile(0, 2 * c + b)
                        for q in range(2): self.Tchain(2 * c + b, w, g, q)
                else:
                    w = [self.wtile(0, 10), self.wtile(0, 11)]
                    for q in range(2):
                        for b in range(2): self.Tchain(10 + b, w[b], g, q)
            def schain(kt, q):
                for s in range(6):
                    m = self.add(mfma(ST(kt, 2 * g + q), "a", X(kt, s), "v", TB(q, s), s == 0, tag=f"S{kt}.{2*g+q}"))
                    if g == 0: self.mf.append(m)
            if g == 0:
                for q in range(2):
                    for kt in range(2): schain(kt, q)
                def xl(tt, cnt, at):
                    self.add(Ins(f"s_waitcnt vmcnt({cnt})", "salu", [], [f"XW{tt}", "m0"], after=self.mf[at], lead=100))
                    for s in range(6):
                        self.add(Ins(f"ds_read_b128 {rng('a', X(tt, s), 4)}, v{FA+s%2} offset:{(s//2)*128 + tt*6144}", "dsr",
                                     [f"XW{tt}", f"v{FA+s%2}"], R("a", X(tt, s), 4), lead=100))
                def nfill(hh, at, step):
                    xr = [r for s in range(6) for r in R("a", X(hh // 2, s), 4)] if hh >= 4 else []
                    self.add(Ins(f"s_add_u32 m0, s24, {3072*hh}", "salu", xr, ["m0"], after=self.mf[at], lead=400))
                    for k in range(3):
                        self.nd.append(self.add(Ins(f"buffer_load_dwordx4 v{VL[0]}, s[16:19], m0 offen offset:{1024*k} sc1 lds", "dma",
                                     ["m0"], [f"ND{hh}{k}"], after=self.mf[at + k * step], lead=400)))
                for hh in range(4): nfill(hh, opt.n0at + 3 * opt.n0step * hh, opt.n0step)
                xl(2, 18, opt.xwat)
                xl(3, 12, opt.xwat3)
                schain(2, 0); schain(2, 1)
                for hh in range(4, 8): nfill(hh, opt.xwat3 + (11 if hh >= 6 else 1), 0)
                schain(3, 0); self.softmax(0)
                schain(3, 1); self.softmax(1)
            else:
                for q in range(2):
                    for kt in range(4): schain(kt, q)
                    self.softmax(2 + q)
        pos = {}
        def put(c, n, blk): pos.setdefault((c, n), []).append(blk)
        for c in range(5):
            put(c + 1, 2, (c, 0)); put(c + 1, 4, (c, 1))
        late = opt.olate
        sl = [(late + i // 4, (1, 3, 5, 7)[i % 4]) for i in range(40)]
        i = 0
        for c in range(5):
            for qt in (2, 3):
                while sl[i] < (c + 1, 2): i += 1
                put(*sl[i], (c, qt)); i += 1
        for c in range(6):
            n = 0
            for b in range(2):
                w = self.wtile(1, 2 * c + b)
                for kt in range(4):
                    for blk in pos.get((c, n), []): self.Oany(*blk)
                    acc = self.acc()
                    for s in range(6):
                        self.add(mfma(acc, "a", X(kt, s), "a", w[s], s == 0, tag=f"Y{2*c+b}.{kt}"))
                    for d in range(2): self.add(cvt(yb(c, b, kt // 2) + 2 * (kt % 2) + d, acc + 2 * d))
                    n += 1
        for key in sorted(pos):
            if key[0] >= 6:
                for blk in pos[key]: self.Oany(*blk)
        for qt in range(4): self.Oany(5, qt)

_ph = [0]
ROLE = ["h"]
def stamp(A, opt, k):
    if opt.probe is not None:
        if (ROLE[0], k) == opt.probe or (k == 0 and opt.probe[1] == 0):
            A("  s_memrealtime s[56:57]")
            A("  s_waitcnt lgkmcnt(0)")
        return
    if opt.stamps:
        A(f"  s_memrealtime s[{56+2*k}:{57+2*k}]")
        A(f"  s_memtime s[{76+2*k}:{77+2*k}]")
        A(f"  s_waitcnt lgkmcnt(0)")

def stamp_out(A, opt):
    if opt.probe is not None:
        if ROLE[0] != opt.probe[0]: return
        _ph[0] += 1; n = _ph[0]
        A(f"  s_sub_u32 s60, s2, {opt.pwg[0]}")
        A(f"  s_cmp_ge_u32 s60, {opt.pwg[1] - opt.pwg[0]}")
        A(f"  s_cbranch_scc1 L_hx{n}")
        if ROLE[0] == "m":
            A("  s_cmp_eq_u32 s20, 3")
            A(f"  s_cbranch_scc1 L_hx{n}")
        A(f"L_hold{n}:")
        A("  s_memrealtime s[58:59]")
        A("  s_waitcnt lgkmcnt(0)")
        A("  s_sub_u32 s60, s58, s56")
        A("  s_cmp_lt_u32 s60, 1500")
        A(f"  s_cbranch_scc1 L_hold{n}")
        A(f"L_hx{n}:")
        return
    if not opt.stamps: return
    for k in range(8): A(f"  v_mov_b32 v{16+k}, s{56+2*k}")
    for k in range(8): A(f"  v_mov_b32 v{24+k}, s{76+2*k}")
    A(f"  s_lshl_b32 s26, s2, 2\n  s_add_u32 s26, s26, s20\n  s_lshl_b32 s26, s26, 5\n  s_add_u32 s26, s26, {WS_STAMP}")
    A("  s_mov_b32 s18, 0x10000000")
    A("  v_mov_b32 v7, 0")
    A("  buffer_store_dwordx4 v[16:19], v7, s[16:19], s26 offen")
    A("  buffer_store_dwordx4 v[20:23], v7, s[16:19], s26 offen offset:16")
    A("  s_add_u32 s26, s26, 0x10000")
    A("  buffer_store_dwordx4 v[24:27], v7, s[16:19], s26 offen")
    A("  buffer_store_dwordx4 v[28:31], v7, s[16:19], s26 offen offset:16")

def bound(A, label):
    A("  s_add_u32 s92, s92, 1")
    A("  s_cmp_gt_u32 s92, 200000")
    A(f"  s_cbranch_scc1 {label}_x")

def check_issue(A):
    A("  buffer_load_dwordx2 v[14:15], off, s[36:39], 0 sc1")
    A("  buffer_load_dwordx2 v[12:13], v2, s[16:19], s93 offen sc1")

def spin_first(A, opt):
    if not opt.escout: A("  s_branch L_pollA_0")
    A("L_pollA:")
    if opt.sleep: A(f"  s_sleep {opt.sleep}")
    if opt.nset > 1: A(f"  s_mov_b32 s93, {WS_FLAG + 4096 * opt.nrep}")
    check_issue(A)
    bound(A, "L_pollA")
    A("L_pollA_0:")
    A("  s_waitcnt vmcnt(0)")
    A("L_eval:")
    A("  v_cmp_ne_u64 vcc, v[12:13], v[14:15]")
    A("  v_cmp_eq_u32 s[26:27], 0, v14")
    A("  s_nop 1")
    A("  s_or_b64 vcc, vcc, s[26:27]")
    A("  s_and_b32 s26, vcc_lo, 0x3f")
    A("  s_cbranch_scc1 L_pollA")
    A("L_pollA_x:")

def spin_flags(A, label, sreg, sleep):
    if sleep: A(f"  s_branch {label}_0")
    A(f"{label}:")
    if sleep: A(f"  s_sleep {sleep}")
    A(f"{label}_0:")
    A(f"  buffer_load_dwordx2 v[12:13], v2, s[16:19], {sreg} offen sc1")
    bound(A, label)
    A("  s_waitcnt vmcnt(0)")
    A("  v_cmp_ne_u64 vcc, v[12:13], v[14:15]")
    A(f"  s_cbranch_vccnz {label}")
    A(f"{label}_x:")

def stage_offsets(A, rowx, d0=16):
    for k in range(3):
        A(f"  v_add_u32 v9, {64*k}, v8")
        A("  v_mul_u32_u24 v9, 0xaab, v9")
        if rowx:
            A("  v_lshrrev_b32 v10, 16, v9")
            A(f"  v_mul_u32_u24 v10, {rowx}, v10")
        A("  v_lshrrev_b32 v9, 17, v9")
        A("  v_xor_b32 v9, v9, v8")
        if rowx:
            A("  v_xor_b32 v11, 4, v9")
            A(f"  v_lshl_add_u32 v{d0+2*k}, v9, 4, v10")
            A(f"  v_lshl_add_u32 v{d0+1+2*k}, v11, 4, v10")
        else:
            A(f"  v_lshlrev_b32 v{d0+2*k}, 4, v9")
            A(f"  v_xor_b32 v{d0+1+2*k}, 64, v{d0+2*k}")

def frag_addrs(A, jreg, base, dst=24):
    A(f"  v_mul_u32_u24 v10, 384, {jreg}")
    A(f"  v_add_u32 v10, {base}, v10")
    A(f"  v_bfe_u32 v11, {jreg}, 1, 3")
    A("  v_lshrrev_b32 v12, 5, v8")
    A("  v_xor_b32 v11, v11, v12")
    for m in range(4):
        A(f"  v_xor_b32 v13, {2*m}, v11")
        A(f"  v_lshl_add_u32 v{dst+m}, v13, 4, v10")

def fold(A, opt):
    SC = 73728
    A("  s_cmp_ge_u32 s2, 36")
    A("  s_cselect_b32 s51, 36, 0")
    A("  s_cselect_b64 vcc, -1, 0")
    A("  s_cselect_b32 s50, 768, 0")
    A("  s_cselect_b32 s21, 64, 36864")
    A("  s_cselect_b32 s24, 0, 384")
    A("  s_cselect_b32 s25, 18432, s10")
    A("  s_cselect_b32 s34, 73728, s30")
    A("  s_sub_u32 s51, s2, s51")
    A("  s_mul_i32 s48, s51, 43")
    A("  s_lshr_b32 s48, s48, 8")
    A("  s_mul_i32 s49, s48, 6")
    A("  s_sub_u32 s49, s51, s49")
    A("  s_mul_i32 s22, s49, 36864")
    A("  s_add_u32 s22, s22, s50")
    A("  s_mul_i32 s23, s48, s21")
    A("  s_add_u32 s23, s23, s24")
    stage_offsets(A, 768)
    A("  v_lshrrev_b32 v14, 2, v8")
    A("  v_mul_u32_u24 v14, 384, v14")
    A("  v_and_b32 v13, 3, v8")
    A("  v_lshl_add_u32 v14, v13, 4, v14")
    for k in range(3):
        if k: A(f"  v_add_u32 v14, 5120, v14")
        A(f"  v_cndmask_b32 v{144+2*k}, v{16+2*k}, v14, vcc")
        A(f"  v_cndmask_b32 v{145+2*k}, v{17+2*k}, v14, vcc")
    A("  s_waitcnt lgkmcnt(0)")
    A("  s_cmp_ge_u32 s2, 36")
    A("  s_mov_b64 s[28:29], s[6:7]")
    A("  s_cselect_b64 s[32:33], s[40:41], s[6:7]")
    def panel(sreg, lds, v0, srd, step):
        for r in range(4):
            A(f"  s_mov_b32 m0, {lds + 3072*r}")
            if r: A(f"  s_add_u32 {sreg}, {sreg}, {step}")
            else: A("  s_nop 0")
            for k in range(3):
                A(f"  buffer_load_dwordx4 v{v0+2*k+(r%2)}, {srd}, {sreg} offen offset:{1024*k}{opt.wf} lds")
    panel("s23", SC + 12288, 144, "s[32:35]", "s25")
    panel("s22", SC, 16, "s[28:31]", 9216)
    srd_consts(A, opt, True)
    srd_bases(A, True)
    A(f"  s_mov_b32 s95, {WS_EPOCH}")
    A("  buffer_load_dwordx2 v[6:7], off, s[16:19], s95 sc1")
    stamp(A, opt, 7)
    if opt.bh: A("  s_barrier")
    helper_misc(A, opt, True)
    A("  v_and_b32 v9, 0x13, v8")
    A("  v_and_b32 v10, 4, v8")
    A("  v_lshl_or_b32 v9, v10, 1, v9")
    A("  v_and_b32 v10, 8, v8")
    A("  v_lshrrev_b32 v10, 1, v10")
    A("  v_or_b32 v9, v9, v10")
    frag_addrs(A, "v9", SC)
    A("  v_and_b32 v9, 3, v8")
    A("  v_bfe_u32 v10, v8, 2, 2")
    A("  v_lshl_or_b32 v9, v10, 3, v9")
    A("  v_bfe_u32 v10, v8, 4, 1")
    A("  v_lshl_or_b32 v9, v10, 2, v9")
    frag_addrs(A, "v9", SC, 150)
    A("  v_bfe_u32 v9, v8, 4, 1")
    A("  v_mul_u32_u24 v9, 6144, v9")
    A("  v_and_b32 v10, 15, v8")
    A("  v_lshl_add_u32 v9, v10, 4, v9")
    A("  v_lshl_add_u32 v154, v12, 8, v9")
    A("  v_lshlrev_b32 v155, 12, v8")
    A("  v_bfe_u32 v14, v8, 2, 2")
    A("  v_lshl_add_u32 v14, v12, 3, v14")
    A("  v_lshlrev_b32 v14, 6, v14")
    A("  v_bfe_u32 v13, v8, 4, 1")
    A("  v_lshl_add_u32 v14, v13, 3, v14")
    A("  v_and_b32 v13, 3, v8")
    A("  v_lshl_add_u32 v14, v13, 4, v14")
    A(f"  v_add_u32 v14, {SC + 12288}, v14")
    A("  s_mul_i32 s26, s48, 12288")
    A(f"  s_add_u32 s27, s26, {woff(0,0)}")
    A("  s_lshl_b32 s54, s49, 10")
    A("  s_cmp_ge_u32 s2, 36")
    A("  s_cselect_b32 s26, s26, s27")
    A(f"  s_cselect_b32 s27, 1.0, {f32bits(SCALE):#x}")
    A("  s_add_u32 s26, s26, s54")
    A(f"  s_lshl_b32 s54, s2, {opt.fsh}")
    A(f"  s_add_u32 s54, s54, {WS_FLAG}")
    if opt.fstamp: stamp(A, opt, 5)
    A("  s_waitcnt vmcnt(13)")
    if opt.fstamp: stamp(A, opt, 3)
    A("  s_cbranch_vccnz L_fold_tr")
    for s in range(12):
        A(f"  ds_read_b128 v[{80+4*s}:{83+4*s}], v{150+s%4} offset:{(s//4)*128 + 12288}")
    A("  s_branch L_fold_a")
    A("L_fold_tr:")
    for s in range(12):
        for jj in range(2):
            A(f"  ds_read_b64_tr_b16 v[{80+4*s+2*jj}:{81+4*s+2*jj}], v14 offset:{1024*s + 256*jj}")
        if s == 6: A("  s_waitcnt lgkmcnt(0)")
    A("L_fold_a:")
    A("  s_waitcnt vmcnt(1) lgkmcnt(0)")
    if opt.fstamp: stamp(A, opt, 4)
    for s in range(12):
        A(f"  ds_read_b128 v[{32+4*s}:{35+4*s}], v{24+s%4} offset:{(s//4)*128}")
    for s in range(12):
        c = "0" if s == 0 else "v[128:143]"
        A(f"  s_waitcnt lgkmcnt({11-s})")
        A(f"  v_mfma_f32_32x32x16_bf16 v[128:143], v[{32+4*s}:{35+4*s}], v[{80+4*s}:{83+4*s}], {c}")
    stamp(A, opt, 1)
    A("  s_nop 11")
    for d in range(8):
        A(f"  v_mul_f32 v{128+2*d}, s27, v{128+2*d}")
        A(f"  v_mul_f32 v{129+2*d}, s27, v{129+2*d}")
        A(f"  v_cvt_pk_bf16_f32 v{32+d}, v{128+2*d}, v{129+2*d}")
        if d == 3: A(f"  buffer_store_dwordx4 v[32:35], v154, s[16:19], s26 offen sc1")
    A(f"  buffer_store_dwordx4 v[36:39], v154, s[16:19], s26 offen offset:512 sc1")
    A("  s_waitcnt vmcnt(2)")
    A("  v_add_co_u32 v6, vcc, 2, v6")
    A("  s_nop 1")
    A("  v_addc_co_u32 v7, vcc, 0, v7, vcc")
    A("  v_or_b32 v6, 1, v6")
    A("  s_mov_b64 exec, 1")
    A("  s_cmp_lg_u32 s2, 0")
    A("  s_cbranch_scc1 L_fold_pub")
    A("  buffer_store_dwordx2 v[6:7], off, s[36:39], 0 sc1")
    A("L_fold_pub:")
    A("  s_waitcnt vmcnt(0)")
    stamp(A, opt, 2)
    A(f"  s_mov_b64 exec, {(1 << (opt.nrep * opt.nset)) - 1}")
    A("  buffer_store_dwordx2 v[6:7], v155, s[16:19], s54 offen sc1")
    A("  s_mov_b64 exec, -1")
    if opt.qn:
        if opt.qn < 72:
            A(f"  s_cmp_ge_u32 s2, {opt.qn}")
            A("  s_cbranch_scc1 L_noq2")
        A("  s_barrier")
        A("L_noq2:")
    stamp(A, opt, 6)
    if opt.split:
        A("  v_mov_b32 v14, v6")
        A("  v_mov_b32 v15, v7")
        A("  s_cmp_ge_u32 s2, 36")
        A("  s_cbranch_scc1 L_nonce_x")
    A("  s_branch L_loader")

def helper_misc(A, opt, prod=False):
    A("  s_mov_b32 s14, 0")
    A(f"  v_mov_b32 v{VO}, 0")
    if prod:
        for k in range(6): A(f"  v_mov_b32 v{XO+k}, 0")
    A("  v_min_u32 v2, 35, v8")
    A(f"  v_lshlrev_b32 v2, {opt.fsh}, v2")
    if opt.nrep > 1:
        A(f"  s_and_b32 s26, s2, {opt.nrep - 1}")
        A("  s_lshl_b32 s26, s26, 12")
        A("  v_add_u32 v2, s26, v2")
    A("  s_lshr_b32 s26, s2, 3")
    if opt.scout == 1:
        A("  s_mul_i32 s27, s26, 57")
        A("  s_lshr_b32 s27, s27, 9")
        A("  s_mul_i32 s27, s27, 9")
        A("  s_sub_u32 s26, s26, s27")
        A("  s_lshl_b32 s26, s26, 13")
        A("  v_lshl_add_u32 v28, v8, 7, s26")
    else:
        A("  s_cmp_ge_u32 s26, 18")
        A("  s_cselect_b32 s27, 14, 0")
        A("  s_sub_u32 s26, s26, s27")
        A("  s_lshl_b32 s26, s26, 12")
        A("  v_and_b32 v28, 31, v8")
        A("  v_lshl_add_u32 v28, v28, 7, s26")
    A(f"  s_mov_b32 s3, {woff(0, 0)}")

def srd_consts(A, opt, prod=False):
    A(f"  s_mov_b32 s10, {XBYTES}\n  s_mov_b32 s11, 0x00020000")
    A(f"  s_mov_b32 s15, 0x00020000")
    A("  s_mov_b32 s18, 0x60000\n  s_mov_b32 s19, 0x00020000")
    A("  s_mov_b32 s38, 256\n  s_mov_b32 s39, 0x00020000")
    A(f"  s_mov_b32 s74, {XBYTES}\n  s_mov_b32 s75, 0x00020000")
    A(f"  s_mov_b32 s93, {WS_FLAG}")
    A(f"  s_mov_b32 s94, {WS_FLAG + (36 << opt.fsh)}")
    A("  s_mov_b32 s92, 0")

def srd_bases(A, prod=False):
    if not prod: A("  s_waitcnt lgkmcnt(0)")
    A("  s_mov_b64 s[8:9], s[4:5]\n  s_mov_b64 s[16:17], s[54:55]\n  s_mov_b64 s[36:37], s[52:53]")
    A("  s_mov_b64 s[12:13], s[42:43]\n  s_mov_b64 s[72:73], s[42:43]")

def emit_body(A, opt, nq, em, pre, stmap, pre_lines):
    b = Body(opt); b.build(nq)
    em.age = opt.age
    log = []
    sched.COST["vst"] = opt.vstcost
    sched.COST["dma"] = 8
    sched.COST["dsw"] = opt.dswcost
    stalls = schedule(pre + b.base, em, budget=opt.budget, maxfill=opt.maxfill, lg_extra=opt.lgextra, log=log,
                      prefill=7, cooldown={'vst': opt.stcool, 'dma': opt.dmacool}, padwin=opt.padwin, maxbytes=opt.maxbytes, latscale=2.5)
    verify(pre + b.base, em.out)
    nm = sum(1 for i in em.out if i.kind == "mfma")
    sys.stderr.write(f"body{nq}: instrs {len(em.out)} mfma {nm} forced-cycles {stalls}\n")
    if opt.log:
        for l in log: sys.stderr.write(str(l) + "\n")
    ji = em.out.index(b.join)
    if em.out[ji - 1].kind == "wait": ji -= 1
    live = []
    for k, i in enumerate(em.out[:ji]):
        if i.kind != "dsr" or int(i.writes[0][1:]) < WR0: continue
        w = set(i.writes)
        later_w = any(j.kind == "dsr" and set(j.writes) & w for j in em.out[k + 1:ji])
        used_before = any(j.kind == "mfma" and set(j.reads) & w for j in em.out[k + 1:ji])
        if not later_w and not used_before: live.append(i.text)
    opt.join_reads = live
    assert all(k < ji for k, i in enumerate(em.out) if i.kind == "dma" and "s[8:11]" in i.text)
    assert all(k < ji for k, i in enumerate(em.out) if i.kind == "dma" and i.writes[0].startswith("ND"))
    opt.join_m0 = [i.text for i in em.out[:ji] if "m0" in i.writes and i.text.startswith("s_add")][-1]
    lines = list(pre_lines)
    L = lines.append
    nb = 0
    for k, i in enumerate(em.out):
        if k == ji: L("L_join:")
        for t in i.text.split("\n"): L(t.strip() if t.strip().endswith(":") else "  " + t.strip() + (f"   ; {i.tag}" if i.tag else ""))
        if opt.stamps and i.kind == "bar":
            if nb in stmap:
                if opt.probe is None: L("  s_waitcnt lgkmcnt(0)")
                stamp(L, opt, stmap[nb])
            nb += 1
    if opt.stamps:
        stamp(L, opt, 6)
        L("  s_waitcnt vmcnt(0)")
        stamp(L, opt, 7)
        stamp_out(L, opt)
    L("  s_endpgm")
    lines = [x for l in lines for x in l.split("\n")]
    sizes = insn_sizes([re.sub(r"L_[hd]\w+", "L_pad1", l) for l in lines if not l.endswith(":")])
    total = sum(sizes)
    sys.stderr.write(f"body bytes {total}\n")
    npad = (total + 16) // 4096 if opt.pads else 0
    addr = 0; k = 0; placed = 0
    for l in lines:
        if l.endswith(":"):
            A(l); continue
        if placed < npad and addr >= 4096 * (placed + 1):
            placed += 1
            A(f"L_pad{placed}:")
            A(f"  s_cbranch_execz {'L_pad%d' % (placed + 1) if placed < npad else 'L_padret'}")
            addr += 4
        A(l); addr += sizes[k]; k += 1
    assert placed == npad

def insn_sizes(lines):
    import subprocess, tempfile, re, os
    src = '.amdgcn_target "amdgcn-amd-amdhsa--gfx950"\n.text\nL_pad1:\n' + "\n".join(lines) + "\n"
    open("_sz.s", "w").write(src)
    subprocess.check_call(["clang", "-x", "assembler", "-target", "amdgcn-amd-amdhsa", "-mcpu=gfx950", "-c", "_sz.s", "-o", "_sz.o"])
    out = subprocess.check_output(["llvm-objdump", "-d", "--mcpu=gfx950", "_sz.o"]).decode()
    res = []
    for l in out.splitlines():
        m = re.search(r"// [0-9A-F]{12}: ((?:[0-9A-F]{8} ?)+)", l)
        if m: res.append(4 * len(m.group(1).split()))
    assert len(res) == len(lines), (len(res), len(lines))
    return res

def win_base(A):
    A("  s_mul_hi_u32 s23, s21, 153391690")
    A("  s_mul_i32 s24, s23, 28")
    A("  s_sub_u32 s24, s21, s24")
    A("  s_mul_i32 s23, s23, 688128")
    A("  s_mul_i32 s24, s24, 3072")
    A(f"  s_add_u32 s{SO[0]}, s23, s24")

def x_row(A, r):
    A(f"  s_add_u32 m0, s24, {3072*r}")
    if r % 4: A("  s_add_u32 s25, s25, 86016")
    else: A(f"  s_mov_b32 s25, s{SO[r // 2]}")

def x_load(A, opt, r, k):
    A(f"  buffer_load_dwordx4 v{XO+2*k+(r%2)}, s[8:11], s25 offen offset:{1024*k}{opt.xf} lds")

def x_frags(A, g, step=12288):
    for tt in range(2):
        for s in range(6):
            A(f"  ds_read_b128 {rng('a', X(2*g + tt, s), 4)}, v{FA+s%2} offset:{(s//2)*128 + tt*6144 + g*step}")

def win_addrs(A):
    A(f"  v_add_u32 v{VL[1]}, 0x10000, v{VL[0]}")
    A(f"  v_add_u32 v{VL[2]}, 0x20000, v{VL[0]}")
    A("  v_and_b32 v9, 15, v8")
    A("  v_mul_u32_u24 v10, 384, v9")
    A("  v_add_u32 v10, s24, v10")
    A("  v_bfe_u32 v11, v8, 1, 3")
    A("  v_lshrrev_b32 v12, 4, v8")
    A("  v_xor_b32 v11, v11, v12")
    A(f"  v_lshl_add_u32 v{FA}, v11, 4, v10")
    A("  v_xor_b32 v11, 4, v11")
    A(f"  v_lshl_add_u32 v{FA+1}, v11, 4, v10")
    A(f"  s_add_u32 s{SO[1]}, s{SO[0]}, 172032")
    A(f"  s_add_u32 s{SO[3]}, s{SO[2]}, 172032")

def out_addrs(A):
    A("  v_bfe_u32 v9, v8, 3, 1")
    A("  v_mul_u32_u24 v9, 86016, v9")
    A("  v_and_b32 v10, 7, v8")
    A("  v_mul_u32_u24 v10, 384, v10")
    A("  v_and_b32 v11, 48, v8")
    A(f"  v_add3_u32 v{VO}, v9, v10, v11")

def main_kernel(opt):
    o = []
    A = o.append
    A(f".globl {KN}\n.p2align 12\n.p2align 8\n.type {KN},@function\n{KN}:")
    stamp(A, opt, 0)
    A("  s_load_dwordx4 s[4:7], s[0:1], 0")
    A("  s_load_dwordx4 s[40:43], s[0:1], 16")
    A("  s_load_dwordx4 s[52:55], s[0:1], 32")
    A("  v_lshrrev_b32 v7, 6, v0")
    A("  s_cmp_ge_u32 s2, 256")
    A("  s_cbranch_scc1 L_end")
    A("  v_readfirstlane_b32 s20, v7")
    A("  v_and_b32 v8, 63, v0")
    A(f"  v_lshlrev_b32 v{VL[0]}, 4, v8")
    A("  s_cmp_lg_u32 s20, 3")
    A("  s_cbranch_scc1 L_window")
    A("  s_cmp_ge_u32 s2, 72")
    A("  s_cbranch_scc1 L_pref")
    A("  s_mov_b32 s30, 221184\n  s_mov_b32 s31, 0x00020000\n  s_mov_b32 s35, 0x00020000\n  s_mov_b32 s10, 9216")
    fold(A, opt)
    nl = [0]
    def fill(lo, nbytes):
        nl[0] += 1
        A(f"  s_mov_b32 m0, {lo}")
        A("  s_nop 0")
        A(f"L_fill{nl[0]}:")
        for k in range(3):
            A(f"  buffer_load_dwordx4 v{VL[0]}, s[16:19], m0 offen offset:{1024*k} sc1 lds")
        A("  s_add_u32 m0, m0, 3072")
        A(f"  s_cmp_lt_u32 m0, {lo + nbytes}")
        A(f"  s_cbranch_scc1 L_fill{nl[0]}")
    def hdma(mat, t, n=1):
        fill(woff(mat, t), 12288 * n)
    ROLE[0] = "m"
    A(".p2align 6")
    A("L_window:")
    A("  s_mul_i32 s21, s2, 3")
    A("  s_add_u32 s21, s21, s20")
    win_base(A)
    A(f"  s_add_u32 s{SO[2]}, s{SO[0]}, 344064")
    A("  s_mul_i32 s24, s20, 24576")
    A(f"  s_mov_b32 s14, {XBYTES}")
    stage_offsets(A, 0, XO)
    def late_setup():
        srd_consts(A, opt)
        srd_bases(A)
        if opt.fastp:
            A(f"  s_sub_u32 s26, s2, {opt.p0}")
            A(f"  s_cmp_lt_u32 s26, {opt.pn - opt.p0}")
            A("  s_cselect_b64 vcc, -1, 0")
            if opt.heavyc:
                A("  s_cmp_ge_u32 s2, 224")
                A("  s_cselect_b64 vcc, -1, vcc")
    if opt.quick:
        A(f"  s_mov_b32 s10, {XBYTES}\n  s_mov_b32 s11, 0x00020000")
        A("  s_waitcnt lgkmcnt(0)")
        A("  s_mov_b64 s[8:9], s[4:5]")
    else:
        late_setup()
    if opt.bh:
        A("  s_cmp_ge_u32 s2, 72")
        A("  s_cbranch_scc1 L_nobh")
        A("  s_barrier")
        A("L_nobh:")
    n = 0
    if opt.fstamp: stamp(A, opt, 1)
    for r in range(8 - opt.hold):
        if r == 4:
            A(f"  s_cmp_lt_u32 s2, {opt.deep}")
            A("  s_cbranch_scc1 L_x4")
        x_row(A, r)
        for k in range(3):
            w = opt.xwin if n < opt.xsw else opt.xwin2
            if opt.qn and n == opt.qat:
                A(f"  s_cmp_ge_u32 s2, {opt.qn}")
                A("  s_cbranch_scc1 L_noq")
                A("  s_barrier")
                A("L_noq:")
            if n >= w:
                if opt.fastp > w: A(f"  s_cbranch_vccnz L_xs{n}")
                A(f"  s_waitcnt vmcnt({w-1})")
                if opt.fastp > w:
                    A(f"L_xs{n}:")
                    if n >= opt.fastp: A(f"  s_waitcnt vmcnt({opt.fastp-1})")
            if n == opt.bxn:
                if opt.split:
                    A("  s_sub_u32 s26, s2, 36")
                    A("  s_cmp_lt_u32 s26, 36")
                    A("  s_cbranch_scc1 L_nobx")
                A("  s_barrier")
                A("L_nobx:")
            x_load(A, opt, r, k)
            n += 1
        if r == 1:
            if opt.quick: late_setup()
            win_addrs(A)
            out_addrs(A)
    if not opt.fstamp: stamp(A, opt, 1)
    if opt.bxn >= 24:
        if opt.pollh > opt.pollat:
            A(f"  s_waitcnt vmcnt({opt.pollh})")
            A("  s_cbranch_vccnz L_bx")
        A("L_x4:")
        A(f"  s_waitcnt vmcnt({opt.pollat})")
        A("L_bx:")
        A("  s_barrier")
    assert opt.pollat == 0 and opt.pollh <= 12 - 3 * opt.hold
    x_frags(A, 0)
    A(f"  s_cmp_lt_u32 s2, {opt.deep}")
    A("  s_cselect_b64 vcc, -1, 0")
    if opt.pads:
        A("  s_mov_b64 exec, 0")
        A("  s_branch L_pad1")
    else:
        A("  s_branch L_padret")
    A("L_deep:")
    for r in range(4, 8 - opt.hold):
        x_row(A, r)
        for k in range(3): x_load(A, opt, r, k)
    A("  s_branch L_deepb")
    ROLE[0] = "h"
    A(".p2align 6")
    A("L_pref:")
    srd_consts(A, opt)
    helper_misc(A, opt)
    srd_bases(A)
    if opt.pref:
        A("  s_getpc_b64 s[48:49]")
        A("L_pc:")
        A(f"  s_sub_u32 s48, s48, L_pc-{KN}")
        A("  s_subb_u32 s49, s49, 0")
        A("  s_lshr_b32 s26, s2, 3")
        A(f"  s_and_b32 s26, s26, {opt.prefn - 1}")
        A("  s_lshl_b32 s26, s26, 13")
        A("  s_add_u32 s26, s26, 1024")
        A("  v_lshl_add_u32 v9, v8, 7, s26")
        A(f"  v_min_u32 v9, L_last-{KN}, v9")
        A("  global_load_dword v29, v9, s[48:49]")
    A("  s_add_u32 s21, s2, 1312")
    A("  s_and_b32 s22, s21, 1")
    A("  s_lshr_b32 s21, s21, 1")
    win_base(A)
    A("  s_mul_i32 s22, s22, 344064")
    A(f"  s_add_u32 s{SO[2]}, s{SO[0]}, 344064")
    A(f"  s_sub_u32 s{SO[2]}, s{SO[2]}, s22")
    A(f"  s_add_u32 s{SO[0]}, s{SO[0]}, s22")
    A("  s_mov_b32 s24, 73728")
    stage_offsets(A, 0, XO)
    A("  s_cmp_lt_u32 s2, 224")
    A("  s_cbranch_scc1 L_loader")
    n = 0
    for r in range(4, 8):
        A(f"  s_mov_b32 m0, {73728 + 3072*(r-4)}")
        A(f"  s_add_u32 s25, s{SO[2]}, {86016*(r%4)}")
        for k in range(3):
            if n >= opt.cwin: A(f"  s_waitcnt vmcnt({opt.cwin-1})")
            x_load(A, opt, r, k); n += 1
    win_addrs(A)
    out_addrs(A)
    A("  s_branch L_loader")
    ROLE[0] = "m"
    A(".p2align 12")
    pl = []
    P = pl.append
    P("L_padret:")
    if opt.pads: P("  s_mov_b64 exec, -1")
    P("  s_waitcnt lgkmcnt(0)")
    stamp(P, opt, 2)
    P("  s_barrier")
    stamp(P, opt, 3)
    emit_body(A, opt, 2, Emitter(), [], {3: 4, 4: 5}, pl)
    A(".p2align 6")
    ROLE[0] = "h"
    A("L_loader:")
    A("  s_barrier")
    if opt.split:
        A("L_nonce:")
        A("  buffer_load_dwordx2 v[14:15], off, s[36:39], 0 sc1")
        bound(A, "L_nonce")
        A("  s_waitcnt vmcnt(0)")
        A("  v_cmp_eq_u32 vcc, 0, v14")
        A("  s_cbranch_vccnz L_nonce")
        A("L_nonce_x:")
        A("  buffer_load_dwordx2 v[12:13], v2, s[16:19], s93 offen sc1")
    else:
        check_issue(A)
    if opt.escout:
        A("  buffer_load_dword v29, v28, s[16:19], s3 offen sc1")
        A("  s_waitcnt vmcnt(1)")
        A("  s_branch L_eval")
    spin_first(A, opt)
    if not opt.fstamp: stamp(A, opt, 3)
    hdma(0, 0)
    A("  s_cmp_eq_u64 vcc, 0")
    A("  s_cbranch_scc1 L_pollB_x")
    if opt.nset > 1: A(f"  s_mov_b32 s93, {WS_FLAG + 4096 * opt.nrep}")
    spin_flags(A, "L_pollB", "s93", opt.sleep)
    e = 0
    if opt.scout and not opt.escout:
        A("  buffer_load_dword v29, v28, s[16:19], s3 offen sc1"); e = 1
    if opt.ahead:
        hdma(0, 1, 2)
        A("  s_waitcnt vmcnt(24) lgkmcnt(0)")
        if not opt.fstamp: stamp(A, opt, 4)
        A("  s_barrier")
        hdma(0, 3)
        A("  s_waitcnt vmcnt(24)")
        A("  s_barrier")
        hdma(0, 4, 2)
        A("  buffer_load_dwordx2 v[12:13], v2, s[16:19], s94 offen sc1")
        A("  buffer_load_dword v29, v28, s[16:19], 0 offen sc1")
        A("  s_waitcnt vmcnt(38)")
        A("  s_barrier")
        A("  s_cmp_lt_u32 s2, 224")
        A("  s_cbranch_scc1 L_nox")
        x_frags(A, 1, 0)
        A("  s_waitcnt vmcnt(26) lgkmcnt(0)")
        A("  s_barrier")
        for r in range(4):
            x_row(A, r)
            for k in range(3): x_load(A, opt, r, k)
        A("  s_waitcnt vmcnt(13)")
        A("  s_branch L_nox2")
        A("L_nox:")
        A("  s_waitcnt vmcnt(26)")
        A("  s_barrier")
        A("  s_waitcnt vmcnt(1)")
        A("L_nox2:")
        A("  v_cmp_ne_u64 vcc, v[12:13], v[14:15]")
        A("  s_cbranch_vccz L_pollN_x")
        if opt.nset > 1: A(f"  s_add_u32 s94, s94, {4096 * opt.nrep}")
        spin_flags(A, "L_pollN", "s94", opt.sleep)
    else:
        hdma(0, 1)
        A(f"  s_waitcnt vmcnt({12+e}) lgkmcnt(0)")
        if not opt.fstamp: stamp(A, opt, 4)
        A("  s_barrier")
        hdma(0, 2)
        A("  s_waitcnt vmcnt(12)")
        A("  s_barrier")
        hdma(0, 3, 2)
        A("  s_waitcnt vmcnt(24)")
        A("  s_barrier")
        hdma(0, 5)
        if opt.nearly:
            A("  buffer_load_dwordx2 v[12:13], v2, s[16:19], s94 offen sc1")
            A("  buffer_load_dword v29, v28, s[16:19], 0 offen sc1")
            A("  s_waitcnt vmcnt(26)")
            A("  s_barrier")
            A("  s_waitcnt vmcnt(1)")
            A("  v_cmp_ne_u64 vcc, v[12:13], v[14:15]")
            A("  s_cbranch_vccz L_pollN_x")
            spin_flags(A, "L_pollN", "s94", opt.sleep)
        else:
            A("  s_waitcnt vmcnt(24)")
            A("  s_barrier")
            A("  buffer_load_dword v29, v28, s[16:19], 0 offen sc1")
            spin_flags(A, "L_pollN", "s94", opt.sleep)
            A("  s_waitcnt vmcnt(0)")
    A("  s_barrier")
    A("  s_cmp_ge_u32 s2, 224")
    A("  s_cbranch_scc1 L_late")
    A("  s_cmp_lg_u32 s2, 0")
    A("  s_cbranch_scc1 L_noep")
    A("  s_mov_b64 exec, 1")
    A("  buffer_store_dwordx2 v[6:7], off, s[16:19], s95 sc1")
    A("  s_mov_b64 exec, -1")
    A("L_noep:")
    if not opt.fstamp: stamp(A, opt, 5)
    stamp_out(A, opt)
    A("L_end:")
    A("  s_endpgm")
    A("L_late:")
    for n, t in enumerate(opt.join_reads):
        if n == 12: A("  s_waitcnt lgkmcnt(0)")
        A("  " + t)
    A("  s_waitcnt vmcnt(0) lgkmcnt(0)")
    x_frags(A, 0)
    A("  s_waitcnt lgkmcnt(0)")
    A("  s_branch L_join")
    A("L_last:")
    A("  s_endpgm")
    return "\n".join(o)

def main():
    ap = argparse.ArgumentParser()
    ap.add_argument("--ring", type=int, default=12)
    ap.add_argument("--dslead", type=float, default=12.0)
    ap.add_argument("--split", type=int, default=0)
    ap.add_argument("--qn", type=int, default=36)
    ap.add_argument("--qat", type=int, default=6)
    ap.add_argument("--deep", type=int, default=72)
    ap.add_argument("--nrep", type=int, default=1)
    ap.add_argument("--nset", type=int, default=1)
    ap.add_argument("--quick", type=int, default=0)
    ap.add_argument("--n0at", type=int, default=104)
    ap.add_argument("--n0step", type=int, default=4)
    ap.add_argument("--xwat3", type=int, default=164)
    ap.add_argument("--dmacool", type=int, default=2)
    ap.add_argument("--cskip", type=int, default=0)
    ap.add_argument("--nshare", type=int, default=12)
    ap.add_argument("--cx2", type=int, default=2)
    ap.add_argument("--x2late", type=int, default=1)
    ap.add_argument("--heavyc", type=int, default=1)
    ap.add_argument("--pollh", type=int, default=3)
    ap.add_argument("--ahead", type=int, default=1)
    ap.add_argument("--nearly", type=int, default=1)
    ap.add_argument("--hold", type=int, default=2)
    ap.add_argument("--holdat", type=int, default=36)
    ap.add_argument("--pairc", type=int, default=6)
    ap.add_argument("--mixed", type=int, default=1)
    ap.add_argument("--escout", type=int, default=1)
    ap.add_argument("--blead", type=int, default=14)
    ap.add_argument("--b4c", type=int, default=4)
    ap.add_argument("--olate", type=int, default=2)
    ap.add_argument("--stlead", type=float, default=80.0)
    ap.add_argument("--vstcost", type=int, default=0)
    ap.add_argument("--stcool", type=int, default=6)
    ap.add_argument("--sins", type=int, default=6)
    ap.add_argument("--b4blk", type=int, default=9)
    ap.add_argument("--b1at", type=int, default=5)
    ap.add_argument("--b2at", type=int, default=17)
    ap.add_argument("--b3at", type=int, default=29)
    ap.add_argument("--fastp", type=int, default=8)
    ap.add_argument("--pollat", type=int, default=0)
    ap.add_argument("--fsh", type=int, default=5)
    ap.add_argument("--wf", default="")
    ap.add_argument("--bh", type=int, default=1)
    ap.add_argument("--pads", type=int, default=1)
    ap.add_argument("--maxbytes", type=int, default=24)
    ap.add_argument("--age", type=int, default=10)
    ap.add_argument("--padwin", type=int, default=8)
    ap.add_argument("--ndefer", type=int, default=3)
    ap.add_argument("--xwat", type=int, default=154)
    ap.add_argument("--b5at", type=int, default=168)
    ap.add_argument("--xsw", type=int, default=24)
    ap.add_argument("--xwin2", type=int, default=8)
    ap.add_argument("--cwin", type=int, default=6)
    ap.add_argument("--o41", type=int, default=68)
    ap.add_argument("--dswcost", type=int, default=8)
    ap.add_argument("--bxn", type=int, default=24)
    ap.add_argument("--slowp", type=int, default=0)
    ap.add_argument("--slown", type=int, default=10)
    ap.add_argument("--pn", type=int, default=72)
    ap.add_argument("--p0", type=int, default=0)
    ap.add_argument("--fstamp", type=int, default=0)
    ap.add_argument("--swapmn", type=int, default=0)
    ap.add_argument("--scout", type=int, default=1)
    ap.add_argument("--prefn", type=int, default=4)
    ap.add_argument("--presleep", type=int, default=0)
    ap.add_argument("--pausen", type=int, default=0)
    ap.add_argument("--budget", type=int, default=8)
    ap.add_argument("--maxfill", type=int, default=5)
    ap.add_argument("--lgextra", type=int, default=1)
    ap.add_argument("--xwin", type=int, default=6)
    ap.add_argument("--xearly", type=int, default=24)
    ap.add_argument("--sleep", type=int, default=0)
    ap.add_argument("--pref", type=int, default=1)
    ap.add_argument("--stflags", default="sc1,nt")
    ap.add_argument("--xf", default="nt")
    ap.add_argument("--log", action="store_true")
    ap.add_argument("--nostore", action="store_true")
    ap.add_argument("--stamps", action="store_true")
    ap.add_argument("--probe", default=None)
    ap.add_argument("--pwg", default="0,256")
    opt = ap.parse_args()
    if opt.probe:
        opt.probe = (opt.probe[0], int(opt.probe[1:])); opt.stamps = True
        opt.pwg = [int(x) for x in opt.pwg.split(",")]
    if opt.stflags: opt.stflags = " " + opt.stflags.replace(",", " ")
    if opt.wf: opt.wf = " " + opt.wf.replace(",", " ")
    if opt.stamps and not opt.probe: opt.prefn = 4
    if opt.xf: opt.xf = " " + opt.xf.replace(",", " ")
    print(HDR.rstrip())
    print(f"; @launch grid=(256,1,1) block=(256,1,1) lds=163840")
    print(DOC)
    print('.amdgcn_target "amdgcn-amd-amdhsa--gfx950"\n.text')
    print(main_kernel(opt))
    print('.section .rodata,"a"')
    print(f""".p2align 6
.amdhsa_kernel {KN}
  .amdhsa_next_free_vgpr {256 + 96 + 4 * opt.ring}
  .amdhsa_next_free_sgpr 96
  .amdhsa_accum_offset 256
  .amdhsa_group_segment_fixed_size 0
  .amdhsa_kernarg_size 48
  .amdhsa_user_sgpr_count 2
  .amdhsa_user_sgpr_kernarg_segment_ptr 1
  .amdhsa_system_sgpr_workgroup_id_x 1
.end_amdhsa_kernel""")

main()
```
